```python
import torch

def _softmax(x, axis=-1):
    return torch.softmax(x, dim=axis)
def _gelu(x):
    return torch.nn.functional.gelu(x, approximate="tanh")
def _silu(x):
    return torch.nn.functional.silu(x)
def _sigmoid(x):
    return torch.sigmoid(x)
def _layernorm(x, axis=-1, eps=1e-5):
    m = x.mean(dim=axis, keepdim=True)
    v = x.var(dim=axis, keepdim=True, unbiased=False)
    return (x - m) / torch.sqrt(v + eps)
def _scatter_add(tgt, idx, src, axis=0):
    return tgt.clone().index_add_(axis, idx, src)
def _segment_sum(src, seg, n):
    out = torch.zeros((n,) + src.shape[1:], dtype=src.dtype)
    return out.index_add_(0, seg, src)
def _pad(x, pw):
    flat = tuple(v for pair in reversed(pw) for v in pair)
    return torch.nn.functional.pad(x, flat)

kernel_name = 'sequential_preLN__sliding_block_cached__glu_gated_glu__decode'

def setup_inputs():

    _w = (lambda a: (lambda t: t.to(torch.bfloat16) if t.is_floating_point() else t)(torch.as_tensor(a)))
    def _A_setup():
        B, Sq, D = 8, 1, 512
        Hq, Hkv, Sk, Dh = 32, 8, 4096, 128
        assert Hq % Hkv == 0, (Hq, Hkv)
        return {
            "x": _w((lambda *s: torch.randn(*s, dtype=torch.bfloat16) * 0.05)(B, Sq, D)),
            "k_cache": _w((lambda *s: torch.randn(*s, dtype=torch.bfloat16) * 3.2)(B, Hkv, Sk, Dh)),
            "v_cache": _w((lambda *s: torch.randn(*s, dtype=torch.bfloat16) * 0.4)(B, Hkv, Sk, Dh)),
            "wq": _w((lambda *s: torch.randn(*s, dtype=torch.bfloat16) * 3.2)(D, Hq * Dh) * (D ** -0.5)),
            "wo": _w((lambda *s: torch.randn(*s, dtype=torch.bfloat16) * 0.4)(Hq * Dh, D) * ((Hq * Dh) ** -0.5)),
        }
    _A_in = _A_setup()

    def _B_setup():
        B, S, D, F = 8, 1, 512, 1792
        return {
            "x": _w((lambda *s: torch.randn(*s, dtype=torch.bfloat16) * 0.05)(B, S, D)),
            "w_gate": _w((lambda *s: torch.randn(*s, dtype=torch.bfloat16) * 0.1)(D, F)),
            "w_up": _w((lambda *s: torch.randn(*s, dtype=torch.bfloat16) * 0.05)(D, F)),
            "w_down": _w((lambda *s: torch.randn(*s, dtype=torch.bfloat16) * 0.05)(F, D)),
        }
    _B_in = _B_setup()

    return {
        "A_x": _A_in["x"],
        "A_k_cache": _A_in["k_cache"],
        "A_v_cache": _A_in["v_cache"],
        "A_wq": _A_in["wq"],
        "A_wo": _A_in["wo"],
        "B_x": _B_in["x"],
        "B_w_gate": _B_in["w_gate"],
        "B_w_up": _B_in["w_up"],
        "B_w_down": _B_in["w_down"],
    }

def reference(A_x, A_k_cache, A_v_cache, A_wq, A_wo, B_x, B_w_gate, B_w_up, B_w_down):
    def _A_ref(x, k_cache, v_cache, wq, wo):
        B, Sq, D = x.shape
        Hq, Dh = 32, 128
        Hkv, Sk = k_cache.shape[1], k_cache.shape[2]
        W = min(4096, max(256, Sk // 4))
        rep = Hq // Hkv
        q = (lambda x, *d: x.permute(*d))((x @ wq).reshape(B, Sq, Hq, Dh), 0, 2, 1, 3)
        k = (lambda x, n, axis: torch.repeat_interleave(x, n, dim=axis))(k_cache[:, :, Sk - W:, :], rep, axis=1)
        v = (lambda x, n, axis: torch.repeat_interleave(x, n, dim=axis))(v_cache[:, :, Sk - W:, :], rep, axis=1)
        scores = torch.einsum("bhqd,bhkd->bhqk", q, k) * (Dh ** -0.5)
        p = _softmax(scores, axis=-1)
        o = torch.einsum("bhqk,bhkd->bhqd", p, v)
        return (lambda x, *d: x.permute(*d))(o, 0, 2, 1, 3).reshape(B, Sq, Hq * Dh) @ wo

    def _B_ref(x, w_gate, w_up, w_down):
        g = torch.einsum("bsd,df->bsf", x, w_gate)
        u = torch.einsum("bsd,df->bsf", x, w_up)
        h = _sigmoid(g) * u
        return torch.einsum("bsf,fd->bsd", h, w_down)

    x = A_x
    h = x + _A_ref(_layernorm(x, axis=-1), A_k_cache, A_v_cache, A_wq, A_wo)
    h2 = h + _B_ref(_layernorm(h, axis=-1), B_w_gate, B_w_up, B_w_down)
    return h2
```

```python
NAME = "sequential_preLN__sliding_block_cached__glu_gated_glu__decode"
class Asm:
    def __init__(self):
        self.l = []
    def __call__(self, s):
        for x in s.split("\n"):
            x = x.strip()
            if not x: continue
            if x.endswith(":"): self.l.append(x)
            else: self.l.append("    " + x)
    def c(self, s): self.l.append("    ; " + s)
    def text(self): return "\n".join(self.l) + "\n"
def wrap(body, grid, block, lds, vgpr, sgpr=102, accum=None, name=NAME + "_kernel", header=""):
    if accum is None: accum = min(256, (vgpr + 3) // 4 * 4)
    return f"""{header}; @launch grid=({grid},1,1) block=({block},1,1) lds={lds}
.amdgcn_target "amdgcn-amd-amdhsa--gfx950"
.text
.globl {name}
.p2align 8
.type {name},@function
{name}:
{body}
.section .rodata,"a"
.p2align 6
.amdhsa_kernel {name}
  .amdhsa_next_free_vgpr {vgpr}
  .amdhsa_next_free_sgpr {sgpr}
  .amdhsa_accum_offset {accum}
  .amdhsa_group_segment_fixed_size 0
  .amdhsa_kernarg_size 96
  .amdhsa_user_sgpr_count 2
  .amdhsa_user_sgpr_kernarg_segment_ptr 1
  .amdhsa_system_sgpr_workgroup_id_x 1
.end_amdhsa_kernel
"""
```

```python
import re
TRANS = ("v_exp_f32","v_log_f32","v_rcp_f32","v_rsq_f32","v_sqrt_f32","v_sin_f32","v_cos_f32")
def regs(tok):
    tok = tok.strip()
    tok = re.sub(r"^-|^abs\(|\)$|^\|", "", tok).strip("|")
    m = re.fullmatch(r"([vsa])(\d+)", tok)
    if m: return [(m.group(1), int(m.group(2)))]
    m = re.fullmatch(r"([vsa])\[(\d+):(\d+)\]", tok)
    if m: return [(m.group(1), i) for i in range(int(m.group(2)), int(m.group(3)) + 1)]
    if tok == "vcc": return [("s", "vcc")]
    if tok in ("vcc_lo","vcc_hi"): return [("s","vcc")]
    if tok == "exec": return [("s", "exec")]
    if tok == "m0": return [("s", "m0")]
    return []
def split_ops(s):
    out, d, cur = [], 0, ""
    for ch in s:
        if ch in "[(": d += 1
        if ch in "])": d -= 1
        if ch == "," and d == 0: out.append(cur.strip()); cur = ""
        else: cur += ch
    if cur.strip(): out.append(cur.strip())
    return out
class I: pass
def parse(line):
    s = line.split(";")[0].strip()
    if not s or s.endswith(":") or s.startswith("."): return None
    p = s.split(None, 1)
    mn = p[0]; rest = p[1] if len(p) > 1 else ""
    ops = split_ops(rest)
    mods = ""
    if ops:
        q = ops[-1].split(None, 1)
        if len(q) > 1 and not ops[-1].startswith("hwreg") : ops[-1] = q[0]; mods = q[1]
    i = I(); i.mn = mn; i.ops = ops; i.mods = mods; i.dst = []; i.src = []; i.kind = "other"
    i.dpp = ("quad_perm" in rest or "row_" in rest.replace("row_mask","")) and mn.startswith("v_")
    i.sdwa = "_sdwa" in mn
    R = [regs(o) for o in ops]
    flat = lambda L: [x for l in L for x in l]
    if mn.startswith("v_mfma"):
        i.kind = "mfma"; i.dst = R[0]; i.a = R[1] + R[2]; i.cc = R[3]; i.src = i.a + i.cc
        i.passes = 8 if "32x32" in mn else 4
    elif mn.startswith("v_"):
        i.kind = "valu"; i.trans = any(mn.startswith(t) for t in TRANS)
        if mn.startswith("v_cmp"):
            i.dst = R[0]; i.src = flat(R[1:])
            if mn.startswith("v_cmpx"): i.dst = i.dst + [("s","exec")]
        elif mn.startswith("v_permlane"):
            i.dst = R[0] + R[1]; i.src = R[0] + R[1]
        elif mn.startswith(("v_add_co","v_sub_co","v_addc_co","v_subb_co")):
            i.dst = R[0] + R[1]; i.src = flat(R[2:])
        else:
            i.dst = R[0]; i.src = flat(R[1:])
            if mn.startswith(("v_fmac","v_pk_fmac","v_dot2c","v_writelane")) or i.dpp: i.src = i.src + R[0]
            if mn.startswith("v_cndmask") and len(ops) == 3: i.src = i.src + [("s","vcc")]
    elif mn.startswith(("buffer_","global_")):
        i.kind = "vmem"; lds = " lds" in (" " + rest + " ").replace(",", " ") or "_lds_" in mn
        i.lds = lds; i.store = "store" in mn or "atomic" in mn
        if lds: i.src = flat(R) + [("s","m0")]
        elif "store" in mn:
            i.src = flat(R); i.data = R[0] if mn.startswith("buffer") else R[1]
            i.wide = "x3" in mn or "x4" in mn
        elif "atomic" in mn: i.src = flat(R); i.dst = R[0]
        else: i.dst = R[0]; i.src = flat(R[1:])
    elif mn.startswith("ds_"):
        i.kind = "ds"
        if mn.startswith(("ds_read","ds_bpermute","ds_permute","ds_swizzle")): i.dst = R[0]; i.src = flat(R[1:])
        else: i.src = flat(R)
    elif mn.startswith("s_"):
        i.kind = "salu"
        if mn == "s_nop": i.kind = "nop"; i.n = int(ops[0], 0) + 1
        elif mn.startswith(("s_cmp","s_waitcnt","s_barrier","s_cbranch","s_branch","s_endpgm","s_sleep","s_setprio","s_bitcmp")): i.src = flat(R)
        else:
            i.dst = R[0]; i.src = flat(R[1:])
            if "saveexec" in mn: i.dst = i.dst + [("s","exec")]
    return i
def need(p, c):
    n = 0
    pd = set(p.dst); cs = set(c.src); cd = set(c.dst)
    pv = {x for x in pd if x[0] in "va"}; ps = {x for x in pd if x[0] == "s"}
    if p.kind == "valu":
        if c.kind == "mfma" and pv & cs: n = max(n, 2)
        if c.kind == "mfma" and ("s","exec") in ps: n = max(n, 4)
        if c.kind == "valu":
            if c.dpp and pv & cs: n = max(n, 2)
            if c.dpp and ("s","exec") in ps: n = max(n, 5)
            if c.mn.startswith("v_permlane") and pv & cs: n = max(n, 2)
            if c.mn.startswith(("v_readlane","v_readfirstlane")) and pv & cs: n = max(n, 1)
            if ps & cs:
                n = max(n, 2)
                if c.mn.startswith(("v_readlane","v_writelane")): n = max(n, 4)
            if c.mn.startswith(("v_readlane","v_readfirstlane","v_writelane","v_permlane")) and ("s","exec") in ps: n = max(n, 4)
            if p.trans and not c.trans and pv & cs: n = max(n, 1)
            if p.sdwa and pv & (cs | cd): n = max(n, 1)
        if c.kind == "vmem" and ps & cs: n = max(n, 5)
        if p.trans and c.kind in ("vmem","ds","mfma") and pv & cs: n = max(n, 2 if c.kind == "mfma" else 1)
    if p.kind == "mfma":
        big = p.passes == 8
        if c.kind == "mfma":
            if set(c.cc) & pd:
                if c.cc == p.dst and c.passes == p.passes: pass
                else: n = max(n, 10 if big else 6)
            if set(c.a) & pd: n = max(n, 12 if big else 8)
            if cd & pd and not (c.cc == p.dst): n = max(n, 12 if big else 8)
        elif c.kind in ("valu","vmem","ds"):
            if pd & (cs | cd): n = max(n, 12 if big else 8)
            if c.kind == "valu" and set(p.cc) & cd: n = max(n, 7 if big else 3)
    if p.kind == "salu":
        if ("s","m0") in pd and c.kind == "vmem" and getattr(c, "lds", False): n = max(n, 1)
    if p.kind == "vmem" and getattr(p, "wide", False):
        if set(p.data) & cd: n = max(n, 2 if c.kind in ("valu","mfma") else 1)
    return n
def fix(lines, verbose=False):
    out = []; hist = []
    added = 0
    for ln in lines:
        c = parse(ln)
        if c is None: out.append(ln); continue
        req = 0
        dist = 0
        for p in reversed(hist):
            if p.kind != "nop":
                r = need(p, c) - dist
                if r > req: req = r
            dist += p.n if p.kind == "nop" else 1
            if dist > 16: break
        if req > 0 and c.kind != "nop":
            out.append(f"    s_nop {req-1}")
            h = I(); h.kind = "nop"; h.n = req; hist.append(h); added += 1
        out.append(ln); hist.append(c)
        if len(hist) > 40: hist = hist[-24:]
    return out
```

```python
import sys
from asmlib import *
import hz

EPOCH=0; RDY=0x1000; QB=0x10000; OB=0x40000; LSE=0x80000; WP=0x90000; HH=0xB0000
STAMP=128<<20
L_WQ=0; L_WO=16384; L_WG=32768; L_WU=49152; L_WD=32768
L_XN=90112
L_QP=L_XN+8320
L_QL=L_QP+8192
L_MX=L_QL+1088
L_LS=L_MX+128
L_OP=L_LS+128
L_END=L_OP+16384
sX,sK,sV,sWQ,sWO,sG,sU,sOUT,sWS,sD = [f"s[{i}:{i+3}]" for i in range(8,48,4)]
LOG2E=0x3fb8aa3b; SCALE=0x3db504f3
EPS=0x3727c5ac

def gen(debug=False, opt=None):
    opt = opt or {}
    NT = opt.get("nt", "nt")
    a = Asm()
    nst = [0]
    def stamp(i):
        if debug: a(f"s_memrealtime s[{64+2*i}:{65+2*i}]")
    def spin():
        a("s_sub_u32 s96, s96, 1\ns_cbranch_scc1 L_end")
    def unpack(dlo, dhi, src):
        a(f"v_lshlrev_b32 v{dlo}, 16, v{src}\nv_and_b32 v{dhi}, s56, v{src}")
    def wave_sum2(x, y):
        for m in ["quad_perm:[1,0,3,2] row_mask:0xf", "quad_perm:[2,3,0,1] row_mask:0xf", "row_half_mirror row_mask:0xf", "row_mirror row_mask:0xf",
                  "row_bcast:15 row_mask:0xa", "row_bcast:31 row_mask:0xc"]:
            a(f"v_add_f32_dpp v{x}, v{x}, v{x} {m} bank_mask:0xf")
            a(f"v_add_f32_dpp v{y}, v{y}, v{y} {m} bank_mask:0xf")
    def ln_part1(f, t):
        a(f"v_readfirstlane_b32 s50, v{f}")
        for i in range(8): a(f"v_subrev_f32 v{t+i}, s50, v{f+i}")
        a(f"v_add_f32 v{t+8}, v{t}, v{t+1}\nv_mul_f32 v{t+9}, v{t}, v{t}")
        a(f"v_fmac_f32 v{t+9}, v{t+1}, v{t+1}")
        for i in range(2, 8):
            a(f"v_add_f32 v{t+8}, v{t+8}, v{t+i}\nv_fmac_f32 v{t+9}, v{t+i}, v{t+i}")
    def ln_part2(f, t, o):
        wave_sum2(t+8, t+9)
        a(f"v_readlane_b32 s51, v{t+8}, 63\nv_readlane_b32 s52, v{t+9}, 63")
        a(f"v_mov_b32 v{t}, 0x3b000000")
        a(f"v_mul_f32 v{t+1}, s51, v{t}")
        a(f"v_mul_f32 v{t+2}, s52, v{t}")
        a(f"v_fma_f32 v{t+2}, -v{t+1}, v{t+1}, v{t+2}")
        a(f"v_add_f32 v{t+1}, s50, v{t+1}")
        a(f"v_max_f32 v{t+2}, 0, v{t+2}")
        a(f"v_cvt_pk_bf16_f32 v{t+1}, v{t+1}, v{t+2}")
        a(f"v_and_b32 v{t+2}, s56, v{t+1}")
        a(f"v_lshlrev_b32 v{t+1}, 16, v{t+1}")
        a(f"v_add_f32 v{t+2}, {hex(EPS)}, v{t+2}")
        a(f"v_cvt_pk_bf16_f32 v{t+2}, v{t+2}, v{t+2}")
        a(f"v_and_b32 v{t+2}, s56, v{t+2}")
        a(f"v_sqrt_f32 v{t+2}, v{t+2}")
        for i in range(8): a(f"v_sub_f32 v{f+i}, v{f+i}, v{t+1}")
        a(f"v_cvt_pk_bf16_f32 v{t+2}, v{t+2}, v{t+2}")
        a(f"v_and_b32 v{t+2}, s56, v{t+2}")
        a(f"v_rcp_f32 v{t+2}, v{t+2}")
        for i in range(4): a(f"v_cvt_pk_bf16_f32 v{t+4+i}, v{f+2*i}, v{f+2*i+1}")
        for i in range(4): unpack(f+2*i, f+2*i+1, t+4+i)
        for i in range(8): a(f"v_mul_f32 v{f+i}, v{f+i}, v{t+2}")
        for i in range(4): a(f"v_cvt_pk_bf16_f32 v{o+i}, v{f+2*i}, v{f+2*i+1}")
    def dma(voff, srd, soff, ldsaddr_s):
        a(f"s_mov_b32 m0, {ldsaddr_s}")
        a(f"buffer_load_dwordx4 v{voff}, {srd}, {soff} offen {NT} lds")
    def trfrag(dst, vaddr, off):
        a(f"ds_read_b64_tr_b16 v[{dst}:{dst+1}], v{vaddr} offset:{off}")
        a(f"ds_read_b64_tr_b16 v[{dst+2}:{dst+3}], v{vaddr} offset:{off+512}")
    def mfma(d, A, B, C=None):
        c = "0" if C is None else f"v[{C}:{C+3}]"
        a(f"v_mfma_f32_16x16x32_bf16 v[{d}:{d+3}], v[{A}:{A+3}], v[{B}:{B+3}], {c}")
    def check_sent(regs, t):
        r = list(regs)
        a(f"v_max3_u32 v{t}, v{r[0]}, v{r[1]}, v{r[2]}")
        r = r[3:]
        while len(r) >= 2:
            a(f"v_max3_u32 v{t}, v{t}, v{r[0]}, v{r[1]}"); r = r[2:]
        if r: a(f"v_max_u32 v{t}, v{t}, v{r[0]}")
        a(f"v_cmp_eq_u32 vcc, -1, v{t}")

    a("s_cmp_ge_u32 s2, 256\ns_cbranch_scc1 L_end")
    stamp(0)
    a("s_load_dwordx2 s[8:9], s[0:1], 0")
    a("s_load_dwordx2 s[20:21], s[0:1], 24")
    a("s_load_dwordx2 s[12:13], s[0:1], 8")
    a("s_load_dwordx2 s[16:17], s[0:1], 16")
    a("s_load_dwordx2 s[40:41], s[0:1], 88")
    a("s_load_dwordx2 s[24:25], s[0:1], 32")
    a("s_load_dwordx2 s[28:29], s[0:1], 48")
    a("s_load_dwordx2 s[32:33], s[0:1], 56")
    a("s_load_dwordx2 s[44:45], s[0:1], 64")
    a("s_load_dwordx2 s[36:37], s[0:1], 72")
    a("v_lshrrev_b32 v9, 6, v0\nv_and_b32 v1, 63, v0")
    a("v_readfirstlane_b32 s3, v9")
    a("s_and_b32 s4, s2, 7\ns_lshr_b32 s5, s2, 3\ns_lshl_b32 s6, s4, 5\ns_add_u32 s6, s6, s5")
    for d, n in [(8, 8192), (12, 64<<20), (16, 64<<20), (20, 4<<20), (24, 4<<20), (28, 512*3584), (32, 512*3584), (36, 8192), (40, 256<<20), (44, 1792*1024)]:
        a(f"s_mov_b32 s{d+2}, {hex(n)}\ns_mov_b32 s{d+3}, 0x20000")
    a("s_mov_b32 s56, 0xffff0000\ns_mov_b32 s96, 300000")
    a("v_lshlrev_b32 v7, 4, v1\nv_lshlrev_b32 v8, 3, v1")
    a("v_and_b32 v10, 15, v1\nv_lshrrev_b32 v11, 4, v1")
    a("s_cmp_eq_u32 s3, 8\ns_cbranch_scc1 L_comm")
    a("v_bfe_u32 v9, v1, 1, 2\nv_and_b32 v12, 24, v1\nv_lshrrev_b32 v13, 3, v1\nv_and_b32 v13, 4, v13\nv_or3_b32 v9, v9, v12, v13")
    a("v_and_b32 v12, 1, v1\nv_lshlrev_b32 v12, 4, v12")
    a("v_lshl_add_u32 v4, v9, 13, v12")
    a("v_lshl_add_u32 v5, v9, 10, v12")
    a("v_mul_u32_u24 v6, 3584, v9\nv_add_u32 v6, v6, v12")
    a("v_lshlrev_b32 v2, 4, v11\nv_lshl_add_u32 v2, v10, 8, v2")
    a("v_lshlrev_b32 v3, 4, v10\nv_lshl_add_u32 v3, v11, 10, v3")
    a("s_lshr_b32 s7, s5, 2\ns_lshl_b32 s48, s7, 23\ns_lshl_b32 s7, s4, 20\ns_add_u32 s48, s48, s7")
    a("s_and_b32 s7, s5, 3\ns_lshl_b32 s7, s7, 16\ns_add_u32 s48, s48, s7\ns_lshl_b32 s7, s3, 13\ns_add_u32 s48, s48, s7\ns_add_u32 s48, s48, 786432")
    a("s_add_u32 s49, s48, 4096")
    a("s_lshl_b32 s50, s3, 10")
    a("s_lshl_b32 s51, s6, 5\ns_lshl_b32 s7, s3, 19\ns_add_u32 s51, s51, s7\ns_add_u32 s52, s51, 262144")
    a("s_lshl_b32 s53, s3, 11")
    a("s_add_u32 s54, s53, 1024")
    a("s_waitcnt lgkmcnt(0)")
    a(f"buffer_load_dwordx4 v[80:83], v7, {sX}, s50 offen")
    dma(4, sWQ, "s51", "s53")
    dma(4, sWQ, "s52", "s54")
    for kk in range(4): a(f"buffer_load_dwordx4 v[{16+4*kk}:{19+4*kk}], v2, {sK}, s48 offen offset:{kk*64} {NT}")
    a(f"v_mov_b32 v12, 1040\nv_mul_u32_u24 v12, s3, v12\nv_add_u32 v12, v12, v7")
    a(f"v_add_u32 v12, {L_XN}, v12")
    a(f"v_and_b32 v13, 7, v10\nv_mul_u32_u24 v13, 1040, v13\nv_lshl_add_u32 v13, v11, 4, v13")
    a(f"s_lshl_b32 s7, s3, 7\ns_add_u32 s7, s7, {L_XN}\nv_add_u32 v13, s7, v13")
    a(f"v_add_u32 v14, s53, v8")
    a("s_waitcnt vmcnt(6)")
    for i in range(4): unpack(84+2*i, 85+2*i, 80+i)
    ln_part1(84, 92)
    ln_part2(84, 92, 80)
    a("ds_write_b128 v12, v[80:83]")
    for kk in range(4): a(f"buffer_load_dwordx4 v[{32+4*kk}:{35+4*kk}], v2, {sK}, s49 offen offset:{kk*64} {NT}")
    a("s_waitcnt lgkmcnt(0)\ns_barrier")
    stamp(1)
    a("ds_read_b128 v[104:107], v13\nds_read_b128 v[108:111], v13 offset:64")
    a("s_waitcnt vmcnt(8)")
    trfrag(96, 14, L_WQ); trfrag(100, 14, L_WQ + 1024)
    a(f"s_lshl_b32 s7, s3, 10\ns_add_u32 s7, s7, {L_QP}\nv_add_u32 v15, s7, v7")
    a("s_waitcnt lgkmcnt(0)")
    mfma(112, 96, 104); mfma(112, 100, 108, 112)
    for r in range(4): a(f"buffer_load_dwordx4 v[{48+4*r}:{51+4*r}], v3, {sV}, s48 offen offset:{r*256} {NT}")
    a("ds_write_b128 v15, v[112:115]")
    a("s_waitcnt lgkmcnt(0)\ns_barrier")
    stamp(2)
    for r in range(4): a(f"buffer_load_dwordx4 v[{64+4*r}:{67+4*r}], v3, {sV}, s49 offen offset:{r*256} {NT}")
    for i in range(16): a(f"v_mov_b32 v{80+i}, 0")
    a(f"v_and_b32 v12, 3, v10\nv_mul_u32_u24 v13, 272, v12\nv_lshl_add_u32 v13, v11, 4, v13\nv_add_u32 v13, {L_QL}, v13")
    a(f"v_lshlrev_b32 v12, 5, v12\nv_add_u32 v12, {L_MX}, v12")
    a(f"s_lshl_b32 s7, s3, 2\nv_add_u32 v9, s7, v12")
    a(f"s_mov_b32 s57, {hex(SCALE)}\ns_mov_b32 s58, {hex(LOG2E)}\ns_mov_b32 s59, 0x05040100\ns_mov_b32 s60, 0x07060302")
    stamp(3)
    a("s_barrier")
    stamp(4)
    for kk in range(4): a(f"ds_read_b128 v[{104+4*kk}:{107+4*kk}], v13 offset:{kk*64}")
    a("s_waitcnt vmcnt(8) lgkmcnt(0)")
    for kk in range(4):
        mfma(96, 16+4*kk, 104+4*kk, None if kk == 0 else 96)
        mfma(100, 32+4*kk, 104+4*kk, None if kk == 0 else 100)
    for i in range(4): a(f"v_cvt_pk_bf16_f32 v{120+i}, v{96+2*i}, v{97+2*i}")
    for i in range(4): unpack(96+2*i, 97+2*i, 120+i)
    for i in range(8): a(f"v_mul_f32 v{96+i}, s57, v{96+i}")
    for i in range(4): a(f"v_cvt_pk_bf16_f32 v{120+i}, v{96+2*i}, v{97+2*i}")
    for i in range(4): unpack(96+2*i, 97+2*i, 120+i)
    a("v_max3_f32 v120, v96, v97, v98\nv_max3_f32 v121, v99, v100, v101\nv_max3_f32 v120, v120, v102, v103\nv_max_f32 v120, v120, v121")
    a("v_mov_b32 v121, v120\nv_permlane16_swap_b32 v120, v121\nv_max_f32 v120, v120, v121")
    a("v_mov_b32 v121, v120\nv_permlane32_swap_b32 v120, v121\nv_max_f32 v120, v120, v121")
    a("ds_write_b32 v9, v120")
    a("s_waitcnt lgkmcnt(0)\ns_barrier")
    a("ds_read_b128 v[104:107], v12\nds_read_b128 v[108:111], v12 offset:16")
    a("s_waitcnt lgkmcnt(0)")
    a("v_max3_f32 v120, v104, v105, v106\nv_max3_f32 v121, v107, v108, v109\nv_max3_f32 v120, v120, v110, v111\nv_max_f32 v124, v120, v121")
    for i in range(8): a(f"v_sub_f32 v{96+i}, v{96+i}, v124")
    for i in range(8): a(f"v_mul_f32 v{96+i}, s58, v{96+i}")
    for i in range(8): a(f"v_exp_f32 v{96+i}, v{96+i}")
    a("v_add_f32 v120, v96, v97\nv_add_f32 v121, v98, v99\nv_add_f32 v122, v100, v101\nv_add_f32 v123, v102, v103")
    a("v_add_f32 v120, v120, v121\nv_add_f32 v122, v122, v123\nv_add_f32 v120, v120, v122")
    a("v_mov_b32 v121, v120\nv_permlane16_swap_b32 v120, v121\nv_add_f32 v120, v120, v121")
    a("v_mov_b32 v121, v120\nv_permlane32_swap_b32 v120, v121\nv_add_f32 v120, v120, v121")
    a(f"ds_write_b32 v9, v120 offset:{L_LS-L_MX}")
    for x in range(4):
        a(f"s_mov_b32 exec_lo, {hex(0x000F000F << (4*x))}\ns_mov_b32 exec_hi, {hex(0x000F000F << (4*x))}")
        for c in range(4): a(f"v_cvt_pk_bf16_f32 v{80+4*x+c}, v{96+2*c}, v{97+2*c}")
    a("s_mov_b64 exec, -1")
    stamp(5)
    a(f"s_lshl_b32 s51, s4, 19\ns_lshl_b32 s7, s3, 16\ns_add_u32 s51, s51, s7\ns_lshl_b32 s7, s5, 5\ns_add_u32 s51, s51, s7\ns_add_u32 s52, s51, 32768")
    a(f"s_add_u32 s54, s53, {L_WO}\ns_add_u32 s55, s53, {L_WO+1024}")
    dma(5, sWO, "s51", "s54"); dma(5, sWO, "s52", "s55")
    a("s_cmp_ge_u32 s5, 28\ns_cbranch_scc1 L_ld_d")
    a(f"s_mul_i32 s61, s4, 14\ns_lshr_b32 s7, s5, 1\ns_add_u32 s61, s61, s7")
    a(f"s_lshl_b32 s51, s61, 5\ns_mul_i32 s7, s3, {64*3584}\ns_add_u32 s51, s51, s7\ns_add_u32 s52, s51, {32*3584}")
    a(f"s_add_u32 s54, s53, {L_WG}\ns_add_u32 s55, s53, {L_WG+1024}")
    dma(6, sG, "s51", "s54"); dma(6, sG, "s52", "s55")
    a(f"s_add_u32 s54, s53, {L_WU}\ns_add_u32 s55, s53, {L_WU+1024}")
    dma(6, sU, "s51", "s54"); dma(6, sU, "s52", "s55")
    a("s_and_b32 s62, s5, 1\ns_lshl_b32 s62, s62, 2\ns_and_b32 s7, s3, 3\ns_add_u32 s62, s62, s7")
    a("s_lshl_b32 s7, s62, 10")
    a(f"buffer_load_dwordx2 v[112:113], v8, {sX}, s7 offen\nbuffer_load_dwordx2 v[114:115], v8, {sX}, s7 offen offset:512")
    a(f"buffer_load_dword v116, v8, {sX}, s7 offen")
    a("s_branch L_ld_done")
    a("L_ld_d:")
    a(f"s_lshl_b32 s61, s4, 2\ns_add_u32 s61, s61, s5\ns_sub_u32 s61, s61, 28")
    a(f"s_lshl_b32 s51, s61, 5\ns_mul_i32 s7, s3, {7*32*1024}\ns_add_u32 s51, s51, s7")
    a(f"s_mul_i32 s54, s3, 7168\ns_add_u32 s54, s54, {L_WD}")
    for ks in range(7):
        dma(5, sD, "s51", "s54")
        if ks < 6: a("s_add_u32 s51, s51, 32768\ns_add_u32 s54, s54, 1024")
    a("L_ld_done:")
    stamp(6)
    a(f"v_add_u32 v12, s53, v8\nv_add_u32 v12, {L_OP}, v12\nv_add_u32 v13, 1024, v12")
    for c in range(4):
        a(f"s_waitcnt vmcnt({9 + 6 - 2*c})")
        for x in range(4):
            a(f"v_perm_b32 v{16+8*x+c}, v{48+4*(2*c+1)+x}, v{48+4*(2*c)+x}, s59")
            a(f"v_perm_b32 v{20+8*x+c}, v{48+4*(2*c+1)+x}, v{48+4*(2*c)+x}, s60")
    stamp(7)
    for x in range(4):
        mfma(96, 80+4*x, 16+8*x, None if x == 0 else 96)
        mfma(100, 80+4*x, 20+8*x, None if x == 0 else 100)
    a("v_readlane_b32 s63, v124, s3")
    a("ds_write2_b32 v12, v96, v100 offset0:0 offset1:1\nds_write2_b32 v12, v97, v101 offset0:128 offset1:129")
    a("ds_write2_b32 v13, v98, v102 offset0:0 offset1:1\nds_write2_b32 v13, v99, v103 offset0:128 offset1:129")
    a(f"s_lshl_b32 s7, s3, 9\ns_add_u32 s7, s7, {L_OP}\nv_add_u32 v12, s7, v8")
    a(f"s_lshl_b32 s7, s3, 5\ns_add_u32 s7, s7, {L_LS}\nv_mov_b32 v13, s7")
    a("v_lshlrev_b32 v9, 2, v11\nv_lshl_add_u32 v9, v10, 4, v9")
    a(f"s_lshl_b32 s51, s6, 10\ns_lshl_b32 s7, s3, 8\ns_add_u32 s51, s51, s7\ns_add_u32 s51, s51, {OB}")
    a(f"s_lshl_b32 s52, s4, 2\ns_add_u32 s52, s52, s3\ns_lshl_b32 s52, s52, 5\ns_add_u32 s52, s52, s5\ns_lshl_b32 s52, s52, 2\ns_add_u32 s52, s52, {LSE}")
    a("s_waitcnt lgkmcnt(0)\ns_barrier")
    stamp(8)
    a("s_cmp_ge_u32 s3, 4\ns_cbranch_scc1 L_w_stage")
    a("ds_read_b128 v[104:107], v13\nds_read_b128 v[108:111], v13 offset:16")
    for w in range(8): a(f"ds_read_b64 v[{16+2*w}:{17+2*w}], v12 offset:{w*2048}")
    a("s_waitcnt lgkmcnt(8)" if not debug else "s_waitcnt lgkmcnt(0)")
    a("v_pk_add_f32 v[104:105], v[104:105], v[106:107]\nv_pk_add_f32 v[108:109], v[108:109], v[110:111]\nv_pk_add_f32 v[104:105], v[104:105], v[108:109]\nv_add_f32 v104, v104, v105")
    a("v_rcp_f32 v105, v104\nv_log_f32 v106, v104")
    a("s_waitcnt lgkmcnt(0)")
    a("v_pk_add_f32 v[16:17], v[16:17], v[18:19]\nv_pk_add_f32 v[20:21], v[20:21], v[22:23]\nv_pk_add_f32 v[24:25], v[24:25], v[26:27]\nv_pk_add_f32 v[28:29], v[28:29], v[30:31]")
    a("v_pk_add_f32 v[16:17], v[16:17], v[20:21]\nv_pk_add_f32 v[24:25], v[24:25], v[28:29]\nv_pk_add_f32 v[16:17], v[16:17], v[24:25]")
    a("v_mul_f32 v16, v16, v105\nv_mul_f32 v17, v17, v105")
    a("v_cvt_pk_bf16_f32 v16, v16, v17")
    a("v_mov_b32 v107, s63\nv_fmac_f32 v106, s58, v107")
    a("v_min_u32 v16, -2, v16\nv_min_u32 v106, -2, v106")
    a(f"buffer_store_dword v16, v9, {sWS}, s51 offen sc1")
    a("s_mov_b64 exec, 1")
    a(f"buffer_store_dword v106, off, {sWS}, s52 sc1")
    a("s_mov_b64 exec, -1")
    a("L_w_stage:")
    stamp(9)
    a("v_and_b32 v9, 7, v10\nv_lshrrev_b32 v12, 3, v10\nv_lshl_add_u32 v12, v9, 2, v12\nv_lshlrev_b32 v12, 10, v12\nv_lshl_add_u32 v12, v11, 4, v12")
    a("v_lshlrev_b32 v13, 4, v9")
    a(f"s_lshl_b32 s51, s4, 15\ns_lshl_b32 s7, s3, 7\ns_add_u32 s51, s51, s7\ns_add_u32 s51, s51, {OB}")
    a(f"s_lshr_b32 s7, s3, 1\ns_lshl_b32 s52, s4, 2\ns_add_u32 s52, s52, s7\ns_lshl_b32 s52, s52, 7\ns_add_u32 s52, s52, {LSE}")
    a("v_cmp_le_u32 s[54:55], 8, v10")
    first = True
    a("L_w_poll:")
    spin()
    a(f"buffer_load_dwordx4 v[32:35], v13, {sWS}, s52 offen sc1")
    for jp in range(2):
        for ks in range(2):
            a(f"buffer_load_dwordx4 v[{16+8*jp+4*ks}:{19+8*jp+4*ks}], v12, {sWS}, s51 offen offset:{jp*2048+ks*64} sc1")
    a("s_waitcnt vmcnt(5)")
    trfrag(104, 14, L_WO); trfrag(108, 14, L_WO + 1024)
    a("s_waitcnt vmcnt(0) lgkmcnt(0)")
    mfma(96, 104, 16); mfma(100, 104, 24); mfma(96, 108, 20, 96); mfma(100, 108, 28, 100)
    check_sent(range(16, 36), 36)
    a("s_cbranch_vccnz L_w_poll")
    stamp(10)
    a("v_max3_f32 v36, v32, v33, v34\nv_max_f32 v36, v36, v35")
    for j in range(4): a(f"v_sub_f32 v{32+j}, v{32+j}, v36")
    for j in range(4): a(f"v_exp_f32 v{32+j}, v{32+j}")
    a("v_add_f32 v36, v32, v33\nv_add_f32 v37, v34, v35\nv_add_f32 v36, v36, v37\nv_rcp_f32 v36, v36")
    a("v_cndmask_b32 v32, v32, v33, s[54:55]\nv_cndmask_b32 v34, v34, v35, s[54:55]")
    a("v_mul_f32 v32, v32, v36\nv_mul_f32 v34, v34, v36")
    for r in range(4): a(f"v_mul_f32 v{96+r}, v{96+r}, v32")
    for r in range(4): a(f"v_fmac_f32 v{96+r}, v{100+r}, v34")
    for r in range(4): a(f"v_add_f32_dpp v{96+r}, v{96+r}, v{96+r} row_ror:8 row_mask:0xf bank_mask:0xf")
    a("ds_write_b128 v15, v[96:99]")
    a("s_waitcnt lgkmcnt(0)\ns_barrier")
    stamp(11)
    a("s_cmp_ge_u32 s5, 28\ns_cbranch_scc1 L_d_stage")
    trfrag(80, 14, L_WG); trfrag(84, 14, L_WG + 1024); trfrag(88, 14, L_WU); trfrag(92, 14, L_WU + 1024)
    a(f"v_and_b32 v13, 3, v10\nv_mul_u32_u24 v13, 1040, v13\nv_lshl_add_u32 v13, v11, 4, v13")
    a(f"s_lshl_b32 s7, s3, 7\ns_add_u32 s7, s7, {L_XN}\nv_add_u32 v13, s7, v13")
    a(f"v_add_u32 v9, s53, v7\nv_add_u32 v9, {L_OP}, v9")
    a("s_cmp_ge_u32 s3, 4\ns_cbranch_scc1 L_g_mm")
    a(f"s_mul_i32 s7, s3, 1040\ns_add_u32 s7, s7, {L_XN}\nv_add_u32 v12, s7, v8")
    for i in range(4): unpack(120+2*i, 121+2*i, 112+i)
    a(f"s_lshl_b32 s52, s62, 11\ns_add_u32 s52, s52, {WP}")
    a("L_g_poll:")
    spin()
    a("s_mov_b32 s51, s52")
    for r in range(8):
        for i in range(2):
            a(f"buffer_load_dwordx4 v[{16+8*r+4*i}:{19+8*r+4*i}], v7, {sWS}, s51 offen offset:{i*1024} sc1")
        if r < 7: a("s_add_u32 s51, s51, 16384")
    a("s_waitcnt vmcnt(12)")
    for q in range(4): a(f"v_pk_add_f32 v[{96+2*q}:{97+2*q}], v[{16+2*q}:{17+2*q}], v[{24+2*q}:{25+2*q}]")
    for r in range(2, 8):
        a(f"s_waitcnt vmcnt({14-2*r})")
        for q in range(4): a(f"v_pk_add_f32 v[{96+2*q}:{97+2*q}], v[{96+2*q}:{97+2*q}], v[{16+8*r+2*q}:{17+8*r+2*q}]")
    for i in range(4): a(f"v_cvt_pk_bf16_f32 v{104+i}, v{96+2*i}, v{97+2*i}")
    for i in range(4): unpack(96+2*i, 97+2*i, 104+i)
    for q in range(4): a(f"v_pk_add_f32 v[{96+2*q}:{97+2*q}], v[{96+2*q}:{97+2*q}], v[{120+2*q}:{121+2*q}]")
    for i in range(4): a(f"v_cvt_pk_bf16_f32 v{104+i}, v{96+2*i}, v{97+2*i}")
    for i in range(4): unpack(96+2*i, 97+2*i, 104+i)
    ln_part1(96, 104)
    a("v_cmp_u_f32 vcc, v112, v112")
    a("s_cbranch_vccnz L_g_slow")
    a("L_g_cont:")
    stamp(12)
    ln_part2(96, 104, 116)
    a("ds_write_b64 v12, v[116:117]\nds_write_b64 v12, v[118:119] offset:512")
    a("L_g_mm:")
    a("s_waitcnt lgkmcnt(0)\ns_barrier")
    stamp(13)
    a("ds_read_b128 v[104:107], v13\nds_read_b128 v[108:111], v13 offset:64")
    a("s_waitcnt lgkmcnt(0)")
    mfma(96, 80, 104); mfma(100, 88, 104); mfma(96, 84, 108, 96); mfma(100, 92, 108, 100)
    a("ds_write_b128 v9, v[96:99]\nds_write_b128 v9, v[100:103] offset:1024")
    a("s_waitcnt lgkmcnt(0)\ns_barrier")
    stamp(14)
    a("s_branch L_kv_end")
    a("L_g_slow:")
    check_sent(range(16, 80), 116)
    a("s_cbranch_vccnz L_g_poll\ns_branch L_g_cont")
    a("L_d_stage:")
    a(f"s_mul_i32 s7, s3, 7168\nv_add_u32 v14, s7, v8")
    for ks in range(7): trfrag(48+4*ks, 14, L_WD + ks*1024)
    a("v_and_b32 v9, 7, v10\nv_mul_u32_u24 v12, 3584, v9\nv_lshl_add_u32 v12, v11, 4, v12")
    a(f"s_mul_i32 s51, s3, 448\ns_add_u32 s51, s51, {HH}")
    a("L_d_poll:")
    spin()
    for ks in range(7): a(f"buffer_load_dwordx4 v[{16+4*ks}:{19+4*ks}], v12, {sWS}, s51 offen offset:{ks*64} sc1")
    a("s_waitcnt vmcnt(0) lgkmcnt(0)")
    for ks in range(7): mfma(96, 48+4*ks, 16+4*ks, None if ks == 0 else 96)
    check_sent(range(16, 44), 44)
    a("s_cbranch_vccnz L_d_poll")
    stamp(12)
    a("ds_write_b128 v15, v[96:99]")
    a("s_waitcnt lgkmcnt(0)\ns_barrier")
    stamp(13)
    a("L_kv_end:")
    if debug:
        a("s_cmp_lg_u32 s3, 0\ns_cbranch_scc1 L_end")
        a(f"s_lshl_b32 s7, s2, 8\ns_add_u32 s7, s7, {hex(STAMP)}")
        a("L_stamps:")
        a("s_waitcnt lgkmcnt(0)\nv_mov_b32 v0, 0")
        for i in range(16):
            a(f"v_mov_b32 v2, s{64+2*i}\nv_mov_b32 v3, s{65+2*i}")
            a(f"buffer_store_dwordx2 v[2:3], v0, {sWS}, s7 offen offset:{8*i}")
            a("s_nop 1")
    a("s_endpgm")

    a("L_comm:")
    a("s_waitcnt lgkmcnt(0)")
    a("s_load_dword s48, s[40:41], 0")
    for i in range(4): a(f"v_mov_b32 v{16+i}, -1")
    a(f"s_lshl_b32 s51, s6, 10\ns_add_u32 s51, s51, {OB}")
    a(f"buffer_store_dwordx4 v[16:19], v7, {sWS}, s51 offen sc1")
    a("v_lshlrev_b32 v12, 4, v11\nv_lshl_add_u32 v12, v10, 11, v12")
    a(f"s_lshl_b32 s53, s4, 14\ns_lshl_b32 s7, s5, 6\ns_add_u32 s53, s53, s7\ns_add_u32 s53, s53, {WP}")
    a("s_mov_b32 s54, 0x00ff00ff\ns_mov_b32 s55, 0x00ff00ff\ns_mov_b64 exec, s[54:55]")
    a(f"buffer_store_dwordx4 v[16:19], v12, {sWS}, s53 offen sc1")
    a("s_mov_b64 exec, 15")
    a(f"v_lshlrev_b32 v13, 7, v1\ns_lshl_b32 s52, s4, 9\ns_lshl_b32 s7, s5, 2\ns_add_u32 s52, s52, s7\ns_add_u32 s52, s52, {LSE}")
    a(f"buffer_store_dword v16, v13, {sWS}, s52 offen sc1")
    a("s_mov_b64 exec, -1")
    a(f"s_mul_i32 s61, s4, 14\ns_lshr_b32 s7, s5, 1\ns_add_u32 s61, s61, s7")
    a("v_and_b32 v9, 3, v10\nv_mul_u32_u24 v14, 3584, v9\nv_lshl_add_u32 v14, v11, 3, v14\nv_lshrrev_b32 v15, 2, v10\nv_lshl_add_u32 v14, v15, 1, v14")
    a(f"s_and_b32 s7, s5, 1\ns_mul_i32 s62, s7, {4*3584}\ns_lshl_b32 s7, s61, 5\ns_add_u32 s62, s62, s7\ns_add_u32 s62, s62, {HH}")
    a("s_mov_b32 s58, 0x0f0f0f0f\ns_mov_b32 s59, 0x0f0f0f0f")
    a("s_cmp_ge_u32 s5, 28\ns_cbranch_scc1 L_c_noclr")
    a("s_mov_b64 exec, s[58:59]")
    a(f"buffer_store_dword v16, v14, {sWS}, s62 offen sc1")
    a("s_mov_b64 exec, -1")
    a("L_c_noclr:")
    if opt.get("prefetch", True):
        a("s_getpc_b64 s[50:51]")
        a("L_pc:")
        a(f"s_sub_u32 s50, s50, L_pc-{NAME}_kernel\ns_subb_u32 s51, s51, 0")
        a(f"s_min_u32 s7, s5, (L_end-{NAME}_kernel)/1024\ns_lshl_b32 s7, s7, 10\nv_add_u32 v9, s7, v7\nv_min_u32 v9, L_end-{NAME}_kernel-16, v9\nv_and_b32 v9, -16, v9")
        a("global_load_dwordx4 v[20:23], v9, s[50:51]")
    a(f"v_lshrrev_b32 v9, 3, v10\nv_lshl_add_u32 v15, v9, 12, v7\nv_add_u32 v15, {L_QP}, v15")
    a("v_lshlrev_b32 v13, 4, v11\nv_lshl_add_u32 v13, v10, 14, v13")
    a(f"s_lshl_b32 s51, s6, 6\ns_add_u32 s51, s51, {QB}")
    a(f"s_lshl_b32 s52, s2, 2\ns_add_u32 s52, s52, {RDY}")
    a("s_waitcnt lgkmcnt(0)\ns_add_u32 s48, s48, 1\ns_not_b32 s49, s48")
    a("s_barrier")
    a("s_barrier")
    stamp(1)
    def red4(addr):
        for w in range(4): a(f"ds_read_b128 v[{24+4*w}:{27+4*w}], v{addr} offset:{w*1024}")
        a("s_waitcnt lgkmcnt(0)")
        a("v_pk_add_f32 v[24:25], v[24:25], v[28:29]\nv_pk_add_f32 v[26:27], v[26:27], v[30:31]\nv_pk_add_f32 v[32:33], v[32:33], v[36:37]\nv_pk_add_f32 v[34:35], v[34:35], v[38:39]")
        a("v_pk_add_f32 v[24:25], v[24:25], v[32:33]\nv_pk_add_f32 v[26:27], v[26:27], v[34:35]")
        for r in range(4): a(f"v_add_f32_dpp v{24+r}, v{24+r}, v{24+r} row_ror:8 row_mask:0xf bank_mask:0xf")
    red4(15)
    a("v_cvt_pk_bf16_f32 v28, v24, v25\nv_cvt_pk_bf16_f32 v29, v26, v27\nv_mov_b32 v30, s48\nv_mov_b32 v31, s49")
    a("s_waitcnt vmcnt(0)")
    a("s_mov_b64 exec, s[54:55]")
    a(f"buffer_store_dwordx4 v[28:31], v13, {sWS}, s51 offen sc1")
    a("s_mov_b64 exec, 1")
    a(f"buffer_store_dword v30, off, {sWS}, s52 sc1")
    a("s_mov_b64 exec, -1")
    stamp(2)
    a(f"s_lshr_b32 s7, s5, 2\ns_lshl_b32 s51, s7, 14\ns_lshl_b32 s7, s4, 11\ns_add_u32 s51, s51, s7\ns_add_u32 s51, s51, {QB}\ns_mov_b32 s52, {RDY}")
    a(f"v_lshrrev_b32 v9, 5, v1\nv_mul_u32_u24 v9, 272, v9\nv_and_b32 v13, 31, v1\nv_lshl_add_u32 v13, v13, 3, v9\nv_add_u32 v13, {L_QL}, v13")
    a("L_q_poll:")
    spin()
    a(f"buffer_load_dwordx4 v[32:35], v7, {sWS}, s51 offen sc1\nbuffer_load_dwordx4 v[36:39], v7, {sWS}, s51 offen offset:1024 sc1")
    a(f"buffer_load_dwordx4 v[40:43], v7, {sWS}, s52 offen sc1")
    a("s_waitcnt vmcnt(0)")
    a("v_xor_b32 v44, s48, v34\nv_xor_b32 v45, s49, v35\nv_xor_b32 v46, s48, v38\nv_xor_b32 v47, s49, v39\nv_or3_b32 v44, v44, v45, v46")
    a("v_xor_b32 v45, s48, v40\nv_xor_b32 v46, s48, v41\nv_or3_b32 v44, v44, v47, v45\nv_xor_b32 v45, s48, v42\nv_xor_b32 v47, s48, v43\nv_or3_b32 v44, v44, v45, v46\nv_or_b32 v44, v44, v47")
    a("v_cmp_ne_u32 vcc, 0, v44\ns_cbranch_vccnz L_q_poll")
    stamp(3)
    a("ds_write_b64 v13, v[32:33]\nds_write_b64 v13, v[36:37] offset:544")
    a("s_waitcnt lgkmcnt(0)\ns_barrier")
    a("s_barrier")
    a("s_barrier")
    a("s_barrier")
    stamp(4)
    red4(15)
    for r in range(4): a(f"v_min_u32 v{24+r}, -2, v{24+r}")
    a("s_mov_b64 exec, s[54:55]")
    a(f"buffer_store_dwordx4 v[24:27], v12, {sWS}, s53 offen sc1")
    a("s_mov_b64 exec, -1")
    stamp(5)
    a("s_cmp_ge_u32 s5, 28\ns_cbranch_scc1 L_c_d")
    a(f"v_and_b32 v9, 3, v10\nv_and_b32 v13, 1, v11\nv_lshl_add_u32 v9, v13, 2, v9\nv_lshl_add_u32 v9, v11, 4, v9\nv_lshlrev_b32 v9, 4, v9\nv_and_b32 v13, 12, v10\nv_add3_u32 v9, v9, v13, 0\nv_add_u32 v9, {L_OP}, v9")
    a(f"s_mov_b32 s57, {hex(LOG2E ^ 0x80000000)}")
    a("s_barrier")
    a("s_barrier")
    stamp(6)
    for w in range(8): a(f"ds_read2st64_b32 v[{24+2*w}:{25+2*w}], v9 offset0:{8*w} offset1:{8*w+4}")
    a("s_waitcnt lgkmcnt(0)")
    a("v_pk_add_f32 v[24:25], v[24:25], v[26:27]\nv_pk_add_f32 v[28:29], v[28:29], v[30:31]\nv_pk_add_f32 v[32:33], v[32:33], v[34:35]\nv_pk_add_f32 v[36:37], v[36:37], v[38:39]")
    a("v_pk_add_f32 v[24:25], v[24:25], v[28:29]\nv_pk_add_f32 v[32:33], v[32:33], v[36:37]\nv_pk_add_f32 v[24:25], v[24:25], v[32:33]")
    a("v_cvt_pk_bf16_f32 v24, v24, v25")
    unpack(26, 25, 24)
    a("v_mul_f32 v26, s57, v26\nv_exp_f32 v26, v26\nv_add_f32 v26, 1.0, v26\nv_rcp_f32 v26, v26")
    a("v_cvt_pk_bf16_f32 v26, v26, v26\nv_and_b32 v26, s56, v26\nv_mul_f32 v26, v26, v25")
    a("v_mov_b32_dpp v27, v26 row_shl:4 row_mask:0xf bank_mask:0xf")
    a("v_cvt_pk_bf16_f32 v26, v26, v27\nv_min_u32 v26, -2, v26")
    a("s_mov_b64 exec, s[58:59]")
    a(f"buffer_store_dword v26, v14, {sWS}, s62 offen sc1")
    stamp(7)
    a("s_branch L_c_end")
    a("L_c_d:")
    a(f"s_lshl_b32 s61, s4, 2\ns_add_u32 s61, s61, s5\ns_sub_u32 s61, s61, 28")
    a("v_and_b32 v9, 7, v10\nv_lshrrev_b32 v13, 3, v10\nv_lshl_add_u32 v13, v11, 1, v13")
    a("v_lshlrev_b32 v14, 2, v13\nv_lshl_add_u32 v14, v9, 10, v14")
    a("v_lshlrev_b32 v12, 1, v14")
    a("s_lshl_b32 s62, s61, 5")
    a(f"buffer_load_dword v20, v14, {sX}, s62 offen")
    a(f"s_lshl_b32 s52, s61, 6\ns_add_u32 s52, s52, {WP}")
    a(f"v_and_b32 v9, 8, v10\nv_add3_u32 v9, v9, v7, 0\nv_add_u32 v9, {L_QP}, v9")
    a("L_h_poll:")
    spin()
    a("s_mov_b32 s51, s52")
    for r in range(8):
        a(f"buffer_load_dwordx2 v[{24+2*r}:{25+2*r}], v12, {sWS}, s51 offen sc1")
        if r < 7: a("s_add_u32 s51, s51, 16384")
    a("s_waitcnt vmcnt(0)")
    check_sent(range(24, 40), 40)
    a("s_cbranch_vccz L_h_ok\ns_sleep 2\ns_branch L_h_poll")
    a("L_h_ok:")
    for r in range(1, 8): a(f"v_pk_add_f32 v[24:25], v[24:25], v[{24+2*r}:{25+2*r}]")
    a("v_cvt_pk_bf16_f32 v24, v24, v25")
    unpack(22, 23, 24); unpack(24, 25, 20)
    a("v_pk_add_f32 v[22:23], v[22:23], v[24:25]\nv_cvt_pk_bf16_f32 v22, v22, v23")
    unpack(20, 21, 22)
    stamp(6)
    a("s_barrier")
    for w in range(8): a(f"ds_read_b64 v[{24+2*w}:{25+2*w}], v9 offset:{w*1024}")
    a("s_waitcnt lgkmcnt(0)")
    a("v_pk_add_f32 v[24:25], v[24:25], v[26:27]\nv_pk_add_f32 v[28:29], v[28:29], v[30:31]\nv_pk_add_f32 v[32:33], v[32:33], v[34:35]\nv_pk_add_f32 v[36:37], v[36:37], v[38:39]")
    a("v_pk_add_f32 v[24:25], v[24:25], v[28:29]\nv_pk_add_f32 v[32:33], v[32:33], v[36:37]\nv_pk_add_f32 v[24:25], v[24:25], v[32:33]")
    a("v_cvt_pk_bf16_f32 v24, v24, v25")
    unpack(22, 23, 24)
    a("v_pk_add_f32 v[22:23], v[22:23], v[20:21]\nv_cvt_pk_bf16_f32 v22, v22, v23")
    a(f"buffer_store_dword v22, v14, {sOUT}, s62 offen")
    stamp(7)
    a("s_cmp_lg_u32 s61, 0\ns_cbranch_scc1 L_c_end")
    a("v_mov_b32 v22, s48\ns_mov_b64 exec, 1")
    a(f"buffer_store_dword v22, off, {sWS}, 0")
    a("L_c_end:")
    if debug:
        a("s_mov_b64 exec, -1")
        a(f"s_lshl_b32 s7, s2, 8\ns_add_u32 s7, s7, {hex(STAMP+128)}\ns_branch L_stamps")
    a("L_end:\ns_endpgm")
    lines = hz.fix(a.l)
    hdr = open("header.txt").read()
    return wrap("\n".join(lines) + "\n", 256, 576, L_END, 128, sgpr=102, header=hdr)

if __name__ == "__main__":
    open("k1.s", "w").write(gen(False))
    open("k1d.s", "w").write(gen(True))
    print("LDS", L_END)
```

```python
import re
TRANS = ("v_exp_f32","v_log_f32","v_rcp_f32","v_rsq_f32","v_sqrt_f32","v_sin_f32","v_cos_f32")
def regs(tok):
    tok = tok.strip()
    tok = re.sub(r"^-|^abs\(|\)$|^\|", "", tok).strip("|")
    m = re.fullmatch(r"([vsa])(\d+)", tok)
    if m: return [(m.group(1), int(m.group(2)))]
    m = re.fullmatch(r"([vsa])\[(\d+):(\d+)\]", tok)
    if m: return [(m.group(1), i) for i in range(int(m.group(2)), int(m.group(3)) + 1)]
    if tok == "vcc": return [("s", "vcc")]
    if tok in ("vcc_lo","vcc_hi"): return [("s","vcc")]
    if tok == "exec": return [("s", "exec")]
    if tok == "m0": return [("s", "m0")]
    return []
def split_ops(s):
    out, d, cur = [], 0, ""
    for ch in s:
        if ch in "[(": d += 1
        if ch in "])": d -= 1
        if ch == "," and d == 0: out.append(cur.strip()); cur = ""
        else: cur += ch
    if cur.strip(): out.append(cur.strip())
    return out
class I: pass
def parse(line):
    s = line.split(";")[0].strip()
    if not s or s.endswith(":") or s.startswith("."): return None
    p = s.split(None, 1)
    mn = p[0]; rest = p[1] if len(p) > 1 else ""
    ops = split_ops(rest)
    mods = ""
    if ops:
        q = ops[-1].split(None, 1)
        if len(q) > 1 and not ops[-1].startswith("hwreg") : ops[-1] = q[0]; mods = q[1]
    i = I(); i.mn = mn; i.ops = ops; i.mods = mods; i.dst = []; i.src = []; i.kind = "other"
    i.dpp = ("quad_perm" in rest or "row_" in rest.replace("row_mask","")) and mn.startswith("v_")
    i.sdwa = "_sdwa" in mn
    R = [regs(o) for o in ops]
    flat = lambda L: [x for l in L for x in l]
    if mn.startswith("v_mfma"):
        i.kind = "mfma"; i.dst = R[0]; i.a = R[1] + R[2]; i.cc = R[3]; i.src = i.a + i.cc
        i.passes = 8 if "32x32" in mn else 4
    elif mn.startswith("v_"):
        i.kind = "valu"; i.trans = any(mn.startswith(t) for t in TRANS)
        if mn.startswith("v_cmp"):
            i.dst = R[0]; i.src = flat(R[1:])
            if mn.startswith("v_cmpx"): i.dst = i.dst + [("s","exec")]
        elif mn.startswith("v_permlane"):
            i.dst = R[0] + R[1]; i.src = R[0] + R[1]
        elif mn.startswith(("v_add_co","v_sub_co","v_addc_co","v_subb_co")):
            i.dst = R[0] + R[1]; i.src = flat(R[2:])
        else:
            i.dst = R[0]; i.src = flat(R[1:])
            if mn.startswith(("v_fmac","v_pk_fmac","v_dot2c","v_writelane")) or i.dpp: i.src = i.src + R[0]
            if mn.startswith("v_cndmask") and len(ops) == 3: i.src = i.src + [("s","vcc")]
    elif mn.startswith(("buffer_","global_")):
        i.kind = "vmem"; lds = " lds" in (" " + rest + " ").replace(",", " ") or "_lds_" in mn
        i.lds = lds; i.store = "store" in mn or "atomic" in mn
        if lds: i.src = flat(R) + [("s","m0")]
        elif "store" in mn:
            i.src = flat(R); i.data = R[0] if mn.startswith("buffer") else R[1]
            i.wide = "x3" in mn or "x4" in mn
        elif "atomic" in mn: i.src = flat(R); i.dst = R[0]
        else: i.dst = R[0]; i.src = flat(R[1:])
    elif mn.startswith("ds_"):
        i.kind = "ds"
        if mn.startswith(("ds_read","ds_bpermute","ds_permute","ds_swizzle")): i.dst = R[0]; i.src = flat(R[1:])
        else: i.src = flat(R)
    elif mn.startswith("s_"):
        i.kind = "salu"
        if mn == "s_nop": i.kind = "nop"; i.n = int(ops[0], 0) + 1
        elif mn.startswith(("s_cmp","s_waitcnt","s_barrier","s_cbranch","s_branch","s_endpgm","s_sleep","s_setprio","s_bitcmp")): i.src = flat(R)
        else:
            i.dst = R[0]; i.src = flat(R[1:])
            if "saveexec" in mn: i.dst = i.dst + [("s","exec")]
    return i
def need(p, c):
    n = 0
    pd = set(p.dst); cs = set(c.src); cd = set(c.dst)
    pv = {x for x in pd if x[0] in "va"}; ps = {x for x in pd if x[0] == "s"}
    if p.kind == "valu":
        if c.kind == "mfma" and pv & cs: n = max(n, 2)
        if c.kind == "mfma" and ("s","exec") in ps: n = max(n, 4)
        if c.kind == "valu":
            if c.dpp and pv & cs: n = max(n, 2)
            if c.dpp and ("s","exec") in ps: n = max(n, 5)
            if c.mn.startswith("v_permlane") and pv & cs: n = max(n, 2)
            if c.mn.startswith(("v_readlane","v_readfirstlane")) and pv & cs: n = max(n, 1)
            if ps & cs:
                n = max(n, 2)
                if c.mn.startswith(("v_readlane","v_writelane")): n = max(n, 4)
            if c.mn.startswith(("v_readlane","v_readfirstlane","v_writelane","v_permlane")) and ("s","exec") in ps: n = max(n, 4)
            if p.trans and not c.trans and pv & cs: n = max(n, 1)
            if p.sdwa and pv & (cs | cd): n = max(n, 1)
        if c.kind == "vmem" and ps & cs: n = max(n, 5)
        if p.trans and c.kind in ("vmem","ds","mfma") and pv & cs: n = max(n, 2 if c.kind == "mfma" else 1)
    if p.kind == "valu" and p.mn.startswith("v_dot"):
        if c.kind in ("valu","vmem","ds","mfma"):
            same = c.mn.replace("_e32","") == p.mn.replace("_e32","")
            if same:
                ab = set()
                for o in c.ops[1:3]: ab |= set(regs(o))
                if pv & ab: n = max(n, 3)
            elif pv & (cs | cd): n = max(n, 3)
    if p.kind == "mfma":
        big = p.passes == 8
        if c.kind == "mfma":
            if set(c.cc) & pd:
                if c.cc == p.dst and c.passes == p.passes: pass
                else: n = max(n, 10 if big else 6)
            if set(c.a) & pd: n = max(n, 12 if big else 8)
            if cd & pd and not (c.cc == p.dst): n = max(n, 12 if big else 8)
        elif c.kind in ("valu","vmem","ds"):
            if pd & (cs | cd): n = max(n, 12 if big else 8)
            if c.kind == "valu" and set(p.cc) & cd: n = max(n, 7 if big else 3)
    if p.kind == "salu":
        if ("s","m0") in pd and c.kind == "vmem" and getattr(c, "lds", False): n = max(n, 1)
    if p.kind == "vmem" and getattr(p, "wide", False):
        if set(p.data) & cd: n = max(n, 2 if c.kind in ("valu","mfma") else 1)
    return n
def fix(lines, verbose=False):
    out = []; hist = []
    added = 0
    for ln in lines:
        c = parse(ln)
        if c is None: out.append(ln); continue
        req = 0
        dist = 0
        for p in reversed(hist):
            if p.kind != "nop":
                r = need(p, c) - dist
                if r > req: req = r
            dist += p.n if p.kind == "nop" else 1
            if dist > 16: break
        if req > 0 and c.kind != "nop":
            out.append(f"    s_nop {req-1}")
            h = I(); h.kind = "nop"; h.n = req; hist.append(h); added += 1
        out.append(ln); hist.append(c)
        if len(hist) > 40: hist = hist[-24:]
    return out
```

```python
import sys
from asmlib import *
import hz

QB=0x10000
GB=0x40000; GSH=17
O_OB=0; O_XN=0x8000; O_H=0xA000; O_LSE=0xA400; O_FLG=0xA800; BX=0x10000
WP=0x140000; HH=0x160000
STAMP=128<<20
L_W=0
L_QL=114688
L_MX=L_QL+1088
L_LS=L_MX+128
L_OP=L_LS+128
L_RD=L_OP+16384
L_END=L_RD+12288
sX,sK,sV,sWQ,sWO,sG,sU,sOUT,sWS,sD = [f"s[{i}:{i+3}]" for i in range(8,48,4)]
LOG2E=0x3fb8aa3b; SCALE=0x3db504f3; EPS=0x3727c5ac

def gen(debug=False, **opt):
    NT = opt.get("nt", "nt")
    ASYM = opt.get("asym", 1)
    M1 = opt.get("m1", 4); M2 = opt.get("m2", 6)
    WEARLY = opt.get("wearly", 1)
    GEARLY = opt.get("gearly", 0)
    PREOWN = opt.get("preown", 1)
    DHINT = opt.get("dhint", 0)
    a = Asm()
    def stamp(i):
        if debug: a(f"s_memrealtime s[{64+2*i}:{65+2*i}]")
    def spin(): a("s_sub_u32 s96, s96, 1\ns_cbranch_scc1 L_end")
    def spin_ab(dst, sa, sb):
        spin(); a(f"s_and_b32 s7, s96, 15")
        for d, x, y in zip(dst, sa, sb): a(f"s_cselect_b32 {d}, {x}, {y}")
    def unpack(dlo, dhi, src): a(f"v_lshlrev_b32 v{dlo}, 16, v{src}\nv_and_b32 v{dhi}, s56, v{src}")
    def pk(op, d, x, y, mods=""): a(f"v_pk_{op}_f32 v[{d}:{d+1}], v[{x}:{x+1}], v[{y}:{y+1}] {mods}")
    def dma(voff, srd, soff, lds):
        a(f"s_mov_b32 m0, {lds}\nbuffer_load_dwordx4 v{voff}, {srd}, {soff} offen {NT} lds")
    def dma2(voff, srd, soff, lds, stride):
        dma(voff, srd, soff, lds)
        a(f"s_add_u32 m0, {lds}, 1024\ns_add_u32 s7, {soff}, {4*stride}")
        a(f"buffer_load_dwordx4 v{voff}, {srd}, s7 offen {NT} lds")
    def trfrag(dst, vaddr, off):
        a(f"ds_read_b64_tr_b16 v[{dst}:{dst+1}], v{vaddr} offset:{off}")
        a(f"ds_read_b64_tr_b16 v[{dst+2}:{dst+3}], v{vaddr} offset:{off+1024}")
    def mfma(d, A, B, C=None):
        c = "0" if C is None else f"v[{C}:{C+3}]"
        a(f"v_mfma_f32_16x16x32_bf16 v[{d}:{d+3}], v[{A}:{A+3}], v[{B}:{B+3}], {c}")
    def check_sent(regs, t):
        r = list(regs)
        a(f"v_max3_u32 v{t}, v{r[0]}, v{r[1]}, v{r[2]}"); r = r[3:]
        while len(r) >= 2:
            a(f"v_max3_u32 v{t}, v{t}, v{r[0]}, v{r[1]}"); r = r[2:]
        if r: a(f"v_max_u32 v{t}, v{t}, v{r[0]}")
        a(f"v_cmp_eq_u32 vcc, -1, v{t}")
    def stats(s1, s2, t):
        a(f"v_mul_f32 v{t+1}, 0x3b000000, {s1}\nv_mul_f32 v{t+2}, 0x3b000000, {s2}")
        a(f"v_fma_f32 v{t+2}, -v{t+1}, v{t+1}, v{t+2}\nv_max_f32 v{t+2}, 0, v{t+2}")
        a(f"v_cvt_pk_bf16_f32 v{t+1}, v{t+1}, v{t+2}")
        a(f"v_and_b32 v{t+2}, s56, v{t+1}\nv_lshlrev_b32 v{t+1}, 16, v{t+1}")
        a(f"v_add_f32 v{t+2}, {hex(EPS)}, v{t+2}\nv_cvt_pk_bf16_f32 v{t+2}, v{t+2}, v{t+2}\nv_and_b32 v{t+2}, s56, v{t+2}")
        a(f"v_sqrt_f32 v{t+2}, v{t+2}")
    def stats2(t): a(f"v_cvt_pk_bf16_f32 v{t+2}, v{t+2}, v{t+2}\nv_and_b32 v{t+2}, s56, v{t+2}\nv_rcp_f32 v{t+2}, v{t+2}")
    def is_prod_else(lbl):
        if ASYM: a(f"s_cmp_ge_u32 s4, 4\ns_cbranch_scc1 {lbl}")
        else: a(f"s_cmp_lt_u32 s5, 16\ns_cbranch_scc1 {lbl}")
    def red8(addr, n=8):
        for w in range(n): a(f"ds_read_b64 v[{24+2*w}:{25+2*w}], v{addr} offset:{w*1536}")
        a("s_waitcnt lgkmcnt(0)")
        pk("add", 24, 24, 26); pk("add", 28, 28, 30); pk("add", 32, 32, 34)
        if n == 8: pk("add", 36, 36, 38)
        pk("add", 24, 24, 28); pk("add", 32, 32, 36); pk("add", 24, 24, 32)

    a("s_cmp_ge_u32 s2, 256\ns_cbranch_scc1 L_end")
    stamp(0)
    for d, o in [(8,0),(40,88),(20,24),(12,8),(16,16),(24,32),(28,48),(32,56),(44,64),(36,72)]:
        a(f"s_load_dwordx2 s[{d}:{d+1}], s[0:1], {o}")
    a("v_lshrrev_b32 v9, 6, v0\nv_and_b32 v1, 63, v0")
    a("v_readfirstlane_b32 s3, v9")
    a("s_and_b32 s4, s2, 7\ns_lshr_b32 s5, s2, 3")
    a(f"s_lshl_b32 s6, s4, {GSH}\ns_add_u32 s6, s6, {GB}")
    for d, n in [(8, 8192), (40, 256<<20), (20, 4<<20), (12, 64<<20), (16, 64<<20), (24, 4<<20), (28, 512*3584), (32, 512*3584), (36, 8192), (44, 1792*1024)]:
        a(f"s_mov_b32 s{d+2}, {hex(n)}\ns_mov_b32 s{d+3}, 0x20000")
    a("s_mov_b32 s56, 0xffff0000\ns_mov_b32 s96, 300000")
    if ASYM: a("s_lshl_b32 s97, s4, 5\ns_add_u32 s97, s97, s5")
    else: a("s_lshl_b32 s97, s4, 4\ns_add_u32 s97, s97, s5\ns_sub_u32 s97, s97, 16")
    a("v_lshlrev_b32 v7, 4, v1\nv_lshlrev_b32 v8, 3, v1")
    a("v_and_b32 v10, 15, v1\nv_lshrrev_b32 v11, 4, v1")
    a("v_lshrrev_b32 v9, 2, v1\nv_and_b32 v12, 3, v1\nv_and_b32 v13, 1, v11")
    a("v_lshlrev_b32 v14, 6, v9\nv_lshl_add_u32 v14, v12, 3, v14\nv_lshl_add_u32 v14, v13, 5, v14")
    a("s_cmp_lt_u32 s3, 2\ns_cbranch_scc1 L_aux")
    a("s_sub_u32 s3, s3, 2")
    a("v_and_b32 v9, 3, v9\nv_lshl_add_u32 v9, v11, 3, v9")
    a("v_lshlrev_b32 v13, 1, v13\nv_xor_b32 v12, v12, v13\nv_lshlrev_b32 v12, 4, v12")
    a("v_lshl_add_u32 v4, v9, 13, v12")
    a("v_lshl_add_u32 v5, v9, 10, v12")
    a("v_mul_u32_u24 v6, 3584, v9\nv_add_u32 v6, v6, v12")
    a("v_lshlrev_b32 v2, 4, v11\nv_lshl_add_u32 v2, v10, 8, v2")
    a("v_lshlrev_b32 v3, 4, v10\nv_lshl_add_u32 v3, v11, 10, v3")
    a("s_lshr_b32 s7, s5, 2\ns_lshl_b32 s48, s7, 23\ns_lshl_b32 s7, s4, 20\ns_add_u32 s48, s48, s7")
    a("s_and_b32 s7, s5, 3\ns_lshl_b32 s7, s7, 16\ns_add_u32 s48, s48, s7\ns_lshl_b32 s7, s3, 13\ns_add_u32 s48, s48, s7\ns_add_u32 s48, s48, 786432")
    a("s_add_u32 s49, s48, 4096")
    a("s_and_b32 s50, s5, 1")
    a("s_lshl_b32 s53, s3, 1\ns_add_u32 s53, s53, s50")
    a("s_lshl_b32 s51, s53, 18\ns_lshl_b32 s7, s97, 6\ns_add_u32 s51, s51, s7\ns_xor_b32 s52, s51, 0x40000")
    a("s_lshl_b32 s54, s53, 11\ns_xor_b32 s55, s54, 2048")
    a(f"s_lshl_b32 s98, s5, 10\ns_lshl_b32 s7, s3, 8\ns_add_u32 s98, s98, s7\ns_add_u32 s98, s98, s6")
    a(f"s_lshl_b32 s99, s3, 5\ns_add_u32 s99, s99, s5\ns_lshl_b32 s99, s99, 2\ns_add_u32 s99, s99, s6\ns_add_u32 s99, s99, {O_LSE}")
    a("v_lshlrev_b32 v9, 2, v1\nv_mov_b32 v12, -1")
    a("s_waitcnt lgkmcnt(0)")
    a("s_load_dword s100, s[40:41], 0")
    def kload(i): a(f"buffer_load_dwordx4 v[{16+4*i}:{19+4*i}], v2, {sK}, s{48+i//4} offen offset:{(i%4)*64} {NT}")
    def vload(i): a(f"buffer_load_dwordx4 v[{48+4*i}:{51+4*i}], v3, {sV}, s{48+i//4} offen offset:{(i%4)*256} {NT}")
    is_prod_else("L_noq")
    dma2(4, sWQ, "s51", "s54", 8192); dma2(4, sWQ, "s52", "s55", 8192)
    a("s_barrier")
    a("L_noq:")
    if PREOWN:
        a("s_cmp_ge_u32 s3, 4\ns_cbranch_scc1 L_noown")
        a(f"buffer_store_dword v12, v9, {sWS}, s98 offen")
        a(f"buffer_store_dword v12, off, {sWS}, s99")
        a("s_cmp_ge_u32 s5, 8\ns_cbranch_scc1 L_noown")
        a(f"s_add_u32 s7, s98, {O_XN}")
        a(f"buffer_store_dword v12, v9, {sWS}, s7 offen")
        a("L_noown:")
    stamp(1)
    for i in range(8): kload(i)
    a("s_waitcnt vmcnt(8)\ns_barrier")
    stamp(2)
    for i in range(M1): vload(i)
    a("s_barrier")
    for i in range(M1, M2): vload(i)
    a("s_barrier")
    for i in range(M2, 8): vload(i)
    stamp(3)
    NT1 = 4 if GEARLY else 2
    def tail_first():
        a("s_cmp_ge_u32 s5, 16\ns_cbranch_scc1 L_t_gd")
        a("s_lshl_b32 s51, s4, 19\ns_lshl_b32 s7, s53, 15\ns_add_u32 s51, s51, s7\ns_lshl_b32 s7, s5, 6\ns_add_u32 s51, s51, s7\ns_xor_b32 s52, s51, 0x8000")
        dma2(5, sWO, "s51", "s54", 1024)
        a("s_branch L_t_done")
        a("L_t_gd:")
        a("s_sub_u32 s61, s5, 16")
        a("s_mul_i32 s7, s4, 7\ns_lshr_b32 s62, s61, 1\ns_add_u32 s62, s62, s7")
        a(f"s_mul_i32 s51, s53, {32*3584}\ns_lshl_b32 s7, s62, 6\ns_add_u32 s51, s51, s7")
        a(f"s_xor_b32 s7, s53, 1\ns_mul_i32 s52, s7, {32*3584}\ns_lshl_b32 s7, s62, 6\ns_add_u32 s52, s52, s7")
        a("s_lshl_b32 s54, s3, 13\ns_lshl_b32 s7, s50, 11\ns_add_u32 s54, s54, s7")
        a("s_bitcmp1_b32 s62, 0\ns_cbranch_scc0 L_t_nosw")
        a("s_mov_b64 s[60:61], s[28:29]\ns_mov_b64 s[28:29], s[32:33]\ns_mov_b64 s[32:33], s[60:61]\ns_xor_b32 s54, s54, 4096\ns_sub_u32 s61, s5, 16")
        a("L_t_nosw:")
        a("s_xor_b32 s55, s54, 2048")
        if GEARLY:
            a("s_cmp_ge_u32 s5, 30\ns_cbranch_scc1 L_t_pf")
            dma2(6, sG, "s51", "s54", 3584)
            a("s_branch L_t_done")
            a("L_t_pf:")
            a("s_and_b32 s7, s61, 1\ns_lshl_b32 s7, s7, 3\ns_add_u32 s7, s7, s3\ns_mul_i32 s51, s7, 114688\ns_lshl_b32 s7, s4, 7\ns_add_u32 s51, s51, s7")
            a("v_min_u32 v12, 55, v1\nv_lshlrev_b32 v12, 10, v12\nv_add_u32 v12, 56, v12\ns_add_u32 s7, s51, 57344")
            a(f"buffer_load_dwordx4 v[112:115], v12, {sD}, s51 offen {NT}\nbuffer_load_dwordx4 v[116:119], v12, {sD}, s7 offen {NT}")
        else:
            a("s_lshl_b32 s7, s61, 3\ns_add_u32 s7, s7, s3\ns_mul_i32 s63, s7, 14336\ns_lshl_b32 s7, s4, 7\ns_add_u32 s63, s63, s7")
            a("v_min_u32 v12, 13, v10\nv_lshlrev_b32 v12, 10, v12")
            a(f"buffer_load_dword v116, v12, {sD}, s63 offen {NT}\nbuffer_load_dword v117, v12, {sD}, s63 offen offset:64 {NT}")
        a("L_t_done:")
    if WEARLY: tail_first()
    for i in range(16): a(f"v_mov_b32 v{80+i}, 0")
    a(f"v_and_b32 v12, 3, v10\nv_mul_u32_u24 v13, 272, v12\nv_lshl_add_u32 v13, v11, 4, v13\nv_add_u32 v13, {L_QL}, v13")
    a(f"v_lshlrev_b32 v12, 5, v12\nv_add_u32 v12, {L_MX}, v12")
    a(f"s_lshl_b32 s7, s3, 2\nv_add_u32 v9, s7, v12")
    a(f"s_mov_b32 s57, {hex(SCALE)}\ns_mov_b32 s58, {hex(LOG2E)}\ns_mov_b32 s59, 0x05040100\ns_mov_b32 s60, 0x07060302")
    a(f"s_mul_i32 s7, s3, 1536\ns_add_u32 s7, s7, {L_RD}\nv_mul_u32_u24 v15, 384, v11\nv_lshl_add_u32 v15, v10, 4, v15\nv_add_u32 v15, s7, v15")
    stamp(4)
    a("s_barrier")
    stamp(5)
    for kk in range(4): a(f"ds_read_b128 v[{104+4*kk}:{107+4*kk}], v13 offset:{kk*64}") if kk < 2 else a(f"ds_read_b128 v[{112+4*kk}:{115+4*kk}], v13 offset:{kk*64}")
    qreg = [104, 108, 120, 124]
    a(f"s_waitcnt vmcnt({8 + (2 if WEARLY else 0)}) lgkmcnt(0)")
    for kk in range(4):
        mfma(96, 16+4*kk, qreg[kk], None if kk == 0 else 96)
        mfma(100, 32+4*kk, qreg[kk], None if kk == 0 else 100)
    for i in range(4): a(f"v_cvt_pk_bf16_f32 v{120+i}, v{96+2*i}, v{97+2*i}")
    for i in range(4): unpack(96+2*i, 97+2*i, 120+i)
    for i in range(8): a(f"v_mul_f32 v{96+i}, s57, v{96+i}")
    for i in range(4): a(f"v_cvt_pk_bf16_f32 v{120+i}, v{96+2*i}, v{97+2*i}")
    for i in range(4): unpack(96+2*i, 97+2*i, 120+i)
    a("v_max3_f32 v120, v96, v97, v98\nv_max3_f32 v121, v99, v100, v101\nv_max3_f32 v120, v120, v102, v103\nv_max_f32 v120, v120, v121")
    a("v_mov_b32 v121, v120\nv_permlane16_swap_b32 v120, v121\nv_max_f32 v120, v120, v121")
    a("v_mov_b32 v121, v120\nv_permlane32_swap_b32 v120, v121\nv_max_f32 v120, v120, v121")
    a("ds_write_b32 v9, v120")
    a("s_waitcnt lgkmcnt(0)\ns_barrier")
    a("ds_read_b128 v[104:107], v12\nds_read_b128 v[108:111], v12 offset:16")
    a("s_waitcnt lgkmcnt(0)")
    a("v_max3_f32 v120, v104, v105, v106\nv_max3_f32 v121, v107, v108, v109\nv_max3_f32 v120, v120, v110, v111\nv_max_f32 v124, v120, v121")
    for i in range(8): a(f"v_sub_f32 v{96+i}, v{96+i}, v124")
    for i in range(8): a(f"v_mul_f32 v{96+i}, s58, v{96+i}")
    for i in range(8): a(f"v_exp_f32 v{96+i}, v{96+i}")
    a("v_add_f32 v120, v96, v97\nv_add_f32 v121, v98, v99\nv_add_f32 v122, v100, v101\nv_add_f32 v123, v102, v103")
    a("v_add_f32 v120, v120, v121\nv_add_f32 v122, v122, v123\nv_add_f32 v120, v120, v122")
    a("v_mov_b32 v121, v120\nv_permlane16_swap_b32 v120, v121\nv_add_f32 v120, v120, v121")
    a("v_mov_b32 v121, v120\nv_permlane32_swap_b32 v120, v121\nv_add_f32 v120, v120, v121")
    a(f"ds_write_b32 v9, v120 offset:{L_LS-L_MX}")
    for x in range(4):
        a(f"s_mov_b32 exec_lo, {hex(0x000F000F << (4*x))}\ns_mov_b32 exec_hi, {hex(0x000F000F << (4*x))}")
        for c in range(4): a(f"v_cvt_pk_bf16_f32 v{80+4*x+c}, v{96+2*c}, v{97+2*c}")
    a("s_mov_b64 exec, -1")
    a("v_readlane_b32 s101, v124, s3")
    stamp(6)
    if not WEARLY:
        tail_first(); a("s_mov_b32 s60, 0x07060302")
    a(f"s_lshl_b32 s7, s3, 11\ns_add_u32 s7, s7, {L_OP}\nv_add_u32 v12, s7, v8\nv_add_u32 v13, 1024, v12")
    a(f"s_lshl_b32 s7, s3, 9\ns_add_u32 s7, s7, {L_OP}\nv_add_u32 v104, s7, v8")
    a(f"s_lshl_b32 s7, s3, 5\ns_add_u32 s7, s7, {L_LS}\nv_mov_b32 v105, s7")
    a("v_lshlrev_b32 v9, 2, v11\nv_lshl_add_u32 v9, v10, 4, v9")
    a(f"s_xor_b32 s48, s98, {BX}\ns_xor_b32 s49, s99, {BX}")
    for c in range(4):
        a(f"s_waitcnt vmcnt({2 + 6 - 2*c})")
        for x in range(4):
            a(f"v_perm_b32 v{16+8*x+c}, v{48+4*(2*c+1)+x}, v{48+4*(2*c)+x}, s59")
            a(f"v_perm_b32 v{20+8*x+c}, v{48+4*(2*c+1)+x}, v{48+4*(2*c)+x}, s60")
    stamp(7)
    for x in range(4):
        mfma(96, 80+4*x, 16+8*x, None if x == 0 else 96)
        mfma(100, 80+4*x, 20+8*x, None if x == 0 else 100)
    a("ds_write2_b32 v12, v96, v100 offset0:0 offset1:1\nds_write2_b32 v12, v97, v101 offset0:128 offset1:129")
    a("ds_write2_b32 v13, v98, v102 offset0:0 offset1:1\nds_write2_b32 v13, v99, v103 offset0:128 offset1:129")
    a("s_waitcnt lgkmcnt(0)\ns_barrier")
    stamp(8)
    a("s_cmp_ge_u32 s3, 4\ns_cbranch_scc1 L_pub_done")
    a("ds_read_b128 v[96:99], v105\nds_read_b128 v[100:103], v105 offset:16")
    for w in range(8): a(f"ds_read_b64 v[{16+2*w}:{17+2*w}], v104 offset:{w*2048}")
    a("s_waitcnt lgkmcnt(8)" if not debug else "s_waitcnt lgkmcnt(0)")
    pk("add", 96, 96, 98); pk("add", 100, 100, 102); pk("add", 96, 96, 100); a("v_add_f32 v96, v96, v97")
    a("v_rcp_f32 v97, v96\nv_log_f32 v98, v96")
    a("s_waitcnt lgkmcnt(0)")
    pk("add", 16, 16, 18); pk("add", 20, 20, 22); pk("add", 24, 24, 26); pk("add", 28, 28, 30)
    pk("add", 16, 16, 20); pk("add", 24, 24, 28); pk("add", 16, 16, 24)
    a("v_mul_f32 v16, v16, v97\nv_mul_f32 v17, v17, v97\nv_cvt_pk_bf16_f32 v16, v16, v17")
    a("v_mov_b32 v99, s101\nv_fmac_f32 v98, s58, v99")
    a("v_min_u32 v16, -2, v16\nv_min_u32 v98, -2, v98")
    a(f"buffer_store_dword v16, v9, {sWS}, s98 offen")
    a("s_mov_b64 exec, 1")
    a(f"buffer_store_dword v98, off, {sWS}, s99")
    a(f"buffer_store_dword v98, off, {sWS}, s49 sc1")
    a("s_mov_b64 exec, -1")
    a(f"buffer_store_dword v16, v9, {sWS}, s48 offen sc1")
    a("L_pub_done:")
    a("s_barrier")
    stamp(9)
    a("s_or_b32 s96, s96, 15")
    a("s_cmp_ge_u32 s5, 16\ns_cbranch_scc1 L_gd_stage")
    dma2(5, sWO, "s52", "s55", 1024)
    a("s_and_b32 s7, s5, 7\ns_lshl_b32 s62, s7, 10\ns_and_b32 s7, s3, 3\ns_lshl_b32 s7, s7, 8\ns_add_u32 s62, s62, s7")
    a("v_lshlrev_b32 v6, 2, v1")
    a(f"buffer_load_dword v112, v6, {sX}, s62 offen")
    a("v_and_b32 v9, 7, v10\nv_lshrrev_b32 v13, 3, v10\nv_lshl_add_u32 v13, v9, 1, v13")
    a("v_lshlrev_b32 v12, 11, v13\nv_lshl_add_u32 v12, v11, 4, v12\nv_lshlrev_b32 v13, 3, v13")
    a(f"s_lshl_b32 s7, s3, 7\ns_add_u32 s48, s6, s7\ns_xor_b32 s49, s48, {BX}")
    a(f"s_lshr_b32 s7, s3, 1\ns_lshl_b32 s7, s7, 7\ns_add_u32 s54, s6, s7\ns_add_u32 s54, s54, {O_LSE}\ns_xor_b32 s55, s54, {BX}")
    a(f"s_lshl_b32 s7, s3, 12\nv_add_u32 v14, s7, v14\nv_xor_b32 v9, 32, v14")
    def w_loads():
        a(f"buffer_load_dwordx2 v[32:33], v13, {sWS}, s52 offen sc1")
        for jp in range(2):
            for ks in range(2):
                a(f"buffer_load_dwordx4 v[{16+8*jp+4*ks}:{19+8*jp+4*ks}], v12, {sWS}, s51 offen offset:{jp*1024+ks*64} sc1")
    a("s_mov_b32 s51, s48\ns_mov_b32 s52, s54")
    w_loads()
    a("s_waitcnt vmcnt(5)")
    stamp(10)
    trfrag(48, 14, 0); trfrag(56, 9, 0); trfrag(52, 14, 2048); trfrag(60, 9, 2048)
    a("s_branch L_w_go")
    a("L_w_poll:")
    spin_ab(["s51", "s52"], ["s48", "s54"], ["s49", "s55"])
    w_loads()
    a("L_w_go:")
    a("s_waitcnt vmcnt(3) lgkmcnt(0)")
    mfma(96, 48, 16); mfma(104, 56, 16)
    a("v_max_f32 v36, v32, v33")
    a("v_max_f32_dpp v36, v36, v36 row_ror:8 row_mask:0xf bank_mask:0xf")
    a("v_sub_f32 v34, v32, v36\nv_sub_f32 v35, v33, v36\nv_exp_f32 v34, v34\nv_exp_f32 v35, v35")
    a("s_waitcnt vmcnt(2)")
    mfma(96, 52, 20, 96); mfma(104, 60, 20, 104)
    a("v_add_f32 v36, v34, v35")
    a("v_add_f32_dpp v36, v36, v36 row_ror:8 row_mask:0xf bank_mask:0xf\nv_rcp_f32 v36, v36")
    a("s_waitcnt vmcnt(1)")
    mfma(100, 48, 24); mfma(108, 56, 24)
    a("v_mul_f32 v34, v34, v36\nv_mul_f32 v38, v35, v36")
    a("s_waitcnt vmcnt(0)")
    mfma(100, 52, 28, 100); mfma(108, 60, 28, 108)
    check_sent(range(16, 34), 37)
    a("s_cbranch_vccnz L_w_poll")
    stamp(11)
    for r in (96, 98, 104, 106): pk("mul", r, r, 34, "op_sel_hi:[1,0]")
    for r in (96, 98, 104, 106): a(f"v_pk_fma_f32 v[{r}:{r+1}], v[{r+4}:{r+5}], v[38:39], v[{r}:{r+1}] op_sel_hi:[1,0,1]")
    for r in range(4): a(f"v_add_f32_dpp v{96+r}, v{96+r}, v{96+r} row_ror:8 row_mask:0xf bank_mask:0x3")
    for r in range(4): a(f"v_add_f32_dpp v{96+r}, v{104+r}, v{104+r} row_ror:8 row_mask:0xf bank_mask:0xc")
    a("ds_write_b128 v15, v[96:99]")
    a("s_waitcnt lgkmcnt(0)\ns_barrier")
    stamp(12)
    a("s_cmp_ge_u32 s5, 8\ns_cbranch_scc1 L_kv_end\ns_cmp_ge_u32 s3, 4\ns_cbranch_scc1 L_kv_end")
    a(f"s_lshl_b32 s52, s62, 1\ns_add_u32 s52, s52, {WP}\ns_add_u32 s100, s100, 1")
    unpack(120, 121, 112)
    a(f"s_add_u32 s48, s62, s6\ns_add_u32 s48, s48, {O_XN}\ns_xor_b32 s49, s48, {BX}")
    a(f"s_lshl_b32 s7, s5, 7\ns_add_u32 s54, s6, s7\ns_add_u32 s54, s54, {O_H}\ns_and_b32 s7, s4, 1\ns_lshl_b32 s7, s7, 7\ns_sub_u32 s54, s54, s7\ns_xor_b32 s55, s54, {BX}")
    a("s_bitcmp1_b32 s4, 0\ns_cselect_b32 s58, 0, -1\ns_cselect_b32 s59, -1, 0")
    a(f"s_lshl_b32 s7, s3, 3\ns_add_u32 s7, s7, {L_MX}\nv_mov_b32 v12, s7\nv_mov_b32 v13, {L_MX}")
    a("L_r_poll:")
    spin()
    a("s_mov_b32 s51, s52")
    for r in range(8):
        a(f"buffer_load_dwordx2 v[{16+2*r}:{17+2*r}], v8, {sWS}, s51 offen sc1")
        if r < 7: a("s_add_u32 s51, s51, 16384")
    a("s_waitcnt vmcnt(6)")
    pk("add", 96, 16, 18)
    a("v_xor_b32 v98, s100, v16\nv_xor_b32 v99, s100, v17")
    a("v_bitop3_b32 v98, v98, v18, s100 bitop3:0xf6\nv_bitop3_b32 v99, v99, v19, s100 bitop3:0xf6")
    for r in range(2, 8):
        a(f"s_waitcnt vmcnt({7-r})")
        pk("add", 96, 96, 16+2*r)
        a(f"v_bitop3_b32 v98, v98, v{16+2*r}, s100 bitop3:0xf6\nv_bitop3_b32 v99, v99, v{17+2*r}, s100 bitop3:0xf6")
    a("v_or_b32 v98, v98, v99\nv_cvt_pk_bf16_f32 v100, v96, v97\nv_and_b32 v98, 0xff, v98\nv_cmp_ne_u32 vcc, 0, v98")
    unpack(96, 97, 100)
    a("s_cbranch_vccnz L_r_poll")
    stamp(13)
    pk("add", 96, 96, 120)
    a("v_cvt_pk_bf16_f32 v100, v96, v97")
    unpack(96, 97, 100)
    a("v_add_f32 v108, v96, v97\nv_mul_f32 v109, v96, v96\nv_fmac_f32 v109, v97, v97")
    for m in ["quad_perm:[1,0,3,2] row_mask:0xf", "quad_perm:[2,3,0,1] row_mask:0xf", "row_half_mirror row_mask:0xf", "row_mirror row_mask:0xf",
              "row_bcast:15 row_mask:0xa", "row_bcast:31 row_mask:0xc"]:
        a(f"v_add_f32_dpp v108, v108, v108 {m} bank_mask:0xf\nv_add_f32_dpp v109, v109, v109 {m} bank_mask:0xf")
    a("s_mov_b32 exec_lo, 0\ns_mov_b32 exec_hi, 0x80000000")
    a("ds_write_b64 v12, v[108:109]")
    a("s_mov_b64 exec, -1\nv_min_u32 v100, -2, v100")
    a("s_waitcnt lgkmcnt(0)\ns_barrier")
    a("ds_read_b128 v[104:107], v13\nds_read_b128 v[108:111], v13 offset:16")
    a("s_waitcnt lgkmcnt(0)")
    pk("add", 104, 104, 106); pk("add", 108, 108, 110); pk("add", 104, 104, 108)
    stats("v104", "v105", 109)
    a(f"v_pk_add_f32 v[96:97], v[96:97], v[110:111] op_sel_hi:[1,0] neg_lo:[0,1] neg_hi:[0,1]")
    stats2(109)
    a("v_cvt_pk_bf16_f32 v101, v96, v97")
    unpack(96, 97, 101)
    a("v_mul_f32 v96, v96, v111\nv_mul_f32 v97, v97, v111\nv_cvt_pk_bf16_f32 v101, v96, v97\nv_min_u32 v101, -2, v101")
    a(f"buffer_store_dword v101, v6, {sWS}, s48 offen")
    stamp(14)
    a(f"buffer_store_dword v101, v6, {sWS}, s49 offen sc1")
    a("s_lshr_b32 s7, s4, 1\ns_cmp_lg_u32 s7, s3\ns_cbranch_scc1 L_kv_end")
    a("s_mov_b64 exec, s[58:59]")
    a(f"buffer_store_dword v100, v6, {sWS}, s54 offen\nbuffer_store_dword v100, v6, {sWS}, s55 offen sc1")
    a("s_mov_b64 exec, -1\ns_branch L_kv_end")
    a("L_gd_stage:")
    a("s_cmp_ge_u32 s5, 30\ns_cbranch_scc1 L_d_stage")
    if not GEARLY: dma2(6, sG, "s51", "s54", 3584)
    dma2(6, sG, "s52", "s55", 3584)
    a("s_xor_b32 s54, s54, 4096\ns_xor_b32 s55, s55, 4096")
    dma2(6, sU, "s51", "s54", 3584); dma2(6, sU, "s52", "s55", 3584)
    a(f"s_lshl_b32 s7, s3, 13\nv_add_u32 v14, s7, v14\nv_xor_b32 v9, 32, v14")
    a(f"v_and_b32 v13, 3, v10\nv_lshlrev_b32 v13, 10, v13\nv_lshl_add_u32 v13, v11, 4, v13")
    a(f"s_lshl_b32 s48, s50, 12\ns_lshl_b32 s7, s3, 7\ns_add_u32 s48, s48, s7\ns_add_u32 s48, s48, s6\ns_add_u32 s48, s48, {O_XN}\ns_xor_b32 s49, s48, {BX}")
    a("s_waitcnt vmcnt(0)")
    stamp(10)
    for t in range(2):
        for m in range(2):
            for ks in range(2): trfrag(48 + 16*t + 8*m + 4*ks, 14 if t == 0 else 9, m*4096 + ks*2048)
    a("L_g_poll:")
    spin_ab(["s51"], ["s48"], ["s49"])
    a(f"buffer_load_dwordx4 v[16:19], v13, {sWS}, s51 offen sc1\nbuffer_load_dwordx4 v[20:23], v13, {sWS}, s51 offen offset:64 sc1")
    a("s_waitcnt vmcnt(0) lgkmcnt(0)")
    check_sent(range(16, 24), 24)
    a("s_cbranch_vccnz L_g_poll")
    stamp(11)
    for c in range(4): mfma(96+4*c, 48+8*c, 16)
    for c in range(4): mfma(96+4*c, 52+8*c, 20, 96+4*c)
    for c in range(1, 4):
        for r in range(4): a(f"v_mov_b32_dpp v{96+r}, v{96+4*c+r} quad_perm:[0,1,2,3] row_mask:0xf bank_mask:{hex(1<<c)}")
    a("ds_write_b128 v15, v[96:99]")
    a("s_waitcnt lgkmcnt(0)\ns_barrier")
    stamp(12)
    a("s_branch L_kv_end")
    a("L_d_stage:")
    a("s_cmp_eq_u32 s3, 7\ns_cbranch_scc1 L_end")
    a("s_lshl_b32 s51, s4, 7\ns_lshl_b32 s7, s50, 6\ns_add_u32 s51, s51, s7\ns_lshl_b32 s7, s3, 18\ns_add_u32 s51, s51, s7")
    a("s_lshl_b32 s54, s3, 14")
    a(f"v_add_u32 v14, s54, v14\nv_xor_b32 v9, 32, v14")
    for ks in range(8):
        dma2(5, sD, "s51", "s54", 1024)
        if ks < 7: a("s_add_u32 s51, s51, 32768\ns_add_u32 s54, s54, 2048")
    a("v_lshlrev_b32 v12, 6, v10\nv_lshl_add_u32 v12, v11, 4, v12")
    a(f"s_lshl_b32 s51, s3, 12\ns_add_u32 s51, s51, {HH}")
    a("s_waitcnt vmcnt(0)")
    stamp(10)
    for ks in range(8):
        trfrag(32+8*ks, 14, ks*2048); trfrag(36+8*ks, 9, ks*2048)
    a("s_waitcnt lgkmcnt(0)\ns_barrier")
    stamp(13)
    a("L_d_poll:")
    spin()
    for u in range(4): a(f"buffer_load_dwordx4 v[{16+4*u}:{19+4*u}], v12, {sWS}, s51 offen offset:{u*1024} sc1")
    for u in range(4):
        a(f"s_waitcnt vmcnt({3-u})")
        for hf in range(2):
            for t in range(2): mfma(96+8*t+4*hf, 32+8*(2*u+hf)+4*t, 16+4*u, None if u == 0 else 96+8*t+4*hf)
    check_sent(range(16, 32), 112)
    a("s_cbranch_vccnz L_d_poll")
    stamp(11)
    for r in range(4): a(f"v_add_f32_dpp v{96+r}, v{100+r}, v{96+r} row_ror:8 row_mask:0xf bank_mask:0x3")
    for r in range(4): a(f"v_add_f32_dpp v{96+r}, v{104+r}, v{108+r} row_ror:8 row_mask:0xf bank_mask:0xc")
    a("ds_write_b128 v15, v[96:99]")
    a("s_waitcnt lgkmcnt(0)\ns_barrier")
    stamp(12)
    a("L_kv_end:")
    if debug:
        a("s_cmp_lg_u32 s3, 0\ns_cbranch_scc1 L_end")
        a(f"s_lshl_b32 s7, s2, 8\ns_add_u32 s7, s7, {hex(STAMP)}")
        a("L_stamps:")
        a("s_waitcnt lgkmcnt(0)\nv_mov_b32 v0, 0")
        for i in range(16):
            a(f"v_mov_b32 v2, s{64+2*i}\nv_mov_b32 v3, s{65+2*i}")
            a(f"buffer_store_dwordx2 v[2:3], v0, {sWS}, s7 offen offset:{8*i}")
            a("s_nop 1")
    a("s_endpgm")

    a("L_aux:")
    a("s_setprio 3")
    a("v_and_b32 v9, 7, v10\nv_lshrrev_b32 v12, 3, v10")
    a("v_lshlrev_b32 v2, 4, v11\nv_lshl_add_u32 v2, v9, 10, v2\nv_lshl_add_u32 v2, v12, 9, v2")
    for i in range(4): a(f"v_mov_b32 v{100+i}, -1")
    a(f"s_lshr_b32 s57, s97, 4\ns_and_b32 s58, s97, 15\ns_lshl_b32 s58, s58, 1\ns_add_u32 s58, s58, s3")
    a(f"s_lshl_b32 s59, s57, {GSH}\ns_add_u32 s59, s59, {GB}")
    a(f"s_lshl_b32 s51, s58, 10\ns_add_u32 s51, s51, s59\ns_add_u32 s52, s51, {BX}")
    a(f"s_and_b32 s7, s58, 15\ns_lshl_b32 s7, s7, 10\ns_lshr_b32 s53, s58, 4\ns_lshl_b32 s53, s53, 16\ns_add_u32 s53, s53, s59\ns_add_u32 s53, s53, s7\ns_add_u32 s53, s53, 0x8000")
    a(f"s_sub_u32 s54, s7, 12288\ns_min_u32 s54, s54, 2560\ns_mul_i32 s55, s57, 3584\ns_add_u32 s54, s54, s55\ns_add_u32 s54, s54, {HH}")
    a("s_cmp_lt_u32 s7, 12288\ns_cselect_b32 s53, s53, s54")
    a("s_getpc_b64 s[60:61]")
    a("L_pc:")
    a(f"s_sub_u32 s60, s60, L_pc-{NAME}_kernel\ns_subb_u32 s61, s61, 0")
    a(f"s_lshl_b32 s7, s5, 10\nv_add_u32 v3, s7, v7\nv_min_u32 v3, L_end-{NAME}_kernel-16, v3\nv_and_b32 v3, -16, v3")
    a("s_waitcnt lgkmcnt(0)")
    a("s_load_dword s48, s[40:41], 0")
    a("s_cmp_eq_u32 s3, 0\ns_cbranch_scc1 L_a_nopf")
    a(f"s_cmp_gt_u32 s5, (L_end-{NAME}_kernel)/1024\ns_cbranch_scc1 L_a_nopf")
    a("global_load_dwordx4 v[104:107], v3, s[60:61]")
    a("L_a_nopf:")
    is_prod_else("L_a_noq")
    for ks in range(8): a(f"buffer_load_dwordx4 v[{16+4*ks}:{19+4*ks}], v2, {sX}, 0 offen offset:{ks*64}")
    for s in ("s51", "s52", "s53"): a(f"buffer_store_dwordx4 v[100:103], v7, {sWS}, {s} offen sc1")
    a("s_barrier")
    a("s_lshl_b32 s7, s3, 5\nv_xor_b32 v14, s7, v14")
    a("v_lshlrev_b32 v13, 4, v11\nv_lshl_add_u32 v13, v10, 14, v13")
    a(f"s_lshl_b32 s52, s97, 1\ns_add_u32 s52, s52, s3\ns_lshl_b32 s51, s52, 6\ns_add_u32 s51, s51, {QB}")
    a("s_mov_b32 s57, 0x3f803f80\nv_mov_b32 v96, 0\nv_mov_b32 v97, 0\nv_mov_b32 v98, 0\nv_mov_b32 v99, 0")
    a("s_waitcnt lgkmcnt(0)\ns_add_u32 s48, s48, 1\nv_mov_b32 v102, s48")
    a("s_waitcnt vmcnt(3)")
    stamp(1)
    for i in range(32): a(f"v_dot2c_f32_bf16 v{96+(i&1)}, s57, v{16+i}\nv_dot2c_f32_bf16 v{98+(i&1)}, v{16+i}, v{16+i}")
    a("v_add_f32 v96, v96, v97\nv_add_f32 v98, v98, v99")
    a("v_add_f32_dpp v96, v96, v96 row_ror:8 row_mask:0xf bank_mask:0xf\nv_add_f32_dpp v98, v98, v98 row_ror:8 row_mask:0xf bank_mask:0xf")
    for sw in ("16", "32"):
        a(f"v_mov_b32 v97, v96\nv_mov_b32 v99, v98\nv_permlane{sw}_swap_b32 v96, v97\nv_permlane{sw}_swap_b32 v98, v99\nv_add_f32 v96, v96, v97\nv_add_f32 v98, v98, v99")
    stats("v96", "v98", 109); stats2(109)
    for i in range(0, 32, 4):
        for j in range(4): unpack(112+2*j, 113+2*j, 16+i+j)
        for j in range(4): a(f"v_pk_add_f32 v[{112+2*j}:{113+2*j}], v[{112+2*j}:{113+2*j}], v[110:111] op_sel_hi:[1,0] neg_lo:[0,1] neg_hi:[0,1]")
        for j in range(4): a(f"v_cvt_pk_bf16_f32 v{120+j}, v{112+2*j}, v{113+2*j}")
        for j in range(4): unpack(112+2*j, 113+2*j, 120+j)
        for j in range(4): a(f"v_pk_mul_f32 v[{112+2*j}:{113+2*j}], v[{112+2*j}:{113+2*j}], v[110:111] op_sel:[0,1] op_sel_hi:[1,1]")
        for j in range(4): a(f"v_cvt_pk_bf16_f32 v{16+i+j}, v{112+2*j}, v{113+2*j}")
    stamp(2)
    a("s_waitcnt vmcnt(0)\ns_barrier")
    stamp(3)
    order = [(ks, hf) for ks in range(8) for hf in range(2)]
    RING = 6
    if debug: a("s_waitcnt lgkmcnt(0)")
    for i in range(RING): trfrag(48+4*i, 14, (order[i][1]*8+order[i][0])*2048)
    for i, (ks, hf) in enumerate(order):
        nxt = i + RING
        if nxt < 16: trfrag(48+4*(nxt % 12), 14, (order[nxt][1]*8+order[nxt][0])*2048)
        a(f"s_waitcnt lgkmcnt({2*min(RING, 15-i)})")
        mfma(112+4*hf, 48+4*(i % 12), 16+4*ks, None if ks == 0 else 112+4*hf)
    for r in range(4): a(f"v_add_f32_dpp v{112+r}, v{116+r}, v{112+r} row_ror:8 row_mask:0xf bank_mask:0xf")
    a("v_cvt_pk_bf16_f32 v100, v112, v113\nv_cvt_pk_bf16_f32 v101, v114, v115")
    a("s_mov_b32 exec_lo, 0x00ff00ff\ns_mov_b32 exec_hi, 0x00ff00ff")
    a(f"buffer_store_dwordx4 v[100:103], v13, {sWS}, s51 offen sc1")
    a("s_mov_b64 exec, -1\ns_branch L_a_q")
    a("L_a_noq:")
    a("s_waitcnt lgkmcnt(0)\ns_add_u32 s48, s48, 1\ns_barrier")
    a("L_a_q:")
    stamp(4)
    a(f"v_mul_u32_u24 v15, 384, v11\nv_lshl_add_u32 v15, v9, 4, v15\nv_lshl_add_u32 v15, v12, 3, v15\ns_lshl_b32 s7, s3, 7\ns_add_u32 s7, s7, {L_RD}\nv_add_u32 v15, s7, v15")
    a("v_lshlrev_b32 v5, 3, v11\nv_lshl_add_u32 v5, v12, 2, v5\nv_lshl_add_u32 v6, v9, 10, v5")
    a("s_cmp_eq_u32 s3, 0\ns_cbranch_scc1 L_a0_q\ns_barrier\ns_barrier\ns_branch L_a_b3")
    a("L_a0_q:")
    a(f"s_lshr_b32 s7, s5, 2\ns_lshl_b32 s51, s7, 14\ns_lshl_b32 s7, s4, 11\ns_add_u32 s51, s51, s7\ns_add_u32 s51, s51, {QB}")
    a(f"v_lshrrev_b32 v4, 5, v1\nv_mul_u32_u24 v4, 272, v4\nv_and_b32 v13, 31, v1\nv_lshl_add_u32 v13, v13, 3, v4\nv_add_u32 v13, {L_QL}, v13")
    def qld(r): a(f"buffer_load_dwordx4 v[{r}:{r+3}], v7, {sWS}, s51 offen sc1\nbuffer_load_dwordx4 v[{r+4}:{r+7}], v7, {sWS}, s51 offen offset:1024 sc1")
    def qchk(r): a(f"v_cmp_ne_u32 vcc, s48, v{r+2}\nv_cmp_ne_u32 s[52:53], s48, v{r+6}\ns_or_b64 vcc, vcc, s[52:53]")
    a("s_barrier")
    stamp(8)
    qld(48)
    a("s_barrier")
    stamp(9)
    qld(56)
    a("L_q_poll:")
    a("s_waitcnt vmcnt(2)")
    qchk(48)
    a("s_cbranch_vccz L_q_ok0")
    qld(48)
    a("s_waitcnt vmcnt(2)")
    qchk(56)
    a("s_cbranch_vccz L_q_ok1")
    qld(56)
    spin()
    a("s_branch L_q_poll")
    a("L_q_ok1:")
    a("ds_write_b64 v13, v[56:57]\nds_write_b64 v13, v[60:61] offset:544\ns_branch L_a_b3")
    a("L_q_ok0:")
    a("ds_write_b64 v13, v[48:49]\nds_write_b64 v13, v[52:53] offset:544")
    a("L_a_b3:")
    stamp(5)
    a("s_waitcnt lgkmcnt(0)\ns_barrier")
    a("s_barrier")
    a("s_barrier")
    a("s_barrier")
    a("s_cmp_ge_u32 s5, 16\ns_cbranch_scc1 L_a_gd")
    a(f"s_lshl_b32 s53, s4, 14\ns_lshl_b32 s7, s5, 7\ns_add_u32 s53, s53, s7\ns_lshl_b32 s7, s3, 6\ns_add_u32 s53, s53, s7\ns_add_u32 s53, s53, {WP}")
    a("v_lshlrev_b32 v6, 1, v6\nv_mov_b32 v4, 0xff")
    a("s_barrier")
    stamp(6)
    red8(15)
    a("v_bfi_b32 v24, v4, s48, v24\nv_bfi_b32 v25, v4, s48, v25")
    a(f"buffer_store_dwordx2 v[24:25], v6, {sWS}, s53 offen sc1")
    stamp(7)
    a("s_branch L_a_end")
    a("L_a_gd:")
    a("s_cmp_ge_u32 s5, 30\ns_cbranch_scc1 L_a_d")
    a(f"v_and_b32 v9, 3, v10\nv_mul_u32_u24 v15, 384, v11\nv_lshl_add_u32 v15, v9, 4, v15\nv_and_b32 v13, 12, v10\ns_lshl_b32 s7, s3, 7\ns_add_u32 s7, s7, {L_RD}\nv_add3_u32 v15, v15, v13, s7\nv_add_u32 v4, 64, v15")
    a("v_lshlrev_b32 v14, 6, v9\nv_lshl_add_u32 v14, v11, 3, v14\nv_lshrrev_b32 v13, 1, v13\nv_add_u32 v14, v14, v13")
    a(f"s_mul_i32 s62, s4, 14\ns_add_u32 s62, s62, s5\ns_lshl_b32 s62, s62, 8\ns_lshl_b32 s7, s3, 5\ns_add_u32 s62, s62, s7\ns_add_u32 s62, s62, {HH-16*256}")
    a(f"s_lshl_b32 s61, s5, 1\ns_add_u32 s61, s61, s3\ns_lshl_b32 s61, s61, 2\ns_add_u32 s61, s61, s6\ns_add_u32 s61, s61, {O_FLG-128}")
    a(f"s_mov_b32 s57, {hex(LOG2E ^ 0x80000000)}")
    a("s_barrier")
    stamp(6)
    for w in range(4): a(f"ds_read2st64_b32 v[{24+2*w}:{25+2*w}], v15 offset0:{12*w} offset1:{12*w+6}")
    for w in range(4): a(f"ds_read2st64_b32 v[{32+2*w}:{33+2*w}], v4 offset0:{12*w} offset1:{12*w+6}")
    a("s_waitcnt lgkmcnt(4)" if not debug else "s_waitcnt lgkmcnt(0)")
    pk("add", 24, 24, 26); pk("add", 28, 28, 30); pk("add", 24, 24, 28); a("v_add_f32 v24, v24, v25")
    a("v_cvt_pk_bf16_f32 v24, v24, v24\nv_and_b32 v26, s56, v24")
    a("v_mul_f32 v26, s57, v26\nv_exp_f32 v26, v26")
    a("s_waitcnt lgkmcnt(0)")
    pk("add", 32, 32, 34); pk("add", 36, 36, 38)
    a("v_add_f32 v26, 1.0, v26\nv_rcp_f32 v26, v26")
    pk("add", 32, 32, 36); a("v_add_f32 v25, v32, v33")
    a("v_cvt_pk_bf16_f32 v26, v26, v25")
    unpack(25, 26, 26)
    a("v_mul_f32 v26, v26, v25")
    a("v_mov_b32_dpp v27, v26 row_shl:4 row_mask:0xf bank_mask:0xf")
    a("v_cvt_pk_bf16_f32 v26, v26, v27\nv_min_u32 v26, -2, v26")
    a("s_mov_b32 exec_lo, 0x0f0f0f0f\ns_mov_b32 exec_hi, 0x0f0f0f0f")
    a(f"buffer_store_dword v26, v14, {sWS}, s62 offen sc1")
    stamp(7)
    if DHINT:
        a("s_mov_b64 exec, 1")
        a(f"buffer_store_dword v26, off, {sWS}, s61")
    a("s_branch L_a_end")
    a("L_a_d:")
    a("s_and_b32 s7, s5, 1\ns_lshl_b32 s61, s7, 6\ns_lshl_b32 s7, s3, 5\ns_add_u32 s61, s61, s7\ns_lshl_b32 s62, s4, 7\ns_add_u32 s62, s62, s61")
    a(f"s_add_u32 s52, s61, s6\ns_add_u32 s52, s52, {O_H}\ns_xor_b32 s53, s52, {BX}\nv_lshl_add_u32 v5, v9, 7, v5\ns_or_b32 s96, s96, 15")
    a("L_h_poll:")
    spin_ab(["s51"], ["s52"], ["s53"])
    a(f"buffer_load_dword v22, v5, {sWS}, s51 offen sc1")
    a("s_waitcnt vmcnt(0)")
    a("v_cmp_eq_u32 vcc, -1, v22\ns_cbranch_vccnz L_h_poll")
    unpack(20, 21, 22)
    stamp(8)
    if DHINT:
        a(f"s_add_u32 s51, s6, {O_FLG}\nv_min_u32 v4, 27, v1\nv_lshlrev_b32 v4, 2, v4\ns_mov_b32 s52, 24")
        a("L_f_poll:")
        a("s_sub_u32 s52, s52, 1\ns_cbranch_scc1 L_f_done")
        a(f"buffer_load_dword v22, v4, {sWS}, s51 offen sc1")
        a("s_waitcnt vmcnt(0)")
        a("v_cmp_eq_u32 vcc, -1, v22\ns_cbranch_vccnz L_f_poll")
        a("L_f_done:")
    stamp(6)
    a("s_barrier")
    a("s_barrier")
    red8(15, 7)
    a("v_cvt_pk_bf16_f32 v24, v24, v25")
    unpack(22, 23, 24)
    pk("add", 22, 22, 20); a("v_cvt_pk_bf16_f32 v22, v22, v23")
    a(f"buffer_store_dword v22, v6, {sOUT}, s62 offen")
    stamp(7)
    a("s_cmp_lg_u32 s62, 0\ns_cbranch_scc1 L_a_end")
    a("v_mov_b32 v22, s48\ns_mov_b64 exec, 1")
    a(f"buffer_store_dword v22, off, {sWS}, 0")
    a("L_a_end:")
    if debug:
        a("s_mov_b64 exec, -1\ns_cmp_lg_u32 s3, 0\ns_cbranch_scc1 L_end")
        a(f"s_lshl_b32 s7, s2, 8\ns_add_u32 s7, s7, {hex(STAMP+128)}\ns_branch L_stamps")
    a("L_end:\ns_endpgm")
    lines = hz.fix(a.l)
    hdr = open("header.txt").read()
    return wrap("\n".join(lines) + "\n", 256, 640, L_END, 128, sgpr=102, header=hdr)

if __name__ == "__main__":
    specs = sys.argv[1:] or ["k3"]
    for sp in specs:
        nm, _, o = sp.partition(":")
        opt = {}
        for kv in filter(None, o.split(",")):
            k, v = kv.split("=")
            try: v = int(v)
            except ValueError: pass
            opt[k] = v
        open(nm + ".s", "w").write(gen(False, **opt))
        open(nm + "d.s", "w").write(gen(True, **opt))
```

```python
import sys
from asmlib import *
import hz

GB=0x40000; GSH=17
O_OB=0; O_XN=0x8000; O_H=0xA000; O_LSE=0xA400; O_FLG=0xA800; O_SY=0xB000; BX=0x10000
WP=0x140000; HH=0x160000
QB=0x200000; QX=0x80000
STAMP=128<<20
L_W=0
L_QL=114688
L_MX=L_QL+1024
L_LS=L_MX+128
L_OP=L_LS+128
L_RD=L_OP+16384
L_PB=L_RD+10240
L_MD=L_PB+1152
L_END=L_MD+64
RW=1280; RG=320
sX,sK,sV,sWQ,sWO,sG,sU,sOUT,sWS,sD = [f"s[{i}:{i+3}]" for i in range(8,48,4)]
LOG2E=0x3fb8aa3b; SCALE=0x3db504f3; EPS=0x3727c5ac

def gen(debug=False, **opt):
    NT = opt.get("nt", "nt")
    K0 = opt.get("k0", 2); K1 = opt.get("k1", 3); BQ = opt.get("bq", 1); GS = opt.get("gsleep", 0); B0 = opt.get("b0", 1); TOUCH = opt.get("touch", 1); SLOW = opt.get("slow", 0); DW = opt.get("dw", 0); PAIR = opt.get("pair", 1); DIAG = opt.get("diag", 0)
    W1 = opt.get("w1", 1); W2 = opt.get("w2", 3)
    G1 = opt.get("g1", 3)
    PF = opt.get("pf", 3)
    NTW = opt.get("ntw", "nt")
    if NTW == "df": NTW = ""
    M1 = opt.get("m1", 4)
    PREOWN = opt.get("preown", 1)
    MASKP = opt.get("maskp", 1)
    DHINT = opt.get("dhint", 0)
    a = Asm()
    def stamp(i):
        if debug: a(f"s_memrealtime s[{64+2*i}:{65+2*i}]")
    def cnt(i):
        if debug: a(f"s_waitcnt lgkmcnt(0)\ns_sub_u32 s7, 300000, s96\ns_mul_i32 s7, s7, 100\ns_add_u32 s{64+2*i}, s64, s7\ns_addc_u32 s{65+2*i}, s65, 0")
    def spin(): a("s_sub_u32 s96, s96, 1\ns_cbranch_scc1 L_end")
    def spin_ab(dst, sa, sb):
        spin(); a(f"s_and_b32 s7, s96, 15")
        for d, x, y in zip(dst, sa, sb): a(f"s_cselect_b32 {d}, {x}, {y}")
    def unpack(dlo, dhi, src): a(f"v_lshlrev_b32 v{dlo}, 16, v{src}\nv_and_b32 v{dhi}, s56, v{src}")
    def pk(op, d, x, y, mods=""): a(f"v_pk_{op}_f32 v[{d}:{d+1}], v[{x}:{x+1}], v[{y}:{y+1}] {mods}")
    def dma(voff, srd, soff, lds):
        a(f"s_mov_b32 m0, {lds}\nbuffer_load_dwordx4 v{voff}, {srd}, {soff} offen {NTW} lds")
    def dma2(voff, srd, soff, lds, stride):
        dma(voff, srd, soff, lds)
        a(f"s_add_u32 m0, {lds}, 1024\ns_add_u32 s7, {soff}, {4*stride}")
        a(f"buffer_load_dwordx4 v{voff}, {srd}, s7 offen {NTW} lds")
    def trfrag(dst, vaddr, off, d2=1024):
        a(f"ds_read_b64_tr_b16 v[{dst}:{dst+1}], v{vaddr} offset:{off}")
        a(f"ds_read_b64_tr_b16 v[{dst+2}:{dst+3}], v{vaddr} offset:{off+d2}")
    def mfma(d, A, B, C=None):
        c = "0" if C is None else f"v[{C}:{C+3}]"
        a(f"v_mfma_f32_16x16x32_bf16 v[{d}:{d+3}], v[{A}:{A+3}], v[{B}:{B+3}], {c}")
    def check_sent(regs, t):
        r = list(regs)
        a(f"v_max3_u32 v{t}, v{r[0]}, v{r[1]}, v{r[2]}"); r = r[3:]
        while len(r) >= 2:
            a(f"v_max3_u32 v{t}, v{t}, v{r[0]}, v{r[1]}"); r = r[2:]
        if r: a(f"v_max_u32 v{t}, v{t}, v{r[0]}")
        a(f"v_cmp_eq_u32 vcc, -1, v{t}")
    def stats(s1, s2, t, vc=None):
        if vc is None: a(f"v_mul_f32 v{t+1}, 0x3b000000, {s1}\nv_mul_f32 v{t+2}, 0x3b000000, {s2}")
        else: a(f"v_mul_f32 v{t+1}, {s1}, v{vc}\nv_mul_f32 v{t+2}, {s2}, v{vc}")
        a(f"v_fma_f32 v{t+2}, -v{t+1}, v{t+1}, v{t+2}\nv_max_f32 v{t+2}, 0, v{t+2}")
        a(f"v_cvt_pk_bf16_f32 v{t+1}, v{t+1}, v{t+2}")
        a(f"v_and_b32 v{t+2}, s56, v{t+1}\nv_lshlrev_b32 v{t+1}, 16, v{t+1}")
        a(f"v_add_f32 v{t+2}, {hex(EPS)}, v{t+2}\nv_cvt_pk_bf16_f32 v{t+2}, v{t+2}, v{t+2}\nv_and_b32 v{t+2}, s56, v{t+2}")
        a(f"v_sqrt_f32 v{t+2}, v{t+2}")
    def stats2(t): a(f"v_cvt_pk_bf16_f32 v{t+2}, v{t+2}, v{t+2}\nv_and_b32 v{t+2}, s56, v{t+2}\nv_rcp_f32 v{t+2}, v{t+2}")
    def wred2(x, y):
        for m in ["quad_perm:[1,0,3,2] row_mask:0xf", "quad_perm:[2,3,0,1] row_mask:0xf", "row_half_mirror row_mask:0xf", "row_mirror row_mask:0xf",
                  "row_bcast:15 row_mask:0xa", "row_bcast:31 row_mask:0xc"]:
            a(f"v_add_f32_dpp v{x}, v{x}, v{x} {m} bank_mask:0xf\nv_add_f32_dpp v{y}, v{y}, v{y} {m} bank_mask:0xf")
    def red8(addr, n=8):
        for w in range(n): a(f"ds_read_b64 v[{24+2*w}:{25+2*w}], v{addr} offset:{w*RW}")
        a("s_waitcnt lgkmcnt(0)")
        pk("add", 24, 24, 26); pk("add", 28, 28, 30); pk("add", 32, 32, 34)
        if n == 8: pk("add", 36, 36, 38)
        pk("add", 24, 24, 28); pk("add", 32, 32, 36); pk("add", 24, 24, 32)
    def rot(frm, to):
        k = 4 * ((to - frm) & 3)
        return f"row_ror:{k}" if k else "quad_perm:[0,1,2,3]"

    a("s_cmp_ge_u32 s2, 256\ns_cbranch_scc1 L_end")
    stamp(0)
    for d, o in [(8,0),(20,24),(12,8),(40,88),(16,16),(24,32),(28,48),(32,56),(44,64),(36,72)]:
        a(f"s_load_dwordx2 s[{d}:{d+1}], s[0:1], {o}")
    a("v_lshrrev_b32 v9, 6, v0\nv_and_b32 v1, 63, v0")
    a("s_getpc_b64 s[60:61]")
    a("L_pc:")
    a("v_readfirstlane_b32 s3, v9")
    a("s_and_b32 s4, s2, 7\ns_lshr_b32 s5, s2, 3")
    a(f"s_lshl_b32 s7, s3, 5\ns_add_u32 s7, s7, s5\ns_lshl_b32 s7, s7, 7\ns_min_u32 s7, s7, L_end-L_pc\nv_mov_b32 v2, s7")
    a("global_load_dword v127, v2, s[60:61]")
    a(f"s_lshl_b32 s6, s4, {GSH}\ns_add_u32 s6, s6, {GB}")
    for d, n in [(8, 8192), (40, 256<<20), (20, 4<<20), (12, 64<<20), (16, 64<<20), (24, 4<<20), (28, 512*3584), (32, 512*3584), (36, 8192), (44, 1792*1024)]:
        a(f"s_mov_b32 s{d+2}, {hex(n)}\ns_mov_b32 s{d+3}, 0x20000")
    a("s_mov_b32 s56, 0xffff0000\ns_mov_b32 s96, 300000")
    a("v_lshlrev_b32 v7, 4, v1\nv_lshlrev_b32 v8, 3, v1")
    a("v_and_b32 v10, 15, v1\nv_lshrrev_b32 v11, 4, v1")
    a("v_and_b32 v12, 3, v1\nv_bfe_u32 v9, v1, 2, 2\nv_and_b32 v13, 1, v11")
    a("s_cmp_lt_u32 s3, 2\ns_cbranch_scc1 L_aux")
    a("s_sub_u32 s3, s3, 2")
    a("v_lshrrev_b32 v4, 3, v1\nv_and_b32 v5, 7, v1\nv_and_b32 v6, 2, v4\nv_xor_b32 v5, v5, v6\nv_lshlrev_b32 v5, 4, v5\nv_lshl_add_u32 v4, v4, 13, v5\nv_xor_b32 v5, 64, v4")
    a("v_lshlrev_b32 v2, 4, v12\nv_lshl_add_u32 v2, v11, 6, v2\nv_lshl_add_u32 v2, v9, 10, v2")
    a("s_lshr_b32 s7, s5, 2\ns_lshl_b32 s48, s7, 23\ns_lshl_b32 s7, s4, 20\ns_add_u32 s48, s48, s7")
    a("s_and_b32 s7, s5, 3\ns_lshl_b32 s7, s7, 16\ns_add_u32 s48, s48, s7\ns_lshl_b32 s7, s3, 13\ns_add_u32 s48, s48, s7\ns_add_u32 s48, s48, 786432")
    a("s_add_u32 s49, s48, 4096")
    a("s_and_b32 s7, s5, 24\ns_add_u32 s7, s7, s3\ns_lshl_b32 s51, s7, 17\ns_lshl_b32 s7, s4, 10\ns_add_u32 s51, s51, s7\ns_and_b32 s7, s5, 7\ns_lshl_b32 s7, s7, 7\ns_add_u32 s51, s51, s7\ns_add_u32 s52, s51, 65536")
    a("s_lshl_b32 s54, s3, 11\ns_lshl_b32 s55, s3, 10\ns_mov_b32 m0, s54")
    def kload(t):
        i = 2*t if t < 4 else 2*(t-4)+1
        a(f"buffer_load_dwordx4 v[{16+4*t}:{19+4*t}], v2, {sK}, s{48+i//4} offen offset:{(i%4)*256} {NT}")
    def vload(i): a(f"buffer_load_dwordx4 v[{48+4*i}:{51+4*i}], v3, {sV}, s{48+i//4} offen offset:{(i%4)*256} {NT}")
    a("s_waitcnt lgkmcnt(0)")
    a(f"buffer_load_dwordx4 v[96:99], v7, {sX}, s55 offen")
    a(f"buffer_load_dwordx4 v4, {sWQ}, s51 offen {NT} lds\ns_add_u32 m0, s54, 1024")
    a(f"buffer_load_dwordx4 v5, {sWQ}, s52 offen {NT} lds")
    if B0: a("s_barrier")
    for t in range(K0): kload(t)
    a("s_load_dword s100, s[40:41], 0")
    stamp(1)
    a("v_lshrrev_b32 v14, 2, v1\nv_lshlrev_b32 v14, 6, v14\nv_lshl_add_u32 v14, v12, 3, v14\nv_lshl_add_u32 v14, v13, 5, v14")
    a("v_lshl_add_u32 v9, v11, 3, v9")
    a("v_lshlrev_b32 v13, 1, v13\nv_xor_b32 v12, v12, v13\nv_lshlrev_b32 v12, 4, v12")
    a("v_lshl_add_u32 v5, v9, 10, v12")
    a("v_mul_u32_u24 v6, 3584, v9\nv_add_u32 v6, v6, v12")
    a("v_lshlrev_b32 v3, 4, v10\nv_lshl_add_u32 v3, v11, 10, v3")
    a("s_and_b32 s50, s5, 1")
    a("s_lshl_b32 s53, s3, 1\ns_add_u32 s53, s53, s50")
    a("s_lshl_b32 s54, s53, 11\ns_xor_b32 s55, s54, 2048")
    a(f"s_mul_i32 s7, s3, 1040\ns_add_u32 s7, s7, {L_OP}\nv_add_u32 v13, s7, v7")
    a("s_mov_b32 s57, 0x3f803f80\nv_mov_b32 v100, 0\nv_mov_b32 v101, 0\nv_mov_b32 v102, 0x3b000000")
    a(f"s_waitcnt vmcnt({K0+2})")
    stamp(2)
    for i in range(4): a(f"v_dot2c_f32_bf16 v100, s57, v{96+i}\nv_dot2c_f32_bf16 v101, v{96+i}, v{96+i}")
    for i in range(4): unpack(112+2*i, 113+2*i, 96+i)
    wred2(100, 101)
    a("v_readlane_b32 s58, v100, 63\nv_readlane_b32 s59, v101, 63")
    stats("s58", "s59", 109, 102)
    for j in range(4): a(f"v_pk_add_f32 v[{112+2*j}:{113+2*j}], v[{112+2*j}:{113+2*j}], v[110:111] op_sel_hi:[1,0] neg_lo:[0,1] neg_hi:[0,1]")
    stats2(109)
    for j in range(4): a(f"v_cvt_pk_bf16_f32 v{96+j}, v{112+2*j}, v{113+2*j}")
    for j in range(4): unpack(112+2*j, 113+2*j, 96+j)
    for j in range(4): a(f"v_pk_mul_f32 v[{112+2*j}:{113+2*j}], v[{112+2*j}:{113+2*j}], v[110:111] op_sel:[0,1] op_sel_hi:[1,1]")
    for j in range(4): a(f"v_cvt_pk_bf16_f32 v{96+j}, v{112+2*j}, v{113+2*j}")
    a("ds_write_b128 v13, v[96:99]")
    for t in range(K0, K0+K1): kload(t)
    for i in range(16): a(f"v_mov_b32 v{80+i}, 0")
    a(f"v_add_u32 v13, {L_QL}, v7")
    a(f"v_and_b32 v12, 3, v10\nv_lshlrev_b32 v12, 5, v12\nv_add_u32 v12, {L_MX}, v12")
    a(f"s_lshl_b32 s7, s3, 2\nv_add_u32 v9, s7, v12")
    a(f"s_mov_b32 s57, {hex(SCALE)}\ns_mov_b32 s58, {hex(LOG2E)}\ns_mov_b32 s59, 0x05040100\ns_mov_b32 s60, 0x07060302")
    a(f"s_mul_i32 s7, s3, {RW}\ns_add_u32 s7, s7, {L_RD}\nv_mul_u32_u24 v15, {RG}, v11\nv_lshl_add_u32 v15, v10, 4, v15\nv_add_u32 v15, s7, v15")
    a("s_lshr_b32 s7, s5, 2\ns_and_b32 s61, s5, 2\ns_lshl_b32 s61, s61, 2\ns_add_u32 s61, s61, s7")
    a("s_lshl_b32 s98, s3, 13\ns_lshl_b32 s7, s50, 11\ns_add_u32 s98, s98, s7\ns_lshl_b32 s7, s61, 4\ns_add_u32 s98, s98, s7\ns_add_u32 s98, s98, s6")
    a(f"s_lshl_b32 s99, s3, 4\ns_add_u32 s99, s99, s61\ns_lshl_b32 s99, s99, 1\ns_add_u32 s99, s99, s50\ns_lshl_b32 s99, s99, 2\ns_add_u32 s99, s99, s6\ns_add_u32 s99, s99, {O_LSE}")
    a(f"s_waitcnt vmcnt({K0+K1}) lgkmcnt(0)\ns_barrier")
    if BQ: a("s_barrier")
    stamp(3)
    for t in range(K0+K1, 8): kload(t)
    a("s_barrier")
    for i in range(M1): vload(i)
    if M1: a("s_barrier")
    if PAIR: a("s_barrier")
    for i in range(M1, 8): vload(i)
    a("s_cmp_ge_u32 s5, 30\ns_cbranch_scc1 L_D\ns_cmp_ge_u32 s5, 16\ns_cbranch_scc1 L_G")

    def attn(role, hook):
        n = hook(0)
        stamp(4)
        if debug and role != "W": a(f"s_waitcnt vmcnt({8+n})"); stamp(14); a(f"s_waitcnt vmcnt({n if DIAG else 8+n-M1})"); stamp(15)
        a("s_barrier")
        stamp(5)
        a(f"ds_read_b128 v[104:107], v13\nv_mov_b32 v110, {L_MD}\nds_read_b32 v108, v110")
        a(f"s_waitcnt vmcnt({8 + n}) lgkmcnt(0)")
        D = [96] + [16+4*(t-1) for t in range(1, 8)]
        for t in range(8): mfma(D[t], 16+4*t, 104)
        def op(k, t):
            tt = t & 3; j = (tt + k) & 3
            if k < 3: a(f"v_add_f32_dpp v{D[t]+tt}, v{D[t]+j}, v{D[t]+tt} {rot(j, tt)} row_mask:0xf bank_mask:0xf")
            else: a(f"v_add_f32_dpp v{100+(t>>2)}, v{D[t]+j}, v{D[t]+tt} {rot(j, tt)} row_mask:0xf bank_mask:{hex(1<<tt)}")
        for t in range(8): op(1, t)
        a("v_readfirstlane_b32 s97, v108")
        od = [0, 4, 1, 5, 2, 6, 3, 7]
        for i in range(11):
            if i < 8: op(2, od[i])
            if i >= 3: op(3, od[i-3])
        a("v_cvt_pk_bf16_f32 v102, v100, v101"); unpack(100, 101, 102)
        a("v_mul_f32 v100, s57, v100\nv_mul_f32 v101, s57, v101")
        a("v_cvt_pk_bf16_f32 v102, v100, v101"); unpack(100, 101, 102)
        def allred(opn):
            a(f"v_{opn}_f32 v102, v100, v101")
            a(f"v_{opn}_f32_dpp v102, v102, v102 row_ror:4 row_mask:0xf bank_mask:0xf\nv_{opn}_f32_dpp v102, v102, v102 row_ror:8 row_mask:0xf bank_mask:0xf")
            a(f"v_mov_b32 v103, v102\nv_permlane16_swap_b32 v102, v103\nv_{opn}_f32 v102, v102, v103")
            a(f"v_mov_b32 v103, v102\nv_permlane32_swap_b32 v102, v103\nv_{opn}_f32 v102, v102, v103")
        allred("max")
        a("ds_write_b32 v9, v102")
        a("s_waitcnt lgkmcnt(0)\ns_barrier")
        a("ds_read_b128 v[104:107], v12\nds_read_b128 v[108:111], v12 offset:16")
        a("s_waitcnt lgkmcnt(0)")
        a("v_max3_f32 v102, v104, v105, v106\nv_max3_f32 v103, v107, v108, v109\nv_max3_f32 v102, v102, v110, v111\nv_max_f32 v104, v102, v103")
        a("v_sub_f32 v100, v100, v104\nv_sub_f32 v101, v101, v104\nv_mul_f32 v100, s58, v100\nv_mul_f32 v101, s58, v101\nv_exp_f32 v100, v100\nv_exp_f32 v101, v101")
        a("v_readlane_b32 s101, v104, s3")
        a("v_cvt_pk_bf16_f32 v105, v100, v101")
        allred("add")
        a(f"ds_write_b32 v9, v102 offset:{L_LS-L_MX}")
        for x in range(4):
            for c in range(4): a(f"v_mov_b32_dpp v{80+4*x+c}, v105 {rot(c, x)} row_mask:0xf bank_mask:{hex(1<<x)}")
        stamp(6)
        n += hook(1)
        a(f"s_lshl_b32 s7, s3, 11\ns_add_u32 s7, s7, {L_OP}\nv_add_u32 v12, s7, v8\nv_add_u32 v13, 1024, v12")
        a(f"s_lshl_b32 s7, s3, 9\ns_add_u32 s7, s7, {L_OP}\nv_and_b32 v106, 3, v1\nv_lshrrev_b32 v107, 2, v1\nv_lshlrev_b32 v104, 3, v107\nv_lshl_add_u32 v104, v106, 7, v104\nv_add_u32 v104, s7, v104")
        a(f"s_lshl_b32 s7, s3, 5\ns_add_u32 s7, s7, {L_LS}\nv_mov_b32 v105, s7")
        a("v_and_b32 v9, 7, v107\nv_lshlrev_b32 v9, 8, v9\nv_lshl_add_u32 v9, v106, 2, v9\nv_lshrrev_b32 v107, 5, v1\nv_lshl_add_u32 v9, v107, 12, v9")
        for c in range(4):
            a(f"s_waitcnt vmcnt({n + 6 - 2*c})")
            for x in range(4):
                a(f"v_perm_b32 v{16+8*x+c}, v{48+4*(2*c+1)+x}, v{48+4*(2*c)+x}, s59")
                a(f"v_perm_b32 v{20+8*x+c}, v{48+4*(2*c+1)+x}, v{48+4*(2*c)+x}, s60")
        stamp(7)
        for x in range(4):
            mfma(96, 80+4*x, 16+8*x, None if x == 0 else 96)
            mfma(100, 80+4*x, 20+8*x, None if x == 0 else 100)
        hook(2)
        a("ds_write2_b32 v12, v96, v100 offset0:0 offset1:1\nds_write2_b32 v12, v97, v101 offset0:128 offset1:129")
        a("ds_write2_b32 v13, v98, v102 offset0:0 offset1:1\nds_write2_b32 v13, v99, v103 offset0:128 offset1:129")
        a("s_waitcnt lgkmcnt(0)\ns_barrier")
        stamp(8)
        a(f"s_cmp_ge_u32 s3, 4\ns_cbranch_scc1 L_pub_done{role}")
        a("ds_read_b128 v[96:99], v105\nds_read_b128 v[100:103], v105 offset:16")
        for w in range(8): a(f"ds_read_b64 v[{16+2*w}:{17+2*w}], v104 offset:{w*2048}")
        a("s_waitcnt lgkmcnt(8)" if not debug else "s_waitcnt lgkmcnt(0)")
        pk("add", 96, 96, 98); pk("add", 100, 100, 102); pk("add", 96, 96, 100); a("v_add_f32 v96, v96, v97")
        a("v_rcp_f32 v97, v96\nv_log_f32 v98, v96")
        a("s_waitcnt lgkmcnt(0)")
        pk("add", 16, 16, 18); pk("add", 20, 20, 22); pk("add", 24, 24, 26); pk("add", 28, 28, 30)
        pk("add", 16, 16, 20); pk("add", 24, 24, 28); pk("add", 16, 16, 24)
        a("v_mul_f32 v16, v16, v97\nv_mul_f32 v17, v17, v97\nv_cvt_pk_bf16_f32 v16, v16, v17")
        a("v_mov_b32 v99, s101\nv_fmac_f32 v98, s58, v99")
        a("v_min_u32 v16, -2, v16\nv_min_u32 v98, -2, v98")
        a(f"buffer_store_dword v16, v9, {sWS}, s98 offen")
        a("s_mov_b64 exec, 1")
        a(f"buffer_store_dword v98, off, {sWS}, s99")
        a(f"s_mov_b64 exec, -1\ns_cmp_eq_u32 s97, 0\ns_cbranch_scc1 L_pub_done{role}")
        a(f"s_lshl_b32 s7, s5, 10\ns_add_u32 s7, s7, s6\ns_lshl_b32 s49, s3, 8\ns_add_u32 s7, s7, s49\ns_add_u32 s7, s7, {BX}\ns_add_u32 s49, s99, {BX}\nv_lshlrev_b32 v4, 2, v1")
        a(f"buffer_store_dword v98, off, {sWS}, s49 sc1\nbuffer_store_dword v16, v4, {sWS}, s7 offen sc1")
        a(f"L_pub_done{role}:")
        a("s_barrier")
        stamp(9)
        if debug and GS and role != "W": a(f"s_sleep {GS}")
        hook(3)

    def hookW(p):
        n = 0
        if p == 0:
            a("s_lshl_b32 s51, s4, 19\ns_lshl_b32 s7, s53, 15\ns_add_u32 s51, s51, s7\ns_lshl_b32 s7, s5, 6\ns_add_u32 s51, s51, s7\ns_xor_b32 s52, s51, 0x8000")
            a("s_and_b32 s7, s5, 7\ns_lshl_b32 s62, s7, 10\ns_and_b32 s7, s3, 3\ns_lshl_b32 s7, s7, 8\ns_add_u32 s62, s62, s7")
            a("v_lshlrev_b32 v6, 2, v1")
        if p == 1: a(f"buffer_load_dword v112, v6, {sX}, s62 offen"); n += 1
        if p == W1: dma2(5, sWO, "s51", "s54", 1024); n += 2
        if p == W2: dma2(5, sWO, "s52", "s55", 1024); n += 2
        if p == 1:
            a(f"s_lshl_b32 s7, s3, 12\ns_add_u32 s48, s6, s7\nv_add_u32 v14, s7, v14\nv_xor_b32 v3, 32, v14")
            a(f"s_lshr_b32 s7, s3, 1\ns_lshl_b32 s7, s7, 7\ns_add_u32 s63, s6, s7\ns_add_u32 s63, s63, {O_LSE}")
            a("v_lshlrev_b32 v2, 3, v10")
        return n
    attn("W", hookW)
    def w_loads():
        a(f"buffer_load_dwordx2 v[32:33], v2, {sWS}, s63 offen sc1")
        for u in range(4): a(f"buffer_load_dwordx4 v[{16+4*u}:{19+4*u}], v7, {sWS}, s48 offen offset:{u*1024} sc1")
    w_loads()
    a("v_and_b32 v9, 7, v10\nv_lshrrev_b32 v13, 3, v10\nv_lshl_add_u32 v13, v9, 1, v13")
    a("v_lshlrev_b32 v12, 11, v13\nv_lshl_add_u32 v12, v11, 4, v12")
    a(f"s_lshl_b32 s7, s3, 7\ns_add_u32 s49, s6, s7\ns_add_u32 s49, s49, {BX}\ns_add_u32 s55, s63, {BX}")
    a("s_waitcnt vmcnt(5)")
    stamp(10)
    trfrag(48, 14, 0); trfrag(56, 3, 0); trfrag(52, 14, 2048); trfrag(60, 3, 2048)
    a("s_cmp_eq_u32 s97, 0\ns_cbranch_scc1 L_w_go\ns_waitcnt vmcnt(0)")
    a("L_w_b:")
    a(f"buffer_load_dwordx2 v[32:33], v2, {sWS}, s55 offen sc1")
    for jp in range(2):
        for ks in range(2):
            a(f"buffer_load_dwordx4 v[{16+8*jp+4*ks}:{19+8*jp+4*ks}], v12, {sWS}, s49 offen offset:{jp*1024+ks*64} sc1")
    a("s_branch L_w_x")
    a("L_w_poll:")
    if MASKP: a("s_mov_b64 exec, vcc")
    spin(); a("s_cmp_eq_u32 s97, 0\ns_cbranch_scc0 L_w_b")
    w_loads()
    a("L_w_x:")
    if MASKP: a("s_mov_b64 exec, -1")
    a("L_w_go:")
    a("s_waitcnt vmcnt(3) lgkmcnt(0)")
    mfma(96, 48, 16); mfma(104, 56, 16)
    a("v_max_f32 v36, v32, v33")
    a("v_max_f32_dpp v36, v36, v36 row_ror:8 row_mask:0xf bank_mask:0xf")
    a("v_sub_f32 v34, v32, v36\nv_sub_f32 v35, v33, v36\nv_exp_f32 v34, v34\nv_exp_f32 v35, v35")
    a("s_waitcnt vmcnt(2)")
    mfma(96, 52, 20, 96); mfma(104, 60, 20, 104)
    a("v_add_f32 v36, v34, v35")
    a("v_add_f32_dpp v36, v36, v36 row_ror:8 row_mask:0xf bank_mask:0xf\nv_rcp_f32 v36, v36")
    a("s_waitcnt vmcnt(1)")
    mfma(100, 48, 24); mfma(108, 56, 24)
    a("v_mul_f32 v34, v34, v36\nv_mul_f32 v38, v35, v36")
    a("s_waitcnt vmcnt(0)")
    mfma(100, 52, 28, 100); mfma(108, 60, 28, 108)
    check_sent(range(16, 34), 37)
    if debug: a("s_cmp_lg_u32 s96, 300000\ns_cbranch_scc1 L_dw1"); stamp(2); a("L_dw1:")
    a("s_cbranch_vccnz L_w_poll")
    stamp(11)
    for r in (96, 98, 104, 106): pk("mul", r, r, 34, "op_sel_hi:[1,0]")
    for r in (96, 98, 104, 106): a(f"v_pk_fma_f32 v[{r}:{r+1}], v[{r+4}:{r+5}], v[38:39], v[{r}:{r+1}] op_sel_hi:[1,0,1]")
    for r in range(4): a(f"v_add_f32_dpp v{96+r}, v{96+r}, v{96+r} row_ror:8 row_mask:0xf bank_mask:0x3")
    for r in range(4): a(f"v_add_f32_dpp v{96+r}, v{104+r}, v{104+r} row_ror:8 row_mask:0xf bank_mask:0xc")
    a("ds_write_b128 v15, v[96:99]")
    a("s_waitcnt lgkmcnt(0)\ns_barrier")
    stamp(12); cnt(1)
    a("s_cmp_ge_u32 s5, 8\ns_cbranch_scc1 L_kv_end\ns_cmp_ge_u32 s3, 4\ns_cbranch_scc1 L_kv_end")
    a(f"s_lshl_b32 s52, s62, 1\ns_add_u32 s52, s52, {WP}\ns_add_u32 s100, s100, 1\ns_and_b32 s100, s100, 0xff")
    unpack(120, 121, 112)
    a(f"s_and_b32 s7, s5, 4\ns_add_u32 s7, s7, s3\ns_lshl_b32 s48, s7, 10\ns_and_b32 s7, s5, 3\ns_lshl_b32 s7, s7, 4\ns_add_u32 s48, s48, s7\ns_add_u32 s48, s48, s6\ns_add_u32 s48, s48, {O_XN}")
    a("v_lshrrev_b32 v9, 2, v1\nv_lshlrev_b32 v9, 6, v9\nv_and_b32 v5, 3, v1\nv_lshl_add_u32 v9, v5, 2, v9")
    a(f"s_add_u32 s49, s62, s6\ns_add_u32 s49, s49, {O_XN+BX}")
    a(f"s_lshl_b32 s7, s5, 7\ns_add_u32 s54, s6, s7\ns_add_u32 s54, s54, {O_H}\ns_and_b32 s7, s4, 1\ns_lshl_b32 s7, s7, 7\ns_sub_u32 s54, s54, s7\ns_xor_b32 s55, s54, {BX}")
    a("s_bitcmp1_b32 s4, 0\ns_cselect_b32 s58, 0, -1\ns_cselect_b32 s59, -1, 0")
    a(f"s_lshl_b32 s7, s3, 3\ns_add_u32 s7, s7, {L_MX}\nv_mov_b32 v12, s7\nv_mov_b32 v13, {L_MX}")
    a("s_mov_b64 vcc, -1")
    a("L_r_poll:")
    if MASKP: a("s_wqm_b64 exec, vcc")
    spin()
    a("s_mov_b32 s51, s52")
    for r in range(8):
        a(f"buffer_load_dwordx2 v[{16+2*r}:{17+2*r}], v8, {sWS}, s51 offen sc1")
        if r < 7: a("s_add_u32 s51, s51, 16384")
    if MASKP: a("s_mov_b64 exec, -1")
    for r in range(8):
        a(f"s_waitcnt vmcnt({7-r})")
        a(f"v_xor_b32 v{32+2*r}, s100, v{16+2*r}\nv_xor_b32 v{33+2*r}, s100, v{17+2*r}")
        if r == 0: a("v_or_b32 v98, v32, v33")
        else:
            pk("add", 96, 32 if r == 1 else 96, 32+2*r)
            a(f"v_or3_b32 v98, v98, v{32+2*r}, v{33+2*r}")
    a("v_cvt_pk_bf16_f32 v100, v96, v97\nv_and_b32 v98, 0xff, v98\nv_cmp_ne_u32 vcc, 0, v98")
    unpack(96, 97, 100)
    a("s_cbranch_vccnz L_r_poll")
    stamp(13)
    pk("add", 96, 96, 120)
    a("v_cvt_pk_bf16_f32 v100, v96, v97")
    unpack(96, 97, 100)
    a("v_add_f32 v108, v96, v97\nv_mul_f32 v109, v96, v96\nv_fmac_f32 v109, v97, v97")
    wred2(108, 109)
    a("s_mov_b32 exec_lo, 0\ns_mov_b32 exec_hi, 0x80000000")
    a("ds_write_b64 v12, v[108:109]")
    a("s_mov_b64 exec, -1\nv_min_u32 v100, -2, v100")
    a("s_waitcnt lgkmcnt(0)\ns_barrier")
    stamp(15)
    a("ds_read_b128 v[104:107], v13\nds_read_b128 v[108:111], v13 offset:16")
    a("s_waitcnt lgkmcnt(0)")
    pk("add", 104, 104, 106); pk("add", 108, 108, 110); pk("add", 104, 104, 108)
    stats("v104", "v105", 109)
    a(f"v_pk_add_f32 v[96:97], v[96:97], v[110:111] op_sel_hi:[1,0] neg_lo:[0,1] neg_hi:[0,1]")
    stats2(109)
    a("v_cvt_pk_bf16_f32 v101, v96, v97")
    unpack(96, 97, 101)
    a("v_mul_f32 v96, v96, v111\nv_mul_f32 v97, v97, v111\nv_cvt_pk_bf16_f32 v101, v96, v97\nv_min_u32 v101, -2, v101")
    a(f"buffer_store_dword v101, v9, {sWS}, s48 offen")
    stamp(14)
    a("s_lshr_b32 s7, s4, 1\ns_cmp_lg_u32 s7, s3\ns_cbranch_scc1 L_r_noh")
    a("s_mov_b64 exec, s[58:59]")
    a(f"buffer_store_dword v100, v6, {sWS}, s54 offen")
    a("s_cmp_eq_u32 s97, 0\ns_cbranch_scc1 L_r_noh")
    a(f"buffer_store_dword v100, v6, {sWS}, s55 offen sc1")
    a("L_r_noh:")
    a("s_mov_b64 exec, -1\ns_cmp_eq_u32 s97, 0\ns_cbranch_scc1 L_kv_end")
    a(f"buffer_store_dword v101, v6, {sWS}, s49 offen sc1")
    a("s_branch L_kv_end")
    a("L_G:")
    def hookG(p):
        n = 0
        if p == 0:
            a("s_sub_u32 s61, s5, 16")
            a("s_mul_i32 s7, s4, 7\ns_lshr_b32 s62, s61, 1\ns_add_u32 s62, s62, s7")
            a(f"s_mul_i32 s51, s53, {32*3584}\ns_lshl_b32 s7, s62, 6\ns_add_u32 s51, s51, s7")
            a(f"s_xor_b32 s7, s53, 1\ns_mul_i32 s52, s7, {32*3584}\ns_lshl_b32 s7, s62, 6\ns_add_u32 s52, s52, s7")
            a("s_lshl_b32 s54, s3, 13\ns_lshl_b32 s7, s50, 11\ns_add_u32 s54, s54, s7")
            a("s_lshl_b32 s7, s61, 3\ns_add_u32 s7, s7, s3\ns_lshl_b32 s63, s7, 14\ns_lshl_b32 s7, s4, 7\ns_add_u32 s63, s63, s7")
            a("s_bitcmp1_b32 s62, 0\ns_cbranch_scc0 L_t_nosw")
            a("s_mov_b64 s[0:1], s[28:29]\ns_mov_b64 s[28:29], s[32:33]\ns_mov_b64 s[32:33], s[0:1]\ns_xor_b32 s54, s54, 4096")
            a("L_t_nosw:")
            a("s_xor_b32 s55, s54, 2048")
            a("v_lshrrev_b32 v113, 2, v1\nv_lshlrev_b32 v113, 10, v113\nv_and_b32 v112, 3, v1\nv_lshl_add_u32 v113, v112, 5, v113")
        if p == PF: a(f"buffer_load_dword v112, v113, {sD}, s63 offen {NTW}"); n += 1
        if p == G1: dma2(6, sG, "s51", "s54", 3584); n += 2
        return n
    attn("G", hookG)
    dma2(6, sG, "s52", "s55", 3584)
    a("s_xor_b32 s54, s54, 4096\ns_xor_b32 s55, s55, 4096")
    dma2(6, sU, "s51", "s54", 3584); dma2(6, sU, "s52", "s55", 3584)
    a(f"s_lshl_b32 s7, s3, 13\nv_add_u32 v14, s7, v14\nv_xor_b32 v9, 32, v14")
    a(f"v_and_b32 v12, 3, v10\nv_lshlrev_b32 v13, 10, v12\nv_lshl_add_u32 v13, v11, 4, v13\nv_lshlrev_b32 v12, 4, v12\nv_lshl_add_u32 v12, v11, 6, v12")
    a(f"s_lshl_b32 s48, s50, 12\ns_add_u32 s48, s48, s6\ns_add_u32 s48, s48, {O_XN}\ns_lshl_b32 s7, s3, 7\ns_add_u32 s49, s48, s7\ns_add_u32 s49, s49, {BX}\ns_lshl_b32 s7, s3, 9\ns_add_u32 s48, s48, s7")
    a("s_waitcnt vmcnt(0)")
    stamp(10)
    for t in range(2):
        for m in range(2):
            for ks in range(2): trfrag(48 + 16*t + 8*m + 4*ks, 14 if t == 0 else 9, m*4096 + ks*2048)
    a("s_branch L_g_poll")
    a("L_g_b:")
    a(f"buffer_load_dwordx4 v[16:19], v13, {sWS}, s49 offen sc1\nbuffer_load_dwordx4 v[20:23], v13, {sWS}, s49 offen offset:64 sc1")
    a("s_branch L_g_go")
    a("L_g_poll:")
    spin(); a("s_cmp_eq_u32 s97, 0\ns_cbranch_scc0 L_g_b")
    a(f"buffer_load_dwordx4 v[16:19], v12, {sWS}, s48 offen sc1\nbuffer_load_dwordx4 v[20:23], v12, {sWS}, s48 offen offset:256 sc1")
    a("L_g_go:")
    a("s_waitcnt vmcnt(1) lgkmcnt(0)")
    for c in range(4): mfma(96+4*c, 48+8*c, 16)
    a("s_waitcnt vmcnt(0)")
    for c in range(4): mfma(96+4*c, 52+8*c, 20, 96+4*c)
    check_sent(range(16, 24), 24)
    a("s_cbranch_vccnz L_g_poll")
    stamp(11)
    for c in range(1, 4):
        for r in range(4): a(f"v_mov_b32_dpp v{96+r}, v{96+4*c+r} quad_perm:[0,1,2,3] row_mask:0xf bank_mask:{hex(1<<c)}")
    a("ds_write_b128 v15, v[96:99]")
    a("s_waitcnt lgkmcnt(0)\ns_barrier")
    stamp(12)
    a("s_branch L_kv_end")
    a("L_D:")
    def hookD(p):
        if p == 0:
            a("s_lshl_b32 s51, s4, 7\ns_mul_i32 s7, s50, 0x20040\ns_add_u32 s51, s51, s7\ns_lshl_b32 s7, s3, 18\ns_add_u32 s51, s51, s7")
            a("s_lshl_b32 s54, s53, 13")
        return 0
    attn("D", hookD)
    a("s_cmp_eq_u32 s3, 7\ns_cbranch_scc1 L_end")
    for ks in range(8):
        dma2(5, sD, "s51", "s54", 1024)
        if ks == 3: a("s_sub_u32 s51, s51, 98304\ns_xor_b32 s51, s51, 0x20000\ns_sub_u32 s54, s54, 6144\ns_xor_b32 s54, s54, 8192")
        elif ks < 7: a("s_add_u32 s51, s51, 32768\ns_add_u32 s54, s54, 2048")
    a(f"s_lshl_b32 s7, s3, 14\nv_add_u32 v14, s7, v14\nv_xor_b32 v9, 32, v14")
    a(f"s_lshl_b32 s51, s3, 12\ns_add_u32 s51, s51, {HH}")
    a("s_waitcnt vmcnt(0)")
    stamp(10)
    for ks in range(8):
        trfrag(32+8*ks, 14, ks*2048); trfrag(36+8*ks, 9, ks*2048)
    a("s_waitcnt lgkmcnt(0)\ns_barrier")
    stamp(13)
    a("s_mov_b64 vcc, -1")
    a("L_d_poll:")
    if MASKP: a("s_mov_b64 exec, vcc")
    spin()
    for u in range(4): a(f"buffer_load_dwordx4 v[{16+4*u}:{19+4*u}], v7, {sWS}, s51 offen offset:{u*1024} sc1")
    if MASKP: a("s_mov_b64 exec, -1")
    for u in range(4):
        a(f"s_waitcnt vmcnt({3-u})")
        for hf in range(2):
            for t in range(2): mfma(96+8*t+4*hf, 32+8*(2*u+hf)+4*t, 16+4*u, None if u == 0 else 96+8*t+4*hf)
    check_sent(range(16, 32), 112)
    a("s_cbranch_vccnz L_d_poll")
    stamp(11)
    for r in range(4): a(f"v_add_f32_dpp v{96+r}, v{100+r}, v{96+r} row_ror:8 row_mask:0xf bank_mask:0x3")
    for r in range(4): a(f"v_add_f32_dpp v{96+r}, v{104+r}, v{108+r} row_ror:8 row_mask:0xf bank_mask:0xc")
    a("ds_write_b128 v15, v[96:99]")
    a("s_waitcnt lgkmcnt(0)\ns_barrier")
    stamp(12)
    a("L_kv_end:")
    if debug:
        a(f"s_cmp_lg_u32 s3, {DW}\ns_cbranch_scc1 L_end")
        a(f"s_lshl_b32 s7, s2, 8\ns_add_u32 s7, s7, {hex(STAMP)}")
        a("L_stamps:")
        a("s_waitcnt lgkmcnt(0)\nv_mov_b32 v0, 0")
        for i in range(16):
            a(f"v_mov_b32 v2, s{64+2*i}\nv_mov_b32 v3, s{65+2*i}")
            a(f"buffer_store_dwordx2 v[2:3], v0, {sWS}, s7 offen offset:{8*i}")
            a("s_nop 1")
    a("s_endpgm")

    a("L_aux:")
    a("s_setprio 3")
    for i in range(4): a(f"v_mov_b32 v{100+i}, -1")
    a("s_lshl_b32 s58, s5, 1\ns_add_u32 s58, s58, s3\ns_lshl_b32 s7, s58, 10\ns_add_u32 s59, s7, s6")
    a(f"s_sub_u32 s54, s7, {43*1024}\ns_min_u32 s54, s54, 2560\ns_mul_i32 s55, s4, 3584\ns_add_u32 s54, s54, s55\ns_add_u32 s54, s54, {HH}")
    a("s_getreg_b32 s63, hwreg(HW_REG_XCC_ID, 0, 4)")
    if SLOW: a("s_and_b32 s63, s5, 1")
    a("s_waitcnt lgkmcnt(0)")
    a("s_load_dword s48, s[40:41], 0")
    if B0: a("s_barrier")
    a("s_cmp_ge_u32 s58, 43\ns_cbranch_scc1 L_a_c2")
    a(f"buffer_store_dwordx4 v[100:103], v7, {sWS}, s59 offen")
    a("s_branch L_a_c3")
    a("L_a_c2:")
    a("s_cmp_ge_u32 s58, 47\ns_cbranch_scc1 L_a_c3")
    a(f"buffer_store_dwordx4 v[100:103], v7, {sWS}, s54 offen sc1")
    a("L_a_c3:")
    stamp(1)
    a("v_lshlrev_b32 v14, 10, v11\nv_lshl_add_u32 v14, v9, 7, v14\nv_lshl_add_u32 v14, v12, 3, v14\nv_lshrrev_b32 v4, 1, v9\nv_lshl_add_u32 v14, v4, 5, v14\nv_lshl_add_u32 v14, v13, 6, v14")
    a("s_lshl_b32 s7, s3, 6\nv_xor_b32 v14, s7, v14\nv_xor_b32 v15, 32, v14")
    a(f"v_lshrrev_b32 v4, 3, v10\nv_lshl_add_u32 v4, v4, 2, v12\nv_mul_u32_u24 v4, 1040, v4\nv_lshl_add_u32 v4, v11, 4, v4\ns_lshr_b32 s57, s5, 3\ns_lshl_b32 s7, s57, 8\ns_add_u32 s7, s7, {L_OP}\nv_add_u32 v4, s7, v4")
    a("v_and_b32 v5, 31, v1\nv_lshrrev_b32 v6, 5, v1\nv_lshlrev_b32 v2, 2, v5\nv_lshl_add_u32 v2, v6, 15, v2")
    a(f"s_lshl_b32 s55, s4, 16\ns_add_u32 s55, s55, {QB}")
    a("s_lshl_b32 s51, s57, 11\ns_and_b32 s7, s5, 7\ns_lshl_b32 s7, s7, 8\ns_add_u32 s51, s51, s7\ns_lshl_b32 s7, s3, 7\ns_add_u32 s51, s51, s7\ns_add_u32 s51, s51, s55")
    a(f"s_add_u32 s52, s51, 8192\ns_add_u32 s53, s51, 16384\ns_add_u32 s54, s51, 24576\nv_add_u32 v3, {QX}, v2\nv_mov_b32 v104, 0xff")
    a(f"s_lshr_b32 s7, s5, 2\ns_lshl_b32 s60, s7, 13\ns_add_u32 s60, s60, s55\ns_lshl_b32 s7, s3, 7\ns_add_u32 s60, s60, s7\ns_add_u32 s61, s60, {QX}\ns_add_u32 s62, s60, 4096\ns_mov_b32 s49, s60")
    a("v_lshrrev_b32 v106, 3, v1\nv_and_b32 v5, 7, v1\nv_and_b32 v13, 1, v106\nv_lshlrev_b32 v106, 8, v106\nv_lshl_add_u32 v106, v5, 4, v106")
    a(f"v_lshlrev_b32 v13, 9, v13\nv_lshrrev_b32 v5, 1, v5\nv_lshl_add_u32 v13, v5, 6, v13\nv_lshl_add_u32 v13, v11, 4, v13\nv_and_b32 v5, 1, v1\nv_lshl_add_u32 v13, v5, 3, v13\ns_lshl_b32 s7, s3, 8\ns_add_u32 s7, s7, {L_QL}\nv_add_u32 v13, s7, v13")
    a("v_lshlrev_b32 v105, 1, v12")
    a("s_waitcnt lgkmcnt(0)\ns_add_u32 s48, s48, 1\ns_lshl_b32 s63, s63, 4\ns_and_b32 s7, s48, 15\ns_or_b32 s63, s63, s7\nv_lshrrev_b32 v105, v105, s63")
    a("s_bfe_u32 s98, s63, 0x20000\ns_bfe_u32 s99, s63, 0x20002\ns_bfe_u32 s100, s63, 0x20004\ns_bfe_u32 s101, s63, 0x20006")
    a("s_waitcnt vmcnt(0)")
    stamp(2)
    a("s_barrier")
    stamp(3)
    if debug: a("s_waitcnt lgkmcnt(0)")
    for ks in range(4):
        a(f"ds_read_b128 v[{16+4*ks}:{19+4*ks}], v4 offset:{ks*64}")
        trfrag(32+8*ks, 14, ks*4096, 512); trfrag(36+8*ks, 15, ks*4096, 512)
        if ks == 2: a("s_waitcnt lgkmcnt(10)"); mfma(96, 16, 32); mfma(100, 16, 36)
    for ks in range(1, 4):
        a(f"s_waitcnt lgkmcnt({5*(3-ks)})")
        mfma(96, 16+4*ks, 32+8*ks, 96); mfma(100, 16+4*ks, 36+8*ks, 100)
    for j in range(4): a(f"v_mov_b32_dpp v{96+j}, v{100+j} quad_perm:[0,1,2,3] row_mask:0xa bank_mask:0xf")
    for j in range(4): a(f"v_bfi_b32 v{96+j}, 3, v105, v{96+j}")
    for j in range(4): a(f"buffer_store_dword v{96+j}, v2, {sWS}, s{51+j} offen")
    if BQ: a("s_barrier")
    stamp(4)
    a("v_lshrrev_b32 v9, 3, v1\nv_and_b32 v12, 7, v1\nv_lshrrev_b32 v4, 1, v12")
    a(f"v_mul_u32_u24 v15, {RG}, v4\nv_lshl_add_u32 v15, v9, 4, v15\nv_lshl_add_u32 v15, v5, 3, v15\ns_lshl_b32 s7, s3, 7\ns_add_u32 s7, s7, {L_RD}\nv_add_u32 v15, s7, v15")
    a("v_lshlrev_b32 v5, 2, v12\nv_lshl_add_u32 v6, v9, 10, v5")
    a("s_or_b32 s96, s96, 15")
    a("s_barrier")
    if M1: a("s_barrier")
    stamp(8)
    def qld():
        for s in range(4): a(f"buffer_load_dwordx4 v[{16+4*s}:{19+4*s}], v106, {sWS}, {'s49' if s < 2 else 's62'} offen offset:{(s%2)*2048} sc1")
    qld()
    if PAIR: a("s_barrier")
    stamp(11)
    a("s_branch L_q_ld")
    a("L_q_poll:")
    spin(); a("s_and_b32 s7, s96, 7\ns_cselect_b32 s49, s60, s61\ns_cbranch_scc1 L_q_ld2")
    for j in range(4): a(f"buffer_store_dword v{96+j}, v3, {sWS}, s{51+j} offen sc1")
    a("L_q_ld2:")
    a("s_add_u32 s62, s49, 4096")
    qld()
    a("L_q_ld:")
    a("s_waitcnt vmcnt(0)")
    if debug:
        a("s_and_b32 s7, s96, 15\ns_cmp_lg_u32 s7, 15\ns_cbranch_scc1 L_dbg1"); stamp(10); a("L_dbg1:")
    for i in range(16): a(f"v_xor_b32 v{16+i}, s{98+(i&3)}, v{16+i}")
    a("v_or_b32 v32, v16, v17\nv_or_b32 v33, v18, v19")
    for i in range(4, 16, 4): a(f"v_or3_b32 v32, v32, v{16+i}, v{17+i}\nv_or3_b32 v33, v33, v{18+i}, v{19+i}")
    a("v_and_b32 v32, 3, v32\nv_and_b32 v33, 3, v33\nv_cmp_ne_u32 vcc, 0, v32\nv_cmp_ne_u32 s[0:1], 0, v33")
    for i in range(0, 16, 4): a(f"v_and_b32 v{18+i}, -4, v{18+i}\nv_and_b32 v{19+i}, -4, v{19+i}")
    a("s_cbranch_vccnz L_q_poll")
    pk("add", 16, 16, 20); pk("add", 18, 18, 22); pk("add", 24, 24, 28); pk("add", 26, 26, 30); pk("add", 16, 16, 24); pk("add", 18, 18, 26)
    a(f"s_or_b32 s97, s0, s1\nv_mov_b32 v20, s97\nv_mov_b32 v21, {L_MD}")
    a("v_cvt_pk_bf16_f32 v16, v16, v17\nv_cvt_pk_bf16_f32 v17, v18, v19")
    a("ds_write_b64 v13, v[16:17]\nds_write_b32 v21, v20")
    stamp(5)
    a("s_cmp_eq_u32 s97, 0\ns_cbranch_scc1 L_a_fast")
    for j in range(4): a(f"buffer_store_dword v{96+j}, v3, {sWS}, s{51+j} offen sc1")
    for i in range(4): a(f"v_mov_b32 v{100+i}, -1")
    a(f"s_cmp_ge_u32 s58, 43\ns_cbranch_scc1 L_a_s1\ns_add_u32 s7, s59, {BX}")
    a(f"buffer_store_dwordx4 v[100:103], v7, {sWS}, s7 offen sc1")
    a("L_a_s1:")
    a(f"s_add_u32 s49, s6, {O_SY}\ns_lshl_b32 s7, s58, 2\ns_add_u32 s7, s7, s49\nv_mov_b32 v20, s48\nv_lshlrev_b32 v21, 2, v1\ns_waitcnt vmcnt(0)")
    a(f"buffer_store_dword v20, off, {sWS}, s7 sc1")
    a("L_a_s2:")
    spin()
    a(f"buffer_load_dword v22, v21, {sWS}, s49 offen sc1\ns_waitcnt vmcnt(0)\nv_cmp_ne_u32 vcc, s48, v22\ns_cbranch_vccnz L_a_s2")
    a("L_a_fast:")
    a("s_waitcnt lgkmcnt(0)\ns_barrier")
    if TOUCH:
        a("s_cmp_ge_u32 s58, 43\ns_cbranch_scc1 L_a_nt")
        a(f"buffer_load_dwordx4 v[100:103], v7, {sWS}, s59 offen sc1")
        a("L_a_nt:")
    a("s_barrier")
    a("s_barrier")
    a("s_barrier")
    a("s_cmp_ge_u32 s5, 16\ns_cbranch_scc1 L_a_gd")
    a(f"s_lshl_b32 s53, s4, 14\ns_lshl_b32 s7, s5, 7\ns_add_u32 s53, s53, s7\ns_lshl_b32 s7, s3, 6\ns_add_u32 s53, s53, s7\ns_add_u32 s53, s53, {WP}")
    a("v_lshlrev_b32 v6, 1, v6")
    a("s_barrier")
    stamp(6)
    red8(15)
    a("v_bfi_b32 v24, v104, s48, v24\nv_bfi_b32 v25, v104, s48, v25")
    a(f"buffer_store_dwordx2 v[24:25], v6, {sWS}, s53 offen sc1")
    stamp(7)
    a("s_branch L_a_end")
    a("L_a_gd:")
    a("s_cmp_ge_u32 s5, 30\ns_cbranch_scc1 L_a_d")
    a(f"v_lshrrev_b32 v4, 5, v1\nv_bfe_u32 v13, v1, 2, 1\nv_lshl_add_u32 v13, v4, 1, v13\nv_mul_u32_u24 v15, {RG}, v13\nv_and_b32 v13, 3, v9\nv_lshl_add_u32 v15, v13, 4, v15\nv_and_b32 v13, 3, v1\nv_lshl_add_u32 v15, v13, 2, v15")
    a(f"s_lshl_b32 s7, s3, 7\ns_add_u32 s7, s7, {L_RD}\nv_add_u32 v15, s7, v15")
    a("v_and_b32 v14, 31, v1\nv_lshlrev_b32 v14, 1, v14\nv_lshl_add_u32 v14, v4, 8, v14\nv_add_u32 v4, 64, v15")
    a(f"s_mul_i32 s61, s4, 14\ns_add_u32 s61, s61, s5\ns_sub_u32 s61, s61, 16\ns_lshr_b32 s62, s61, 2\ns_lshl_b32 s62, s62, 10\ns_and_b32 s7, s61, 3\ns_lshl_b32 s7, s7, 6\ns_add_u32 s62, s62, s7\ns_lshl_b32 s7, s3, 9\ns_add_u32 s62, s62, s7\ns_add_u32 s62, s62, {HH}")
    a(f"s_lshl_b32 s61, s5, 1\ns_add_u32 s61, s61, s3\ns_lshl_b32 s61, s61, 2\ns_add_u32 s61, s61, s6\ns_add_u32 s61, s61, {O_FLG-128}")
    a(f"s_mov_b32 s57, {hex(LOG2E ^ 0x80000000)}")
    a("s_barrier")
    stamp(6)
    for w in range(4): a(f"ds_read2st64_b32 v[{24+2*w}:{25+2*w}], v15 offset0:{10*w} offset1:{10*w+5}")
    for w in range(4): a(f"ds_read2st64_b32 v[{32+2*w}:{33+2*w}], v4 offset0:{10*w} offset1:{10*w+5}")
    a("s_waitcnt lgkmcnt(4)" if not debug else "s_waitcnt lgkmcnt(0)")
    pk("add", 24, 24, 26); pk("add", 28, 28, 30); pk("add", 24, 24, 28); a("v_add_f32 v24, v24, v25")
    a("v_cvt_pk_bf16_f32 v24, v24, v24\nv_and_b32 v26, s56, v24")
    a("v_mul_f32 v26, s57, v26\nv_exp_f32 v26, v26")
    a("s_waitcnt lgkmcnt(0)")
    pk("add", 32, 32, 34); pk("add", 36, 36, 38)
    a("v_add_f32 v26, 1.0, v26\nv_rcp_f32 v26, v26")
    pk("add", 32, 32, 36); a("v_add_f32 v25, v32, v33")
    a("v_cvt_pk_bf16_f32 v26, v26, v25")
    unpack(25, 26, 26)
    a("v_mul_f32 v26, v26, v25")
    a("v_cvt_pk_bf16_f32 v26, v26, v26\nv_min_u32 v26, -2, v26")
    a(f"buffer_store_short v26, v14, {sWS}, s62 offen sc1")
    stamp(7)
    if DHINT:
        a("s_mov_b64 exec, 1")
        a(f"buffer_store_dword v26, off, {sWS}, s61")
    a("s_branch L_a_end")
    a("L_a_d:")
    a("s_and_b32 s7, s5, 1\ns_lshl_b32 s61, s7, 6\ns_lshl_b32 s7, s3, 5\ns_add_u32 s61, s61, s7\ns_lshl_b32 s62, s4, 7\ns_add_u32 s62, s62, s61")
    a(f"s_add_u32 s52, s61, s6\ns_add_u32 s52, s52, {O_H}\ns_xor_b32 s53, s52, {BX}\nv_lshl_add_u32 v5, v9, 7, v5\ns_cmp_eq_u32 s97, 0\ns_cselect_b32 s51, s52, s53")
    a("L_h_poll:")
    spin()
    a(f"buffer_load_dword v22, v5, {sWS}, s51 offen sc1")
    a("s_waitcnt vmcnt(0)")
    a("v_cmp_eq_u32 vcc, -1, v22\ns_cbranch_vccnz L_h_poll")
    unpack(20, 21, 22)
    stamp(9)
    if DHINT:
        a(f"s_add_u32 s51, s6, {O_FLG}\nv_min_u32 v4, 27, v1\nv_lshlrev_b32 v4, 2, v4\ns_mov_b32 s52, 24")
        a("L_f_poll:")
        a("s_sub_u32 s52, s52, 1\ns_cbranch_scc1 L_f_done")
        a(f"buffer_load_dword v22, v4, {sWS}, s51 offen sc1")
        a("s_waitcnt vmcnt(0)")
        a("v_cmp_eq_u32 vcc, -1, v22\ns_cbranch_vccnz L_f_poll")
        a("L_f_done:")
    stamp(6)
    a("s_barrier")
    a("s_barrier")
    red8(15, 7)
    a("v_cvt_pk_bf16_f32 v24, v24, v25")
    unpack(22, 23, 24)
    pk("add", 22, 22, 20); a("v_cvt_pk_bf16_f32 v22, v22, v23")
    a(f"buffer_store_dword v22, v6, {sOUT}, s62 offen")
    stamp(7)
    a("s_cmp_lg_u32 s62, 0\ns_cbranch_scc1 L_a_end")
    a("v_mov_b32 v22, s48\ns_mov_b64 exec, 1")
    a(f"buffer_store_dword v22, off, {sWS}, 0")
    a("L_a_end:")
    if debug:
        a("s_mov_b64 exec, -1\ns_cmp_lg_u32 s3, 0\ns_cbranch_scc1 L_end")
        a(f"s_lshl_b32 s7, s2, 8\ns_add_u32 s7, s7, {hex(STAMP+128)}\ns_branch L_stamps")
    a("L_end:\ns_endpgm")
    lines = hz.fix(a.l)
    hdr = open("header.txt").read()
    return wrap("\n".join(lines) + "\n", 256, 640, L_END, 128, sgpr=102, header=hdr)

if __name__ == "__main__":
    specs = sys.argv[1:] or ["k6"]
    for sp in specs:
        nm, _, o = sp.partition(":")
        opt = {}
        for kv in filter(None, o.split(",")):
            k, v = kv.split("=")
            try: v = int(v)
            except ValueError: pass
            opt[k] = v
        open(nm + ".s", "w").write(gen(False, **opt))
        open(nm + "d.s", "w").write(gen(True, **opt))
```

```python
import sys
from asmlib import *
import hz

GB=0x40000; GSH=17
O_OB=0; O_XN=0x8000; O_H=0xA000; O_LSE=0xA400; O_FLG=0xA800; O_SY=0xB000; BX=0x10000
WP=0x140000; PO=0x300000; L_DN=65536
QB=0x200000; QX=0x80000
STAMP=128<<20
L_W=0
L_QL=114688
L_MX=L_QL+1024
L_LS=L_MX+128
L_OP=L_LS+128
L_RD=L_OP+16384
L_PB=L_RD+10240
L_MD=L_PB+1152
L_END=L_MD+64
RW=1280; RG=320
sX,sK,sV,sWQ,sWO,sG,sU,sOUT,sWS,sD = [f"s[{i}:{i+3}]" for i in range(8,48,4)]
LOG2E=0x3fb8aa3b; SCALE=0x3db504f3; EPS=0x3727c5ac

def gen(debug=False, **opt):
    NT = opt.get("nt", "nt")
    K0 = opt.get("k0", 2); K1 = opt.get("k1", 3); BQ = opt.get("bq", 1); GS = opt.get("gsleep", 0); B0 = opt.get("b0", 1); TOUCH = opt.get("touch", 1); SLOW = opt.get("slow", 0); DW = opt.get("dw", 0); PAIR = opt.get("pair", 1); DIAG = opt.get("diag", 0)
    W1 = opt.get("w1", 1); W2 = opt.get("w2", 1); CGX = opt.get("cgx", 4); WCX = opt.get("wcx", 4)
    G1 = opt.get("g1", 3)
    RD = opt.get("rd", 1); FD = opt.get("fd", 1); RG_ = opt.get("rg", 1); FG_ = opt.get("fg", 2); G2 = opt.get("g2", 3); GSL = opt.get("gsl", 0); GSP = opt.get("gsp", 1); GD = opt.get("gd", 1)
    NTW = opt.get("ntw", "nt")
    if NTW == "df": NTW = ""
    M1 = opt.get("m1", 2)
    PREOWN = opt.get("preown", 1)
    MASKP = opt.get("maskp", 1)
    DHINT = opt.get("dhint", 0)
    a = Asm()
    def stamp(i):
        if debug: a(f"s_memrealtime s[{64+2*i}:{65+2*i}]")
    def cnt(i):
        if debug: a(f"s_waitcnt lgkmcnt(0)\ns_sub_u32 s7, 300000, s96\ns_mul_i32 s7, s7, 100\ns_add_u32 s{64+2*i}, s64, s7\ns_addc_u32 s{65+2*i}, s65, 0")
    def spin(): a("s_sub_u32 s96, s96, 1\ns_cbranch_scc1 L_end")
    def spin_ab(dst, sa, sb):
        spin(); a(f"s_and_b32 s7, s96, 15")
        for d, x, y in zip(dst, sa, sb): a(f"s_cselect_b32 {d}, {x}, {y}")
    def unpack(dlo, dhi, src): a(f"v_lshlrev_b32 v{dlo}, 16, v{src}\nv_and_b32 v{dhi}, s56, v{src}")
    def pk(op, d, x, y, mods=""): a(f"v_pk_{op}_f32 v[{d}:{d+1}], v[{x}:{x+1}], v[{y}:{y+1}] {mods}")
    def dma(voff, srd, soff, lds):
        a(f"s_mov_b32 m0, {lds}\nbuffer_load_dwordx4 v{voff}, {srd}, {soff} offen {NTW} lds")
    def dma2(voff, srd, soff, lds, stride):
        dma(voff, srd, soff, lds)
        a(f"s_add_u32 m0, {lds}, 1024\ns_add_u32 s7, {soff}, {4*stride}")
        a(f"buffer_load_dwordx4 v{voff}, {srd}, s7 offen {NTW} lds")
    def trfrag(dst, vaddr, off, d2=1024):
        a(f"ds_read_b64_tr_b16 v[{dst}:{dst+1}], v{vaddr} offset:{off}")
        a(f"ds_read_b64_tr_b16 v[{dst+2}:{dst+3}], v{vaddr} offset:{off+d2}")
    def mfma(d, A, B, C=None):
        c = "0" if C is None else f"v[{C}:{C+3}]"
        a(f"v_mfma_f32_16x16x32_bf16 v[{d}:{d+3}], v[{A}:{A+3}], v[{B}:{B+3}], {c}")
    def check_sent(regs, t):
        r = list(regs)
        a(f"v_max3_u32 v{t}, v{r[0]}, v{r[1]}, v{r[2]}"); r = r[3:]
        while len(r) >= 2:
            a(f"v_max3_u32 v{t}, v{t}, v{r[0]}, v{r[1]}"); r = r[2:]
        if r: a(f"v_max_u32 v{t}, v{t}, v{r[0]}")
        a(f"v_cmp_eq_u32 vcc, -1, v{t}")
    def stats(s1, s2, t, vc=None):
        if vc is None: a(f"v_mul_f32 v{t+1}, 0x3b000000, {s1}\nv_mul_f32 v{t+2}, 0x3b000000, {s2}")
        else: a(f"v_mul_f32 v{t+1}, {s1}, v{vc}\nv_mul_f32 v{t+2}, {s2}, v{vc}")
        a(f"v_fma_f32 v{t+2}, -v{t+1}, v{t+1}, v{t+2}\nv_max_f32 v{t+2}, 0, v{t+2}")
        a(f"v_cvt_pk_bf16_f32 v{t+1}, v{t+1}, v{t+2}")
        a(f"v_and_b32 v{t+2}, s56, v{t+1}\nv_lshlrev_b32 v{t+1}, 16, v{t+1}")
        a(f"v_add_f32 v{t+2}, {hex(EPS)}, v{t+2}\nv_cvt_pk_bf16_f32 v{t+2}, v{t+2}, v{t+2}\nv_and_b32 v{t+2}, s56, v{t+2}")
        a(f"v_sqrt_f32 v{t+2}, v{t+2}")
    def stats2(t): a(f"v_cvt_pk_bf16_f32 v{t+2}, v{t+2}, v{t+2}\nv_and_b32 v{t+2}, s56, v{t+2}\nv_rcp_f32 v{t+2}, v{t+2}")
    def wred2(x, y):
        for m in ["quad_perm:[1,0,3,2] row_mask:0xf", "quad_perm:[2,3,0,1] row_mask:0xf", "row_half_mirror row_mask:0xf", "row_mirror row_mask:0xf",
                  "row_bcast:15 row_mask:0xa", "row_bcast:31 row_mask:0xc"]:
            a(f"v_add_f32_dpp v{x}, v{x}, v{x} {m} bank_mask:0xf\nv_add_f32_dpp v{y}, v{y}, v{y} {m} bank_mask:0xf")
    def red8(addr, n=8):
        for w in range(n): a(f"ds_read_b64 v[{24+2*w}:{25+2*w}], v{addr} offset:{w*RW}")
        a("s_waitcnt lgkmcnt(0)")
        pk("add", 24, 24, 26); pk("add", 28, 28, 30); pk("add", 32, 32, 34)
        if n == 8: pk("add", 36, 36, 38)
        pk("add", 24, 24, 28); pk("add", 32, 32, 36); pk("add", 24, 24, 32)
    def gather(lab, n, raw, cp, stride, tag, depth, pm):
        def rnd(m):
            a("s_mov_b32 s51, s52")
            for r in range(n):
                if m and pm: a(f"s_wqm_b64 exec, s[{8+2*r}:{9+2*r}]")
                a(f"buffer_load_dwordx4 v[{raw+4*r}:{raw+3+4*r}], v5, {sWS}, s51 offen sc1")
                if r < n-1: a(f"s_add_u32 s51, s51, {stride}")
        for _ in range(depth): rnd(0)
        a(f"s_branch {lab}_c")
        a(f"{lab}:")
        if not pm: a("s_wqm_b64 exec, vcc")
        spin()
        rnd(1)
        a("s_mov_b64 exec, -1")
        a(f"{lab}_c:")
        for r in range(n):
            c = cp+4*r
            a(f"s_waitcnt vmcnt({n*depth-1-r})")
            for q in range(4): a(f"v_xor_b32 v{c+q}, {tag}, v{raw+4*r+q}")
            if pm:
                a(f"v_or3_b32 v102, v{c}, v{c+1}, v{c+2}\nv_or_b32 v102, v102, v{c+3}\nv_and_b32 v102, 0xff, v102\nv_cmp_ne_u32 s[{8+2*r}:{9+2*r}], 0, v102")
            elif r == 0: a(f"v_or3_b32 v102, v{c}, v{c+1}, v{c+2}\nv_or_b32 v102, v102, v{c+3}")
            else: a(f"v_or3_b32 v102, v102, v{c}, v{c+1}\nv_or3_b32 v102, v102, v{c+2}, v{c+3}")
            if r: pk("add", 96, cp if r == 1 else 96, c); pk("add", 98, cp+2 if r == 1 else 98, c+2)
            if pm and r >= 2: a(f"s_or_b64 vcc, {'s[8:9]' if r == 2 else 'vcc'}, s[{6+2*r}:{7+2*r}]")
        a("v_permlane32_swap_b32 v96, v98\nv_permlane32_swap_b32 v97, v99")
        if pm: a(f"s_or_b64 vcc, vcc, s[{6+2*n}:{7+2*n}]")
        else: a("v_and_b32 v102, 0xff, v102\nv_cmp_ne_u32 vcc, 0, v102")
        pk("add", 96, 96, 98)
    def flag_set(off):
        a(f"s_lshl_b32 s7, s5, 2\ns_add_u32 s7, s7, s6\ns_add_u32 s7, s7, {O_FLG}\ns_cmp_eq_u32 s3, 0\ns_cselect_b64 exec, 1, 0")
        a(f"buffer_store_dword v1, off, {sWS}, s7 offset:{off}\ns_mov_b64 exec, -1")
    def flag_wait(lab, off, n, vt):
        a(f"s_cmp_lg_u32 s97, 0\ns_cbranch_scc1 {lab}_x\ns_add_u32 s51, s6, {off}\nv_min_u32 v{vt}, {n-1}, v1\nv_lshlrev_b32 v{vt}, 2, v{vt}")
        a(f"{lab}:")
        spin()
        a(f"buffer_load_dword v{vt+1}, v{vt}, {sWS}, s51 offen sc1\ns_waitcnt vmcnt(0)\nv_cmp_eq_u32 vcc, -1, v{vt+1}\ns_cbranch_vccnz {lab}")
        a(f"{lab}_x:")
    def rot(frm, to):
        k = 4 * ((to - frm) & 3)
        return f"row_ror:{k}" if k else "quad_perm:[0,1,2,3]"

    a("s_cmp_ge_u32 s2, 256\ns_cbranch_scc1 L_end")
    stamp(0)
    for d, o in [(8,0),(20,24),(12,8),(40,88),(16,16),(24,32),(28,48),(32,56),(44,64),(36,72)]:
        a(f"s_load_dwordx2 s[{d}:{d+1}], s[0:1], {o}")
    a("v_lshrrev_b32 v9, 6, v0\nv_and_b32 v1, 63, v0")
    a("s_getpc_b64 s[60:61]")
    a("L_pc:")
    a("v_readfirstlane_b32 s3, v9")
    a("s_and_b32 s4, s2, 7\ns_lshr_b32 s5, s2, 3")
    a(f"s_lshl_b32 s7, s3, 5\ns_add_u32 s7, s7, s5\ns_lshl_b32 s7, s7, 7\ns_min_u32 s7, s7, L_end-L_pc\nv_mov_b32 v2, s7")
    a("global_load_dword v127, v2, s[60:61]")
    a(f"s_lshl_b32 s6, s4, {GSH}\ns_add_u32 s6, s6, {GB}")
    for d, n in [(8, 8192), (40, 256<<20), (20, 4<<20), (12, 64<<20), (16, 64<<20), (24, 4<<20), (28, 512*3584), (32, 512*3584), (36, 8192), (44, 1792*1024)]:
        a(f"s_mov_b32 s{d+2}, {hex(n)}\ns_mov_b32 s{d+3}, 0x20000")
    a("s_mov_b32 s56, 0xffff0000\ns_mov_b32 s96, 300000")
    a("v_lshlrev_b32 v7, 4, v1\nv_lshlrev_b32 v8, 3, v1")
    a("v_and_b32 v10, 15, v1\nv_lshrrev_b32 v11, 4, v1")
    a("v_and_b32 v12, 3, v1\nv_bfe_u32 v9, v1, 2, 2\nv_and_b32 v13, 1, v11")
    a("s_cmp_lt_u32 s3, 2\ns_cbranch_scc1 L_aux")
    a("s_sub_u32 s3, s3, 2")
    a("v_lshrrev_b32 v4, 3, v1\nv_and_b32 v5, 7, v1\nv_and_b32 v6, 2, v4\nv_xor_b32 v5, v5, v6\nv_lshlrev_b32 v5, 4, v5\nv_lshl_add_u32 v4, v4, 13, v5\nv_xor_b32 v5, 64, v4")
    a("v_lshlrev_b32 v2, 4, v12\nv_lshl_add_u32 v2, v11, 6, v2\nv_lshl_add_u32 v2, v9, 10, v2")
    a("s_lshr_b32 s7, s5, 2\ns_lshl_b32 s48, s7, 23\ns_lshl_b32 s7, s4, 20\ns_add_u32 s48, s48, s7")
    a("s_and_b32 s7, s5, 3\ns_lshl_b32 s7, s7, 16\ns_add_u32 s48, s48, s7\ns_lshl_b32 s7, s3, 13\ns_add_u32 s48, s48, s7\ns_add_u32 s48, s48, 786432")
    a("s_add_u32 s49, s48, 4096")
    a(f"s_and_b32 s7, s5, 3\ns_lshl_b32 s7, s7, 3\ns_add_u32 s7, s7, s3\ns_lshl_b32 s51, s7, 17\ns_lshl_b32 s7, s4, 10\ns_add_u32 s51, s51, s7\ns_lshr_b32 s7, s5, 2\ns_xor_b32 s7, s7, {CGX}\ns_lshl_b32 s7, s7, 7\ns_add_u32 s51, s51, s7\ns_add_u32 s52, s51, 65536")
    a("s_lshl_b32 s54, s3, 11\ns_lshl_b32 s55, s3, 10\ns_mov_b32 m0, s54")
    def kload(t):
        i = 2*t if t < 4 else 2*(t-4)+1
        a(f"buffer_load_dwordx4 v[{16+4*t}:{19+4*t}], v2, {sK}, s{48+i//4} offen offset:{(i%4)*256} {NT}")
    def vload(i): a(f"buffer_load_dwordx4 v[{48+4*i}:{51+4*i}], v3, {sV}, s{48+i//4} offen offset:{(i%4)*256} {NT}")
    a("s_waitcnt lgkmcnt(0)")
    a(f"buffer_load_dwordx4 v[96:99], v7, {sX}, s55 offen")
    a(f"buffer_load_dwordx4 v4, {sWQ}, s51 offen {NT} lds\ns_add_u32 m0, s54, 1024")
    a(f"buffer_load_dwordx4 v5, {sWQ}, s52 offen {NT} lds")
    if B0: a("s_barrier")
    for t in range(K0): kload(t)
    a("s_load_dword s100, s[40:41], 0")
    stamp(1)
    a("v_lshrrev_b32 v14, 2, v1\nv_lshlrev_b32 v14, 6, v14\nv_lshl_add_u32 v14, v12, 3, v14\nv_lshl_add_u32 v14, v13, 5, v14")
    a("v_lshl_add_u32 v9, v11, 3, v9")
    a("v_lshlrev_b32 v13, 1, v13\nv_xor_b32 v12, v12, v13\nv_lshlrev_b32 v12, 4, v12")
    a("v_lshl_add_u32 v5, v9, 10, v12")
    a("v_mul_u32_u24 v6, 3584, v9\nv_add_u32 v6, v6, v12")
    a("v_lshlrev_b32 v3, 4, v10\nv_lshl_add_u32 v3, v11, 10, v3")
    a("s_and_b32 s50, s5, 1")
    a("s_lshl_b32 s53, s3, 1\ns_add_u32 s53, s53, s50")
    a("s_lshl_b32 s54, s53, 11\ns_xor_b32 s55, s54, 2048")
    a(f"s_mul_i32 s7, s3, 1040\ns_add_u32 s7, s7, {L_OP}\nv_add_u32 v13, s7, v7")
    a("s_mov_b32 s57, 0x3f803f80\nv_mov_b32 v100, 0\nv_mov_b32 v101, 0\nv_mov_b32 v102, 0x3b000000")
    a(f"s_waitcnt vmcnt({K0+2})")
    stamp(2)
    for i in range(4): a(f"v_dot2c_f32_bf16 v100, s57, v{96+i}\nv_dot2c_f32_bf16 v101, v{96+i}, v{96+i}")
    for i in range(4): unpack(112+2*i, 113+2*i, 96+i)
    wred2(100, 101)
    a("v_readlane_b32 s58, v100, 63\nv_readlane_b32 s59, v101, 63")
    stats("s58", "s59", 109, 102)
    for j in range(4): a(f"v_pk_add_f32 v[{112+2*j}:{113+2*j}], v[{112+2*j}:{113+2*j}], v[110:111] op_sel_hi:[1,0] neg_lo:[0,1] neg_hi:[0,1]")
    stats2(109)
    for j in range(4): a(f"v_cvt_pk_bf16_f32 v{96+j}, v{112+2*j}, v{113+2*j}")
    for j in range(4): unpack(112+2*j, 113+2*j, 96+j)
    for j in range(4): a(f"v_pk_mul_f32 v[{112+2*j}:{113+2*j}], v[{112+2*j}:{113+2*j}], v[110:111] op_sel:[0,1] op_sel_hi:[1,1]")
    for j in range(4): a(f"v_cvt_pk_bf16_f32 v{96+j}, v{112+2*j}, v{113+2*j}")
    a("ds_write_b128 v13, v[96:99]")
    for t in range(K0, K0+K1): kload(t)
    for i in range(16): a(f"v_mov_b32 v{80+i}, 0")
    a(f"v_add_u32 v13, {L_QL}, v7")
    a(f"v_and_b32 v12, 3, v10\nv_lshlrev_b32 v12, 5, v12\nv_add_u32 v12, {L_MX}, v12")
    a(f"s_lshl_b32 s7, s3, 2\nv_add_u32 v9, s7, v12")
    a(f"s_mov_b32 s57, {hex(SCALE)}\ns_mov_b32 s58, {hex(LOG2E)}\ns_mov_b32 s59, 0x05040100\ns_mov_b32 s60, 0x07060302")
    a(f"s_mul_i32 s7, s3, {RW}\ns_add_u32 s7, s7, {L_RD}\nv_mul_u32_u24 v15, {RG}, v11\nv_lshl_add_u32 v15, v10, 4, v15\nv_add_u32 v15, s7, v15")
    a("s_lshr_b32 s7, s5, 2\ns_and_b32 s61, s5, 2\ns_lshl_b32 s61, s61, 2\ns_add_u32 s61, s61, s7")
    a("s_lshl_b32 s98, s3, 13\ns_lshl_b32 s7, s50, 11\ns_add_u32 s98, s98, s7\ns_lshl_b32 s7, s61, 4\ns_add_u32 s98, s98, s7\ns_add_u32 s98, s98, s6")
    a(f"s_lshl_b32 s99, s3, 4\ns_add_u32 s99, s99, s61\ns_lshl_b32 s99, s99, 1\ns_add_u32 s99, s99, s50\ns_lshl_b32 s99, s99, 2\ns_add_u32 s99, s99, s6\ns_add_u32 s99, s99, {O_LSE}")
    a(f"s_waitcnt vmcnt({K0+K1}) lgkmcnt(0)\ns_barrier")
    if BQ: a("s_barrier")
    stamp(3)
    for t in range(K0+K1, 8): kload(t)
    a("s_barrier")
    for i in range(M1): vload(i)
    if M1: a("s_barrier")
    if PAIR: a("s_barrier")
    for i in range(M1, 8): vload(i)
    a("s_cmp_ge_u32 s5, 30\ns_cbranch_scc1 L_D\ns_cmp_ge_u32 s5, 16\ns_cbranch_scc1 L_G")

    def attn(role, hook):
        n = hook(0)
        stamp(4)
        if debug and role != "W": a(f"s_waitcnt vmcnt({8+n})"); stamp(14); a(f"s_waitcnt vmcnt({n if DIAG else 8+n-M1})"); stamp(15)
        a("s_barrier")
        stamp(5)
        a(f"ds_read_b128 v[104:107], v13\nv_mov_b32 v110, {L_MD}\nds_read_b32 v108, v110")
        a(f"s_waitcnt vmcnt({8 + n}) lgkmcnt(0)")
        D = [96] + [16+4*(t-1) for t in range(1, 8)]
        for t in range(8): mfma(D[t], 16+4*t, 104)
        def op(k, t):
            tt = t & 3; j = (tt + k) & 3
            if k < 3: a(f"v_add_f32_dpp v{D[t]+tt}, v{D[t]+j}, v{D[t]+tt} {rot(j, tt)} row_mask:0xf bank_mask:0xf")
            else: a(f"v_add_f32_dpp v{100+(t>>2)}, v{D[t]+j}, v{D[t]+tt} {rot(j, tt)} row_mask:0xf bank_mask:{hex(1<<tt)}")
        for t in range(8): op(1, t)
        a("v_readfirstlane_b32 s97, v108")
        od = [0, 4, 1, 5, 2, 6, 3, 7]
        for i in range(11):
            if i < 8: op(2, od[i])
            if i >= 3: op(3, od[i-3])
        a("v_cvt_pk_bf16_f32 v102, v100, v101"); unpack(100, 101, 102)
        a("v_mul_f32 v100, s57, v100\nv_mul_f32 v101, s57, v101")
        a("v_cvt_pk_bf16_f32 v102, v100, v101"); unpack(100, 101, 102)
        def allred(opn):
            a(f"v_{opn}_f32 v102, v100, v101")
            a(f"v_{opn}_f32_dpp v102, v102, v102 row_ror:4 row_mask:0xf bank_mask:0xf\nv_{opn}_f32_dpp v102, v102, v102 row_ror:8 row_mask:0xf bank_mask:0xf")
            a(f"v_mov_b32 v103, v102\nv_permlane16_swap_b32 v102, v103\nv_{opn}_f32 v102, v102, v103")
            a(f"v_mov_b32 v103, v102\nv_permlane32_swap_b32 v102, v103\nv_{opn}_f32 v102, v102, v103")
        allred("max")
        a("ds_write_b32 v9, v102")
        a("s_waitcnt lgkmcnt(0)\ns_barrier")
        a("ds_read_b128 v[104:107], v12\nds_read_b128 v[108:111], v12 offset:16")
        a("s_waitcnt lgkmcnt(0)")
        a("v_max3_f32 v102, v104, v105, v106\nv_max3_f32 v103, v107, v108, v109\nv_max3_f32 v102, v102, v110, v111\nv_max_f32 v104, v102, v103")
        a("v_sub_f32 v100, v100, v104\nv_sub_f32 v101, v101, v104\nv_mul_f32 v100, s58, v100\nv_mul_f32 v101, s58, v101\nv_exp_f32 v100, v100\nv_exp_f32 v101, v101")
        a("v_readlane_b32 s101, v104, s3")
        a("v_cvt_pk_bf16_f32 v105, v100, v101")
        allred("add")
        a(f"ds_write_b32 v9, v102 offset:{L_LS-L_MX}")
        for x in range(4):
            for c in range(4): a(f"v_mov_b32_dpp v{80+4*x+c}, v105 {rot(c, x)} row_mask:0xf bank_mask:{hex(1<<x)}")
        stamp(6)
        n += hook(1)
        a(f"s_lshl_b32 s7, s3, 11\ns_add_u32 s7, s7, {L_OP}\nv_add_u32 v12, s7, v8\nv_add_u32 v13, 1024, v12")
        a(f"s_lshl_b32 s7, s3, 9\ns_add_u32 s7, s7, {L_OP}\nv_and_b32 v106, 3, v1\nv_lshrrev_b32 v107, 2, v1\nv_lshlrev_b32 v104, 3, v107\nv_lshl_add_u32 v104, v106, 7, v104\nv_add_u32 v104, s7, v104")
        a(f"s_lshl_b32 s7, s3, 5\ns_add_u32 s7, s7, {L_LS}\nv_mov_b32 v105, s7")
        a("v_and_b32 v9, 7, v107\nv_lshlrev_b32 v9, 8, v9\nv_lshl_add_u32 v9, v106, 2, v9\nv_lshrrev_b32 v107, 5, v1\nv_lshl_add_u32 v9, v107, 12, v9")
        for c in range(4):
            a(f"s_waitcnt vmcnt({n + 6 - 2*c})")
            for x in range(4):
                a(f"v_perm_b32 v{16+8*x+c}, v{48+4*(2*c+1)+x}, v{48+4*(2*c)+x}, s59")
                a(f"v_perm_b32 v{20+8*x+c}, v{48+4*(2*c+1)+x}, v{48+4*(2*c)+x}, s60")
        stamp(7)
        for x in range(4):
            mfma(96, 80+4*x, 16+8*x, None if x == 0 else 96)
            mfma(100, 80+4*x, 20+8*x, None if x == 0 else 100)
        hook(2)
        a("ds_write2_b32 v12, v96, v100 offset0:0 offset1:1\nds_write2_b32 v12, v97, v101 offset0:128 offset1:129")
        a("ds_write2_b32 v13, v98, v102 offset0:0 offset1:1\nds_write2_b32 v13, v99, v103 offset0:128 offset1:129")
        a("s_waitcnt lgkmcnt(0)\ns_barrier")
        stamp(8)
        a(f"s_cmp_ge_u32 s3, 4\ns_cbranch_scc1 L_pub_done{role}")
        a("ds_read_b128 v[96:99], v105\nds_read_b128 v[100:103], v105 offset:16")
        for w in range(8): a(f"ds_read_b64 v[{16+2*w}:{17+2*w}], v104 offset:{w*2048}")
        a("s_waitcnt lgkmcnt(8)" if not debug else "s_waitcnt lgkmcnt(0)")
        pk("add", 96, 96, 98); pk("add", 100, 100, 102); pk("add", 96, 96, 100); a("v_add_f32 v96, v96, v97")
        a("v_rcp_f32 v97, v96\nv_log_f32 v98, v96")
        a("s_waitcnt lgkmcnt(0)")
        pk("add", 16, 16, 18); pk("add", 20, 20, 22); pk("add", 24, 24, 26); pk("add", 28, 28, 30)
        pk("add", 16, 16, 20); pk("add", 24, 24, 28); pk("add", 16, 16, 24)
        a("v_mul_f32 v16, v16, v97\nv_mul_f32 v17, v17, v97\nv_cvt_pk_bf16_f32 v16, v16, v17")
        a("v_mov_b32 v99, s101\nv_fmac_f32 v98, s58, v99")
        a("v_min_u32 v16, -2, v16\nv_min_u32 v98, -2, v98")
        a(f"buffer_store_dword v16, v9, {sWS}, s98 offen")
        a("s_mov_b64 exec, 1")
        a(f"buffer_store_dword v98, off, {sWS}, s99")
        a(f"s_mov_b64 exec, -1\ns_cmp_eq_u32 s97, 0\ns_cbranch_scc1 L_pub_done{role}")
        a(f"s_lshl_b32 s7, s5, 10\ns_add_u32 s7, s7, s6\ns_lshl_b32 s49, s3, 8\ns_add_u32 s7, s7, s49\ns_add_u32 s7, s7, {BX}\ns_add_u32 s49, s99, {BX}\nv_lshlrev_b32 v4, 2, v1")
        a(f"buffer_store_dword v98, off, {sWS}, s49 sc1\nbuffer_store_dword v16, v4, {sWS}, s7 offen sc1")
        a(f"L_pub_done{role}:")
        a("s_barrier")
        stamp(9)
        if debug and GS and role != "W": a(f"s_sleep {GS}")
        hook(3)

    def hookW(p):
        n = 0
        if p == 0:
            a(f"s_lshl_b32 s51, s4, 19\ns_and_b32 s7, s5, 8\ns_add_u32 s7, s7, s3\ns_lshl_b32 s7, s7, 15\ns_add_u32 s51, s51, s7\ns_xor_b32 s7, s5, {WCX}\ns_and_b32 s7, s7, 7\ns_lshl_b32 s7, s7, 7\ns_add_u32 s51, s51, s7\ns_add_u32 s52, s51, 16384")
            a("s_lshl_b32 s54, s3, 12\ns_add_u32 s55, s54, 2048")
            a("s_and_b32 s7, s5, 7\ns_lshl_b32 s62, s7, 10\ns_and_b32 s7, s3, 3\ns_lshl_b32 s7, s7, 8\ns_add_u32 s62, s62, s7")
            a("v_and_b32 v6, 31, v1\nv_lshlrev_b32 v6, 3, v6\nv_lshrrev_b32 v113, 5, v1\nv_lshl_add_u32 v6, v113, 2, v6")
            a("v_lshrrev_b32 v113, 3, v1\nv_and_b32 v114, 7, v1\nv_and_b32 v115, 2, v113\nv_xor_b32 v114, v114, v115\nv_lshlrev_b32 v114, 4, v114\nv_lshl_add_u32 v113, v113, 10, v114\nv_xor_b32 v114, 64, v113")
        if p == 1: a(f"buffer_load_dword v112, v6, {sX}, s62 offen"); n += 1
        for pos, so, ld in ((W1, "s51", "s54"), (W2, "s52", "s55")):
            if p == pos:
                dma(113, sWO, so, ld)
                a(f"s_add_u32 m0, {ld}, 1024\ns_add_u32 s7, {so}, 8192\nbuffer_load_dwordx4 v114, {sWO}, s7 offen {NTW} lds"); n += 2
        if p == 1:
            a("v_bfe_u32 v116, v1, 2, 2\nv_and_b32 v117, 3, v1\nv_lshlrev_b32 v14, 10, v11\nv_lshl_add_u32 v14, v116, 7, v14\nv_lshl_add_u32 v14, v117, 3, v14\nv_lshrrev_b32 v116, 1, v116\nv_lshl_add_u32 v14, v116, 5, v14\nv_and_b32 v116, 1, v11\nv_lshl_add_u32 v14, v116, 6, v14")
            a("v_add_u32 v14, s54, v14\nv_xor_b32 v3, 32, v14\nv_xor_b32 v116, 64, v14\nv_xor_b32 v117, 64, v3")
            a(f"s_and_b32 s7, s5, 8\ns_add_u32 s7, s7, s3\ns_lshr_b32 s63, s7, 2\ns_lshl_b32 s63, s63, 7\ns_add_u32 s63, s63, s6\ns_add_u32 s63, s63, {O_LSE}")
            a("s_lshl_b32 s61, s7, 6\ns_lshr_b32 s7, s7, 1\ns_lshl_b32 s48, s7, 12\ns_add_u32 s48, s48, s6\ns_and_b32 s7, s3, 1\ns_lshl_b32 s7, s7, 10\ns_add_u32 s48, s48, s7")
            a(f"v_lshlrev_b32 v2, 3, v10\nv_add_u32 v115, {L_OP+32-L_RD}, v15")
        return n
    attn("W", hookW)
    def w_loads():
        a(f"buffer_load_dwordx2 v[32:33], v2, {sWS}, s63 offen sc1")
        for u in range(2): a(f"buffer_load_dwordx4 v[{16+4*u}:{19+4*u}], v7, {sWS}, s48 offen offset:{u*2048} sc1")
    w_loads()
    a("v_and_b32 v9, 7, v10\nv_lshrrev_b32 v13, 3, v10\nv_lshl_add_u32 v13, v9, 1, v13")
    a("v_lshlrev_b32 v12, 11, v13\nv_lshl_add_u32 v12, v11, 4, v12")
    a(f"s_add_u32 s49, s6, s61\ns_add_u32 s49, s49, {BX}\ns_add_u32 s55, s63, {BX}")
    a("s_waitcnt vmcnt(3)")
    stamp(10)
    trfrag(48, 14, 0, 512); trfrag(52, 3, 0, 512); trfrag(56, 116, 0, 512); trfrag(60, 117, 0, 512)
    a("s_cmp_eq_u32 s97, 0\ns_cbranch_scc1 L_w_go\ns_waitcnt vmcnt(0)")
    a("L_w_b:")
    a(f"buffer_load_dwordx2 v[32:33], v2, {sWS}, s55 offen sc1")
    for jp in range(2): a(f"buffer_load_dwordx4 v[{16+4*jp}:{19+4*jp}], v12, {sWS}, s49 offen offset:{jp*1024} sc1")
    a("s_branch L_w_x")
    a("L_w_poll:")
    if MASKP: a("s_mov_b64 exec, vcc")
    spin(); a("s_cmp_eq_u32 s97, 0\ns_cbranch_scc0 L_w_b")
    w_loads()
    a("L_w_x:")
    if MASKP: a("s_mov_b64 exec, -1")
    a("L_w_go:")
    a("s_waitcnt vmcnt(1) lgkmcnt(0)")
    for c in range(4): mfma(64+8*c, 48+4*c, 16)
    a("v_max_f32 v36, v32, v33")
    a("v_max_f32_dpp v36, v36, v36 row_ror:8 row_mask:0xf bank_mask:0xf")
    a("v_sub_f32 v34, v32, v36\nv_sub_f32 v35, v33, v36\nv_exp_f32 v34, v34\nv_exp_f32 v35, v35")
    a("s_waitcnt vmcnt(0)")
    for c in range(4): mfma(68+8*c, 48+4*c, 20)
    a("v_add_f32 v36, v34, v35")
    a("v_add_f32_dpp v36, v36, v36 row_ror:8 row_mask:0xf bank_mask:0xf\nv_rcp_f32 v36, v36")
    check_sent(list(range(16, 24)) + [32, 33], 37)
    a("v_mul_f32 v34, v34, v36\nv_mul_f32 v38, v35, v36")
    if debug: a("s_cmp_lg_u32 s96, 300000\ns_cbranch_scc1 L_dw1"); stamp(2); a("L_dw1:")
    a("s_cbranch_vccnz L_w_poll")
    stamp(11)
    for st in range(2):
        rs = (64+8*st, 66+8*st, 80+8*st, 82+8*st)
        for r in rs: pk("mul", r, r, 34, "op_sel_hi:[1,0]")
        for r in rs: a(f"v_pk_fma_f32 v[{r}:{r+1}], v[{r+4}:{r+5}], v[38:39], v[{r}:{r+1}] op_sel_hi:[1,0,1]")
        for r in range(4): a(f"v_add_f32_dpp v{64+8*st+r}, v{64+8*st+r}, v{64+8*st+r} row_ror:8 row_mask:0xf bank_mask:0x3")
        for r in range(4): a(f"v_add_f32_dpp v{64+8*st+r}, v{80+8*st+r}, v{80+8*st+r} row_ror:8 row_mask:0xf bank_mask:0xc")
        a(f"ds_write_b128 v{15 if st == 0 else 115}, v[{64+8*st}:{67+8*st}]")
    a("s_waitcnt lgkmcnt(0)\ns_barrier")
    stamp(12); cnt(1)
    a("s_cmp_ge_u32 s5, 8\ns_cbranch_scc1 L_kv_end\ns_cmp_ge_u32 s3, 4\ns_cbranch_scc1 L_kv_end")
    a(f"s_lshl_b32 s52, s62, 1\ns_add_u32 s52, s52, {WP}\ns_add_u32 s100, s100, 1\ns_and_b32 s100, s100, 0xff")
    unpack(120, 121, 112)
    a(f"s_and_b32 s7, s5, 4\ns_add_u32 s7, s7, s3\ns_lshl_b32 s48, s7, 10\ns_and_b32 s7, s5, 3\ns_lshl_b32 s7, s7, 4\ns_add_u32 s48, s48, s7\ns_add_u32 s48, s48, s6\ns_add_u32 s48, s48, {O_XN}")
    a("v_lshrrev_b32 v9, 4, v6\nv_lshlrev_b32 v9, 6, v9\nv_and_b32 v5, 12, v6\nv_add_u32 v9, v5, v9")
    a("v_and_b32 v5, 31, v1\nv_lshlrev_b32 v5, 4, v5\nv_lshrrev_b32 v4, 5, v1\nv_lshl_add_u32 v5, v4, 14, v5")
    a(f"s_add_u32 s49, s62, s6\ns_add_u32 s49, s49, {O_XN+BX}")
    a(f"s_lshl_b32 s7, s5, 7\ns_add_u32 s54, s6, s7\ns_add_u32 s54, s54, {O_H}\ns_and_b32 s7, s4, 1\ns_lshl_b32 s7, s7, 7\ns_sub_u32 s54, s54, s7\ns_xor_b32 s55, s54, {BX}")
    a("s_bitcmp1_b32 s4, 0\ns_cselect_b32 s58, s56, 0xffff\ns_mov_b32 s59, s58")
    a(f"s_lshl_b32 s7, s3, 3\ns_add_u32 s7, s7, {L_MX}\nv_mov_b32 v12, s7\nv_mov_b32 v13, {L_MX}")
    if RG_: flag_wait("L_rg", O_FLG, 16, 122)
    if debug and opt.get("rs"): a(f"s_sleep {opt['rs']}")
    gather("L_r_poll", 8, 16, 48, 32768, "s100", RD, opt.get("rpm", 0))
    a("v_cvt_pk_bf16_f32 v100, v96, v97")
    unpack(96, 97, 100)
    a("s_cbranch_scc1 L_r_poll" if opt.get("rpm", 0) else "s_cbranch_vccnz L_r_poll")
    stamp(13); cnt(3)
    pk("add", 96, 96, 120)
    a("v_cvt_pk_bf16_f32 v100, v96, v97")
    unpack(96, 97, 100)
    a("v_add_f32 v108, v96, v97\nv_mul_f32 v109, v96, v96\nv_fmac_f32 v109, v97, v97")
    wred2(108, 109)
    a("s_mov_b32 exec_lo, 0\ns_mov_b32 exec_hi, 0x80000000")
    a("ds_write_b64 v12, v[108:109]")
    a("s_mov_b64 exec, -1\nv_min_u32 v100, -2, v100")
    a("s_waitcnt lgkmcnt(0)\ns_barrier")
    stamp(15)
    a("ds_read_b128 v[104:107], v13\nds_read_b128 v[108:111], v13 offset:16")
    a("s_waitcnt lgkmcnt(0)")
    pk("add", 104, 104, 106); pk("add", 108, 108, 110); pk("add", 104, 104, 108)
    stats("v104", "v105", 109)
    a(f"v_pk_add_f32 v[96:97], v[96:97], v[110:111] op_sel_hi:[1,0] neg_lo:[0,1] neg_hi:[0,1]")
    stats2(109)
    a("v_cvt_pk_bf16_f32 v101, v96, v97")
    unpack(96, 97, 101)
    a("v_mul_f32 v96, v96, v111\nv_mul_f32 v97, v97, v111\nv_cvt_pk_bf16_f32 v101, v96, v97\nv_min_u32 v101, -2, v101")
    a(f"buffer_store_dword v101, v9, {sWS}, s48 offen")
    stamp(14)
    a("s_lshr_b32 s7, s4, 1\ns_cmp_lg_u32 s7, s3\ns_cbranch_scc1 L_r_noh")
    a("s_mov_b64 exec, s[58:59]")
    a(f"buffer_store_dword v100, v6, {sWS}, s54 offen")
    a("s_cmp_eq_u32 s97, 0\ns_cbranch_scc1 L_r_noh")
    a(f"buffer_store_dword v100, v6, {sWS}, s55 offen sc1")
    a("L_r_noh:")
    a("s_mov_b64 exec, -1\ns_cmp_eq_u32 s97, 0\ns_cbranch_scc1 L_kv_end")
    a(f"buffer_store_dword v101, v6, {sWS}, s49 offen sc1")
    a("s_branch L_kv_end")
    a("L_G:")
    DSL = opt.get("dsl", 0); DN = opt.get("dn", 4)
    def dn_dma():
        a(f"s_lshl_b32 s7, s3, 12\ns_add_u32 m0, s7, {L_DN}\ns_mov_b32 s7, s63")
        for i in range(4):
            a(f"buffer_load_dwordx4 v{113+(i&1)}, {sD}, s7 offen {NTW} lds")
            if i < 3: a("s_add_u32 m0, m0, 1024\ns_add_u32 s7, s7, 8192")
    def hookG(p):
        n = 0
        if DSL and p == GSP:
            if DSL == 1: a("s_mov_b64 exec, s[0:1]")
            dn_dma(); n += 4
            a("s_mov_b64 exec, -1")
        if p == 0:
            a("s_sub_u32 s61, s5, 16")
            a("s_mul_i32 s7, s4, 7\ns_lshr_b32 s62, s61, 1\ns_add_u32 s62, s62, s7")
            a(f"s_mul_i32 s51, s53, {32*3584}\ns_lshl_b32 s7, s62, 6\ns_add_u32 s51, s51, s7")
            a(f"s_xor_b32 s7, s53, 1\ns_mul_i32 s52, s7, {32*3584}\ns_lshl_b32 s7, s62, 6\ns_add_u32 s52, s52, s7")
            a("s_lshl_b32 s54, s3, 13\ns_lshl_b32 s7, s50, 11\ns_add_u32 s54, s54, s7")
            a("s_lshl_b32 s63, s62, 15\ns_lshl_b32 s7, s3, 7\ns_add_u32 s63, s63, s7")
            a("s_bitcmp1_b32 s62, 0\ns_cbranch_scc0 L_t_nosw")
            a("s_mov_b64 s[0:1], s[28:29]\ns_mov_b64 s[28:29], s[32:33]\ns_mov_b64 s[32:33], s[0:1]\ns_xor_b32 s54, s54, 4096")
            a("L_t_nosw:")
            a("s_xor_b32 s55, s54, 2048")
            a("v_lshrrev_b32 v113, 3, v1\nv_and_b32 v114, 7, v1\nv_and_b32 v115, 2, v113\nv_xor_b32 v114, v114, v115\nv_lshlrev_b32 v114, 4, v114\nv_lshl_add_u32 v113, v113, 10, v114\nv_xor_b32 v114, 64, v113")
        if p == 0: a("s_and_b32 s7, s62, 6\ns_cmp_eq_u32 s7, 6\ns_cselect_b64 s[0:1], -1, 0")
        for u, (so, ld) in enumerate((("s51", "s54"), ("s52", "s55"))):
            if u < GSL and p in (GSP, 3):
                a("s_mov_b64 exec, s[0:1]" if p != 3 else "s_not_b64 exec, s[0:1]")
                dma2(6, sG, so, ld, 3584); n += 2
                a("s_mov_b64 exec, -1")
            elif u >= GSL and p == (G1, G2)[u]: dma2(6, sG, so, ld, 3584); n += 2
        return n
    attn("G", hookG)
    a("s_xor_b32 s54, s54, 4096\ns_xor_b32 s55, s55, 4096")
    dma2(6, sU, "s51", "s54", 3584); dma2(6, sU, "s52", "s55", 3584)
    a(f"s_lshl_b32 s54, s3, 12\ns_add_u32 s54, s54, {L_DN}")
    if DSL == 1: a("s_not_b64 exec, s[0:1]")
    if DSL < 2: dn_dma()
    a("s_mov_b64 exec, -1")
    a("v_bfe_u32 v116, v1, 2, 2\nv_and_b32 v117, 3, v1\nv_lshlrev_b32 v118, 10, v11\nv_lshl_add_u32 v118, v116, 7, v118\nv_lshl_add_u32 v118, v117, 3, v118\nv_lshrrev_b32 v119, 1, v116\nv_lshl_add_u32 v118, v119, 5, v118\nv_and_b32 v119, 1, v11\nv_lshl_add_u32 v118, v119, 6, v118")
    a("v_add_u32 v118, s54, v118\nv_xor_b32 v119, 32, v118\nv_xor_b32 v120, 64, v118\nv_xor_b32 v121, 64, v119")
    a(f"v_lshlrev_b32 v122, 4, v11\nv_lshl_add_u32 v122, v117, 6, v122\nv_add_u32 v122, {L_PB}, v122")
    a("v_lshlrev_b32 v123, 8, v116\nv_lshl_add_u32 v123, v11, 6, v123\nv_lshl_add_u32 v123, v117, 4, v123\nv_mov_b32 v124, 0xff")
    a(f"s_lshl_b32 s7, s62, 1\ns_add_u32 s7, s7, s50\ns_lshl_b32 s7, s7, 3\ns_add_u32 s7, s7, s3\ns_lshl_b32 s63, s7, 10\ns_add_u32 s63, s63, {PO}\ns_add_u32 s100, s100, 1")
    a(f"s_lshl_b32 s7, s3, 13\nv_add_u32 v14, s7, v14\nv_xor_b32 v9, 32, v14")
    a(f"v_and_b32 v12, 3, v10\nv_lshlrev_b32 v13, 10, v12\nv_lshl_add_u32 v13, v11, 4, v13\nv_lshlrev_b32 v12, 4, v12\nv_lshl_add_u32 v12, v11, 6, v12")
    a(f"s_lshl_b32 s48, s50, 12\ns_add_u32 s48, s48, s6\ns_add_u32 s48, s48, {O_XN}\ns_lshl_b32 s7, s3, 7\ns_add_u32 s49, s48, s7\ns_add_u32 s49, s49, {BX}\ns_lshl_b32 s7, s3, 9\ns_add_u32 s48, s48, s7")
    a("s_waitcnt vmcnt(0)")
    stamp(10)
    for t in range(2):
        for m in range(2):
            for ks in range(2): trfrag(48 + 16*t + 8*m + 4*ks, 14 if t == 0 else 9, m*4096 + ks*2048)
    for c in range(4): trfrag(80+4*c, 118+c, 0, 512)
    a("s_branch L_g_poll")
    a("L_g_b:")
    a(f"buffer_load_dwordx4 v[16:19], v13, {sWS}, s49 offen sc1\nbuffer_load_dwordx4 v[20:23], v13, {sWS}, s49 offen offset:64 sc1")
    a("s_branch L_g_go")
    a("L_g_poll:")
    spin(); a("s_cmp_eq_u32 s97, 0\ns_cbranch_scc0 L_g_b")
    a(f"buffer_load_dwordx4 v[16:19], v12, {sWS}, s48 offen sc1\nbuffer_load_dwordx4 v[20:23], v12, {sWS}, s48 offen offset:256 sc1")
    a("L_g_go:")
    a("s_waitcnt vmcnt(1) lgkmcnt(0)")
    for c in range(4): mfma(96+4*c, 48+8*c, 16)
    a("s_waitcnt vmcnt(0)")
    for c in range(4): mfma(96+4*c, 52+8*c, 20, 96+4*c)
    check_sent(range(16, 24), 24)
    a("s_cbranch_vccnz L_g_poll")
    stamp(11)
    for c in range(1, 4):
        for r in range(4): a(f"v_mov_b32_dpp v{96+r}, v{96+4*c+r} quad_perm:[0,1,2,3] row_mask:0xf bank_mask:{hex(1<<c)}")
    a("ds_write_b128 v15, v[96:99]")
    a("s_waitcnt lgkmcnt(0)\ns_barrier")
    stamp(12)
    a("s_barrier")
    a("ds_read_b128 v[16:19], v122\ns_waitcnt lgkmcnt(0)")
    for c in range(4): mfma(96+4*c, 80+4*c, 16)
    for c in range(1, 4):
        for r in range(4): a(f"v_mov_b32_dpp v{96+r}, v{96+4*c+r} quad_perm:[0,1,2,3] row_mask:0xf bank_mask:{hex(1<<c)}")
    for r in range(4): a(f"v_bfi_b32 v{96+r}, v124, s100, v{96+r}")
    a(f"buffer_store_dwordx4 v[96:99], v123, {sWS}, s63 offen sc1")
    stamp(13)
    a("s_branch L_kv_end")
    a("L_D:")
    TCH = opt.get("tch", 0); TP = opt.get("tp", 3)
    def hookD(p):
        n = 0
        if TCH and p == TP:
            fl = {1: "sc1", 2: "nt", 3: "", 4: "sc0 sc1"}[TCH]
            a(f"s_lshl_b32 s7, s4, 1\ns_add_u32 s7, s7, s50\ns_lshl_b32 s7, s7, 3\ns_add_u32 s7, s7, s3\ns_lshl_b32 s51, s7, 11\ns_add_u32 s51, s51, {WP}\ns_mul_i32 s52, s7, 7168\ns_add_u32 s52, s52, {PO}")
            for i in range(2): a(f"buffer_load_dwordx4 v[112:115], v7, {sWS}, s51 offen offset:{i*1024} {fl}")
            for i in range(7):
                a(f"buffer_load_dwordx4 v[112:115], v7, {sWS}, s52 offen offset:{(i&3)*1024} {fl}")
                if i == 3: a("s_add_u32 s52, s52, 4096")
            n = 9
        return n
    attn("D", hookD)
    a("s_waitcnt vmcnt(0)")
    a("L_kv_end:")
    if debug:
        a(f"s_cmp_lg_u32 s3, {DW}\ns_cbranch_scc1 L_end")
        a(f"s_lshl_b32 s7, s2, 8\ns_add_u32 s7, s7, {hex(STAMP)}")
        a("L_stamps:")
        a("s_waitcnt lgkmcnt(0)\nv_mov_b32 v0, 0")
        for i in range(16):
            a(f"v_mov_b32 v2, s{64+2*i}\nv_mov_b32 v3, s{65+2*i}")
            a(f"buffer_store_dwordx2 v[2:3], v0, {sWS}, s7 offen offset:{8*i}")
            a("s_nop 1")
    a("s_endpgm")

    a("L_aux:")
    a("s_setprio 3")
    for i in range(4): a(f"v_mov_b32 v{100+i}, -1")
    a("s_lshl_b32 s58, s5, 1\ns_add_u32 s58, s58, s3\ns_lshl_b32 s7, s58, 10\ns_add_u32 s59, s7, s6")
    a("s_getreg_b32 s63, hwreg(HW_REG_XCC_ID, 0, 4)")
    if SLOW: a("s_and_b32 s63, s5, 1")
    a("s_waitcnt lgkmcnt(0)")
    a("s_load_dword s48, s[40:41], 0")
    if B0: a("s_barrier")
    a("s_cmp_ge_u32 s58, 43\ns_cbranch_scc1 L_a_c3")
    a(f"buffer_store_dwordx4 v[100:103], v7, {sWS}, s59 offen")
    a("L_a_c3:")
    stamp(1)
    a("v_lshlrev_b32 v14, 10, v11\nv_lshl_add_u32 v14, v9, 7, v14\nv_lshl_add_u32 v14, v12, 3, v14\nv_lshrrev_b32 v4, 1, v9\nv_lshl_add_u32 v14, v4, 5, v14\nv_lshl_add_u32 v14, v13, 6, v14")
    a("s_lshl_b32 s7, s3, 6\nv_xor_b32 v14, s7, v14\nv_xor_b32 v15, 32, v14")
    a(f"v_lshrrev_b32 v4, 3, v10\nv_lshl_add_u32 v4, v4, 2, v12\nv_mul_u32_u24 v4, 1040, v4\nv_lshl_add_u32 v4, v11, 4, v4\ns_and_b32 s57, s5, 3\ns_lshl_b32 s7, s57, 8\ns_add_u32 s7, s7, {L_OP}\nv_add_u32 v4, s7, v4")
    a("v_and_b32 v5, 31, v1\nv_lshrrev_b32 v6, 5, v1\nv_lshlrev_b32 v2, 2, v5\nv_lshl_add_u32 v2, v6, 15, v2")
    a(f"s_lshl_b32 s55, s4, 16\ns_add_u32 s55, s55, {QB}")
    a(f"s_lshl_b32 s51, s57, 11\ns_lshr_b32 s7, s5, 2\ns_xor_b32 s7, s7, {CGX}\ns_lshl_b32 s7, s7, 8\ns_add_u32 s51, s51, s7\ns_lshl_b32 s7, s3, 7\ns_add_u32 s51, s51, s7\ns_add_u32 s51, s51, s55")
    a(f"s_add_u32 s52, s51, 8192\ns_add_u32 s53, s51, 16384\ns_add_u32 s54, s51, 24576\nv_add_u32 v3, {QX}, v2\nv_mov_b32 v104, 0xff")
    a(f"s_lshr_b32 s7, s5, 2\ns_lshl_b32 s60, s7, 13\ns_add_u32 s60, s60, s55\ns_lshl_b32 s7, s3, 7\ns_add_u32 s60, s60, s7\ns_add_u32 s61, s60, {QX}\ns_add_u32 s62, s60, 4096\ns_mov_b32 s49, s60")
    a("v_lshrrev_b32 v106, 3, v1\nv_and_b32 v5, 7, v1\nv_and_b32 v13, 1, v106\nv_lshlrev_b32 v106, 8, v106\nv_lshl_add_u32 v106, v5, 4, v106")
    a(f"v_lshlrev_b32 v13, 9, v13\nv_lshrrev_b32 v5, 1, v5\nv_lshl_add_u32 v13, v5, 6, v13\nv_lshl_add_u32 v13, v11, 4, v13\nv_and_b32 v5, 1, v1\nv_lshl_add_u32 v13, v5, 3, v13\ns_lshl_b32 s7, s3, 8\ns_add_u32 s7, s7, {L_QL}\nv_add_u32 v13, s7, v13")
    a("v_lshlrev_b32 v105, 1, v12")
    a("s_waitcnt lgkmcnt(0)\ns_add_u32 s48, s48, 1\ns_lshl_b32 s63, s63, 4\ns_and_b32 s7, s48, 15\ns_or_b32 s63, s63, s7\nv_lshrrev_b32 v105, v105, s63")
    a("s_bfe_u32 s98, s63, 0x20000\ns_bfe_u32 s99, s63, 0x20002\ns_bfe_u32 s100, s63, 0x20004\ns_bfe_u32 s101, s63, 0x20006")
    a("s_waitcnt vmcnt(0)")
    stamp(2)
    a("s_barrier")
    stamp(3)
    if debug: a("s_waitcnt lgkmcnt(0)")
    for ks in range(4):
        a(f"ds_read_b128 v[{16+4*ks}:{19+4*ks}], v4 offset:{ks*64}")
        trfrag(32+8*ks, 14, ks*4096, 512); trfrag(36+8*ks, 15, ks*4096, 512)
        if ks == 2: a("s_waitcnt lgkmcnt(10)"); mfma(96, 16, 32); mfma(100, 16, 36)
    for ks in range(1, 4):
        a(f"s_waitcnt lgkmcnt({5*(3-ks)})")
        mfma(96, 16+4*ks, 32+8*ks, 96); mfma(100, 16+4*ks, 36+8*ks, 100)
    for j in range(4): a(f"v_mov_b32_dpp v{96+j}, v{100+j} quad_perm:[0,1,2,3] row_mask:0xa bank_mask:0xf")
    for j in range(4): a(f"v_bfi_b32 v{96+j}, 3, v105, v{96+j}")
    for j in range(4): a(f"buffer_store_dword v{96+j}, v2, {sWS}, s{51+j} offen")
    if BQ: a("s_barrier")
    stamp(4)
    a("v_lshrrev_b32 v9, 3, v1\nv_and_b32 v12, 7, v1\nv_lshrrev_b32 v4, 1, v12")
    a(f"v_mul_u32_u24 v15, {RG}, v4\nv_lshl_add_u32 v15, v9, 4, v15\nv_lshl_add_u32 v15, v5, 3, v15\ns_lshl_b32 s7, s3, 7\ns_add_u32 s7, s7, {L_RD}\nv_add_u32 v15, s7, v15")
    a("v_lshlrev_b32 v5, 2, v12\nv_lshl_add_u32 v6, v9, 10, v5")
    a("s_or_b32 s96, s96, 15")
    a("s_barrier")
    if M1: a("s_barrier")
    stamp(8)
    def qld():
        for s in range(4): a(f"buffer_load_dwordx4 v[{16+4*s}:{19+4*s}], v106, {sWS}, {'s49' if s < 2 else 's62'} offen offset:{(s%2)*2048} sc1")
    qld()
    if PAIR: a("s_barrier")
    stamp(11)
    a("s_branch L_q_ld")
    a("L_q_poll:")
    spin(); a("s_and_b32 s7, s96, 7\ns_cselect_b32 s49, s60, s61\ns_cbranch_scc1 L_q_ld2")
    for j in range(4): a(f"buffer_store_dword v{96+j}, v3, {sWS}, s{51+j} offen sc1")
    a("L_q_ld2:")
    a("s_add_u32 s62, s49, 4096")
    qld()
    a("L_q_ld:")
    a("s_waitcnt vmcnt(0)")
    if debug:
        a("s_and_b32 s7, s96, 15\ns_cmp_lg_u32 s7, 15\ns_cbranch_scc1 L_dbg1"); stamp(10); a("L_dbg1:")
    for i in range(16): a(f"v_xor_b32 v{16+i}, s{98+(i&3)}, v{16+i}")
    a("v_or_b32 v32, v16, v17\nv_or_b32 v33, v18, v19")
    for i in range(4, 16, 4): a(f"v_or3_b32 v32, v32, v{16+i}, v{17+i}\nv_or3_b32 v33, v33, v{18+i}, v{19+i}")
    a("v_and_b32 v32, 3, v32\nv_and_b32 v33, 3, v33\nv_cmp_ne_u32 vcc, 0, v32\nv_cmp_ne_u32 s[0:1], 0, v33")
    for i in range(0, 16, 4): a(f"v_and_b32 v{18+i}, -4, v{18+i}\nv_and_b32 v{19+i}, -4, v{19+i}")
    a("s_cbranch_vccnz L_q_poll")
    pk("add", 16, 16, 20); pk("add", 18, 18, 22); pk("add", 24, 24, 28); pk("add", 26, 26, 30); pk("add", 16, 16, 24); pk("add", 18, 18, 26)
    a(f"s_or_b32 s97, s0, s1\nv_mov_b32 v20, s97\nv_mov_b32 v21, {L_MD}")
    a("v_cvt_pk_bf16_f32 v16, v16, v17\nv_cvt_pk_bf16_f32 v17, v18, v19")
    a("ds_write_b64 v13, v[16:17]\nds_write_b32 v21, v20")
    stamp(5)
    a("s_cmp_eq_u32 s97, 0\ns_cbranch_scc1 L_a_fast")
    for j in range(4): a(f"buffer_store_dword v{96+j}, v3, {sWS}, s{51+j} offen sc1")
    for i in range(4): a(f"v_mov_b32 v{100+i}, -1")
    a(f"s_cmp_ge_u32 s58, 43\ns_cbranch_scc1 L_a_s1\ns_add_u32 s7, s59, {BX}")
    a(f"buffer_store_dwordx4 v[100:103], v7, {sWS}, s7 offen sc1")
    a("L_a_s1:")
    a(f"s_add_u32 s49, s6, {O_SY}\ns_lshl_b32 s7, s58, 2\ns_add_u32 s7, s7, s49\nv_mov_b32 v20, s48\nv_lshlrev_b32 v21, 2, v1\ns_waitcnt vmcnt(0)")
    a(f"buffer_store_dword v20, off, {sWS}, s7 sc1")
    a("L_a_s2:")
    spin()
    a(f"buffer_load_dword v22, v21, {sWS}, s49 offen sc1\ns_waitcnt vmcnt(0)\nv_cmp_ne_u32 vcc, s48, v22\ns_cbranch_vccnz L_a_s2")
    a("L_a_fast:")
    a("s_waitcnt lgkmcnt(0)\ns_barrier")
    if TOUCH:
        a("s_cmp_ge_u32 s58, 43\ns_cbranch_scc1 L_a_nt")
        a(f"buffer_load_dwordx4 v[100:103], v7, {sWS}, s59 offen sc1")
        a("L_a_nt:")
    a("s_barrier")
    a("s_barrier")
    a("s_barrier")
    a("s_cmp_ge_u32 s5, 16\ns_cbranch_scc1 L_a_gd")
    a(f"s_lshl_b32 s53, s4, 15\ns_and_b32 s7, s5, 8\ns_lshl_b32 s7, s7, 11\ns_add_u32 s53, s53, s7\ns_xor_b32 s7, s5, {WCX}\ns_and_b32 s7, s7, 7\ns_lshl_b32 s7, s7, 8\ns_add_u32 s53, s53, s7\ns_lshl_b32 s7, s3, 7\ns_add_u32 s53, s53, s7\ns_add_u32 s53, s53, {WP}")
    a("v_lshlrev_b32 v6, 4, v12\nv_lshl_add_u32 v6, v9, 11, v6")
    a(f"v_and_b32 v4, 3, v1\nv_mul_u32_u24 v15, {RG}, v4\nv_lshl_add_u32 v15, v9, 4, v15\nv_bfe_u32 v4, v1, 2, 1\nv_mul_i32_i24 v4, {L_OP+32-L_RD}, v4\ns_lshl_b32 s7, s3, 7\ns_add_u32 s7, s7, {L_RD}\nv_add3_u32 v15, v15, v4, s7")
    a("s_barrier")
    stamp(6)
    if RG_ == 1: flag_set(0)
    for w in range(8): a(f"ds_read_b128 v[{24+4*w}:{27+4*w}], v15 offset:{w*RW}")
    for w in range(0, 8, 2):
        a(f"s_waitcnt lgkmcnt({6-w})" if not debug else "s_waitcnt lgkmcnt(0)")
        pk("add", 24+4*w, 24+4*w, 28+4*w); pk("add", 26+4*w, 26+4*w, 30+4*w)
        if w == 2: pk("add", 24, 24, 32); pk("add", 26, 26, 34)
    pk("add", 40, 40, 48); pk("add", 42, 42, 50); pk("add", 24, 24, 40); pk("add", 26, 26, 42)
    for q in range(4): a(f"v_bfi_b32 v{24+q}, v104, s48, v{24+q}")
    a(f"buffer_store_dwordx4 v[24:27], v6, {sWS}, s53 offen sc1")
    if RG_ == 2: flag_set(0)
    stamp(7)
    a("s_cmp_lg_u32 s3, 0\ns_cbranch_scc1 L_a_end")
    a("s_and_b32 s50, s5, 1\ns_lshr_b32 s61, s5, 1\ns_lshl_b32 s7, s4, 3\ns_add_u32 s7, s7, s61")
    a(f"s_lshl_b32 s52, s7, 7\ns_lshl_b32 s62, s7, 4\ns_lshl_b32 s7, s50, 13\ns_add_u32 s52, s52, s7\ns_add_u32 s52, s52, {PO}\ns_lshl_b32 s7, s50, 12\ns_add_u32 s62, s62, s7")
    a("v_lshlrev_b32 v5, 4, v12\nv_lshl_add_u32 v5, v9, 14, v5")
    a("v_and_b32 v2, 3, v1\nv_bfe_u32 v3, v1, 2, 1\nv_lshrrev_b32 v4, 5, v1\nv_lshlrev_b32 v4, 2, v4\nv_lshl_add_u32 v4, v3, 3, v4\nv_lshl_add_u32 v6, v2, 10, v4\nv_lshl_add_u32 v4, v2, 7, v4")
    a(f"s_lshl_b32 s61, s61, 4\ns_lshl_b32 s7, s50, 9\ns_add_u32 s61, s61, s7\ns_add_u32 s61, s61, s6\ns_add_u32 s61, s61, {O_H}\ns_xor_b32 s53, s61, {BX}\ns_cmp_eq_u32 s97, 0\ns_cselect_b32 s51, s61, s53")
    a("s_and_b32 s49, s48, 0xff\ns_cmp_ge_u32 s5, 8\ns_cbranch_scc1 L_h_poll\ns_barrier")
    a("L_h_poll:")
    spin()
    a(f"buffer_load_dword v22, v4, {sWS}, s51 offen sc1")
    a("s_waitcnt vmcnt(0)")
    a("v_cmp_eq_u32 vcc, -1, v22\ns_cbranch_vccnz L_h_poll")
    unpack(20, 21, 22)
    stamp(9); cnt(2)
    if FG_: flag_wait("L_fg", O_FLG+128+64, 14, 122)
    if debug and opt.get("fs"): a(f"s_sleep {opt['fs']}")
    gather("L_f_poll", 7, 24, 56, 0x20000, "s49", FD, opt.get("fpm", 0))
    a("s_cbranch_scc1 L_f_poll" if opt.get("fpm", 0) else "s_cbranch_vccnz L_f_poll")
    stamp(12); cnt(3)
    a("v_mov_b32 v98, v96\nv_mov_b32 v99, v97\nv_permlane16_swap_b32 v96, v98\nv_permlane16_swap_b32 v97, v99")
    pk("add", 96, 96, 98)
    a("v_add_f32_dpp v96, v96, v96 row_ror:8 row_mask:0xf bank_mask:0xf\nv_add_f32_dpp v97, v97, v97 row_ror:8 row_mask:0xf bank_mask:0xf")
    a("v_cvt_pk_bf16_f32 v98, v96, v97")
    unpack(22, 23, 98)
    pk("add", 22, 22, 20); a("v_cvt_pk_bf16_f32 v22, v22, v23")
    a("s_mov_b32 exec_lo, 0xff\ns_mov_b32 exec_hi, 0xff")
    a(f"buffer_store_dword v22, v6, {sOUT}, s62 offen")
    stamp(13)
    a("s_cmp_lg_u32 s62, 0\ns_cbranch_scc1 L_a_end")
    a("v_mov_b32 v22, s48\ns_mov_b64 exec, 1")
    a(f"buffer_store_dword v22, off, {sWS}, 0")
    a("s_branch L_a_end")
    a("L_a_gd:")
    a("s_cmp_ge_u32 s5, 30\ns_cbranch_scc1 L_a_end")
    a(f"v_lshrrev_b32 v4, 5, v1\nv_bfe_u32 v13, v1, 2, 1\nv_lshl_add_u32 v13, v4, 1, v13\nv_mul_u32_u24 v15, {RG}, v13\nv_and_b32 v13, 3, v9\nv_lshl_add_u32 v15, v13, 4, v15\nv_and_b32 v13, 3, v1\nv_lshl_add_u32 v15, v13, 2, v15")
    a(f"s_lshl_b32 s7, s3, 7\ns_add_u32 s7, s7, {L_RD}\nv_add_u32 v15, s7, v15")
    a(f"v_lshlrev_b32 v14, 1, v12\nv_lshl_add_u32 v14, v4, 4, v14\nv_and_b32 v13, 3, v9\nv_lshl_add_u32 v14, v13, 6, v14\ns_lshl_b32 s7, s3, 5\ns_add_u32 s7, s7, {L_PB}\nv_add_u32 v14, s7, v14\nv_add_u32 v4, 64, v15")
    a(f"s_mov_b32 s57, {hex(LOG2E ^ 0x80000000)}")
    a("s_barrier")
    stamp(6)
    if FG_ == 1: flag_set(128)
    for w in range(4): a(f"ds_read2st64_b32 v[{24+2*w}:{25+2*w}], v15 offset0:{10*w} offset1:{10*w+5}")
    for w in range(4): a(f"ds_read2st64_b32 v[{32+2*w}:{33+2*w}], v4 offset0:{10*w} offset1:{10*w+5}")
    a("s_waitcnt lgkmcnt(4)" if not debug else "s_waitcnt lgkmcnt(0)")
    pk("add", 24, 24, 26); pk("add", 28, 28, 30); pk("add", 24, 24, 28); a("v_add_f32 v24, v24, v25")
    a("v_cvt_pk_bf16_f32 v24, v24, v24\nv_and_b32 v26, s56, v24")
    a("v_mul_f32 v26, s57, v26\nv_exp_f32 v26, v26")
    a("s_waitcnt lgkmcnt(0)")
    pk("add", 32, 32, 34); pk("add", 36, 36, 38)
    a("v_add_f32 v26, 1.0, v26\nv_rcp_f32 v26, v26")
    pk("add", 32, 32, 36); a("v_add_f32 v25, v32, v33")
    a("v_cvt_pk_bf16_f32 v26, v26, v25")
    unpack(25, 26, 26)
    a("v_mul_f32 v26, v26, v25")
    a("v_cvt_pk_bf16_f32 v26, v26, v26\nds_write_b16 v14, v26\ns_waitcnt lgkmcnt(0)\ns_barrier")
    if FG_ == 2: flag_set(128)
    stamp(7)
    a("L_a_end:")
    if debug:
        a("s_mov_b64 exec, -1\ns_cmp_lg_u32 s3, 0\ns_cbranch_scc1 L_end")
        a(f"s_lshl_b32 s7, s2, 8\ns_add_u32 s7, s7, {hex(STAMP+128)}\ns_branch L_stamps")
    a("L_end:\ns_endpgm")
    lines = hz.fix(a.l)
    hdr = open("header.txt").read()
    return wrap("\n".join(lines) + "\n", 256, 640, L_END, 128, sgpr=102, header=hdr)

if __name__ == "__main__":
    specs = sys.argv[1:] or ["k8"]
    for sp in specs:
        nm, _, o = sp.partition(":")
        opt = {}
        for kv in filter(None, o.split(",")):
            k, v = kv.split("=")
            try: v = int(v)
            except ValueError: pass
            opt[k] = v
        open(nm + ".s", "w").write(gen(False, **opt))
        open(nm + "d.s", "w").write(gen(True, **opt))
```

```python
import sys
from asmlib import *
import hz

GB=0x40000; GSH=17
O_OB=0; O_XN=0x8000; O_H=0xA000; O_LSE=0xA400; O_FLG=0xA800; O_SY=0xB000; BX=0x10000
WP=0x140000; PO=0x300000; L_DN=65536
QB=0x200000; QX=0x80000
STAMP=128<<20
L_W=0
L_QL=114688
L_MX=L_QL+1024
L_LS=L_MX+128
L_OP=L_LS+128
L_RD=L_OP+16384
L_PB=L_RD+10240
L_MD=L_PB+1152
L_END=L_MD+64
RW=1280; RG=320
sX,sK,sV,sWQ,sWO,sG,sU,sOUT,sWS,sD = [f"s[{i}:{i+3}]" for i in range(8,48,4)]
LOG2E=0x3fb8aa3b; SCALE=0x3db504f3; EPS=0x3727c5ac

def gen(debug=False, **opt):
    NT = opt.get("nt", "nt")
    K0 = opt.get("k0", 2); K1 = opt.get("k1", 3); BQ = opt.get("bq", 1); GS = opt.get("gsleep", 0); B0 = opt.get("b0", 1); TOUCH = opt.get("touch", 1); SLOW = opt.get("slow", 0); DW = opt.get("dw", 0); PAIR = opt.get("pair", 1); DIAG = opt.get("diag", 0)
    W1 = opt.get("w1", 1); W2 = opt.get("w2", 1); CGX = opt.get("cgx", 4); WCX = opt.get("wcx", 4)
    G1 = opt.get("g1", 3)
    RD = opt.get("rd", 1); FD = opt.get("fd", 1); QSL = opt.get("qsl", 0); WSL = opt.get("wsl", 1); WALL = opt.get("wall", 0); GPF = opt.get("gpf", 1); WG_ = opt.get("wg", 0); RG_ = opt.get("rg", 1); FG_ = opt.get("fg", 2); G2 = opt.get("g2", 3); GSL = opt.get("gsl", 0); GSP = opt.get("gsp", 1); GD = opt.get("gd", 1)
    NTW = opt.get("ntw", "nt")
    if NTW == "df": NTW = ""
    M1 = opt.get("m1", 2)
    PREOWN = opt.get("preown", 1)
    MASKP = opt.get("maskp", 1)
    DHINT = opt.get("dhint", 0)
    if WALL: WSL = 0; W1 = W2 = 3
    MAP = opt.get("map", 1)
    if MAP:
        QS = lambda r: f"s_lshr_b32 {r}, s5, 3\ns_and_b32 {r}, {r}, 2\ns_bitcmp1_b32 s5, 0\ns_addc_u32 {r}, {r}, 0"
        CG = CW = "s_bfe_u32 s7, s5, 0x30001\ns_xor_b32 s7, s7, 4"
        KH8 = "s_and_b32 s7, s5, 1\ns_lshl_b32 s7, s7, 3"
    else:
        QS = lambda r: f"s_and_b32 {r}, s5, 3"
        CG = f"s_lshr_b32 s7, s5, 2\ns_xor_b32 s7, s7, {CGX}"; CW = f"s_xor_b32 s7, s5, {WCX}\ns_and_b32 s7, s7, 7"; KH8 = "s_and_b32 s7, s5, 8"
    a = Asm()
    def stamp(i):
        if debug: a(f"s_memrealtime s[{64+2*i}:{65+2*i}]")
    def cnt(i):
        if debug: a(f"s_waitcnt lgkmcnt(0)\ns_sub_u32 s7, 300000, s96\ns_mul_i32 s7, s7, 100\ns_add_u32 s{64+2*i}, s64, s7\ns_addc_u32 s{65+2*i}, s65, 0")
    def spin(): a("s_sub_u32 s96, s96, 1\ns_cbranch_scc1 L_end")
    def spin_ab(dst, sa, sb):
        spin(); a(f"s_and_b32 s7, s96, 15")
        for d, x, y in zip(dst, sa, sb): a(f"s_cselect_b32 {d}, {x}, {y}")
    def unpack(dlo, dhi, src): a(f"v_lshlrev_b32 v{dlo}, 16, v{src}\nv_and_b32 v{dhi}, s56, v{src}")
    def pk(op, d, x, y, mods=""): a(f"v_pk_{op}_f32 v[{d}:{d+1}], v[{x}:{x+1}], v[{y}:{y+1}] {mods}")
    def dma(voff, srd, soff, lds):
        a(f"s_mov_b32 m0, {lds}\nbuffer_load_dwordx4 v{voff}, {srd}, {soff} offen {NTW} lds")
    def dma2(voff, srd, soff, lds, stride):
        dma(voff, srd, soff, lds)
        a(f"s_add_u32 m0, {lds}, 1024\ns_add_u32 s7, {soff}, {4*stride}")
        a(f"buffer_load_dwordx4 v{voff}, {srd}, s7 offen {NTW} lds")
    def trfrag(dst, vaddr, off, d2=1024):
        a(f"ds_read_b64_tr_b16 v[{dst}:{dst+1}], v{vaddr} offset:{off}")
        a(f"ds_read_b64_tr_b16 v[{dst+2}:{dst+3}], v{vaddr} offset:{off+d2}")
    def mfma(d, A, B, C=None):
        c = "0" if C is None else f"v[{C}:{C+3}]"
        a(f"v_mfma_f32_16x16x32_bf16 v[{d}:{d+3}], v[{A}:{A+3}], v[{B}:{B+3}], {c}")
    def check_sent(regs, t):
        r = list(regs)
        a(f"v_max3_u32 v{t}, v{r[0]}, v{r[1]}, v{r[2]}"); r = r[3:]
        while len(r) >= 2:
            a(f"v_max3_u32 v{t}, v{t}, v{r[0]}, v{r[1]}"); r = r[2:]
        if r: a(f"v_max_u32 v{t}, v{t}, v{r[0]}")
        a(f"v_cmp_eq_u32 vcc, -1, v{t}")
    def stats(s1, s2, t, vc=None):
        if vc is None: a(f"v_mul_f32 v{t+1}, 0x3b000000, {s1}\nv_mul_f32 v{t+2}, 0x3b000000, {s2}")
        else: a(f"v_mul_f32 v{t+1}, {s1}, v{vc}\nv_mul_f32 v{t+2}, {s2}, v{vc}")
        a(f"v_fma_f32 v{t+2}, -v{t+1}, v{t+1}, v{t+2}\nv_max_f32 v{t+2}, 0, v{t+2}")
        a(f"v_cvt_pk_bf16_f32 v{t+1}, v{t+1}, v{t+2}")
        a(f"v_and_b32 v{t+2}, s56, v{t+1}\nv_lshlrev_b32 v{t+1}, 16, v{t+1}")
        a(f"v_add_f32 v{t+2}, {hex(EPS)}, v{t+2}\nv_cvt_pk_bf16_f32 v{t+2}, v{t+2}, v{t+2}\nv_and_b32 v{t+2}, s56, v{t+2}")
        a(f"v_sqrt_f32 v{t+2}, v{t+2}")
    def stats2(t): a(f"v_cvt_pk_bf16_f32 v{t+2}, v{t+2}, v{t+2}\nv_and_b32 v{t+2}, s56, v{t+2}\nv_rcp_f32 v{t+2}, v{t+2}")
    def wred2(x, y):
        for m in ["quad_perm:[1,0,3,2] row_mask:0xf", "quad_perm:[2,3,0,1] row_mask:0xf", "row_half_mirror row_mask:0xf", "row_mirror row_mask:0xf",
                  "row_bcast:15 row_mask:0xa", "row_bcast:31 row_mask:0xc"]:
            a(f"v_add_f32_dpp v{x}, v{x}, v{x} {m} bank_mask:0xf\nv_add_f32_dpp v{y}, v{y}, v{y} {m} bank_mask:0xf")
    def red8(addr, n=8):
        for w in range(n): a(f"ds_read_b64 v[{24+2*w}:{25+2*w}], v{addr} offset:{w*RW}")
        a("s_waitcnt lgkmcnt(0)")
        pk("add", 24, 24, 26); pk("add", 28, 28, 30); pk("add", 32, 32, 34)
        if n == 8: pk("add", 36, 36, 38)
        pk("add", 24, 24, 28); pk("add", 32, 32, 36); pk("add", 24, 24, 32)
    def gather(lab, n, raw, cp, stride, tag, depth, pm):
        def rnd(m):
            a("s_mov_b32 s51, s52")
            for r in range(n):
                if m and pm: a(f"s_wqm_b64 exec, s[{8+2*r}:{9+2*r}]")
                a(f"buffer_load_dwordx4 v[{raw+4*r}:{raw+3+4*r}], v5, {sWS}, s51 offen sc1")
                if r < n-1: a(f"s_add_u32 s51, s51, {stride}")
        for _ in range(depth): rnd(0)
        a(f"s_branch {lab}_c")
        a(f"{lab}:")
        if not pm: a("s_wqm_b64 exec, vcc")
        spin()
        rnd(1)
        a("s_mov_b64 exec, -1")
        a(f"{lab}_c:")
        for r in range(n):
            c = cp+4*r
            a(f"s_waitcnt vmcnt({n*depth-1-r})")
            for q in range(4): a(f"v_xor_b32 v{c+q}, {tag}, v{raw+4*r+q}")
            if pm:
                a(f"v_or3_b32 v102, v{c}, v{c+1}, v{c+2}\nv_or_b32 v102, v102, v{c+3}\nv_and_b32 v102, 0xff, v102\nv_cmp_ne_u32 s[{8+2*r}:{9+2*r}], 0, v102")
            elif r == 0: a(f"v_or3_b32 v102, v{c}, v{c+1}, v{c+2}\nv_or_b32 v102, v102, v{c+3}")
            else: a(f"v_or3_b32 v102, v102, v{c}, v{c+1}\nv_or3_b32 v102, v102, v{c+2}, v{c+3}")
            if r: pk("add", 96, cp if r == 1 else 96, c); pk("add", 98, cp+2 if r == 1 else 98, c+2)
            if pm and r >= 2: a(f"s_or_b64 vcc, {'s[8:9]' if r == 2 else 'vcc'}, s[{6+2*r}:{7+2*r}]")
        a("v_permlane32_swap_b32 v96, v98\nv_permlane32_swap_b32 v97, v99")
        if pm: a(f"s_or_b64 vcc, vcc, s[{6+2*n}:{7+2*n}]")
        else: a("v_and_b32 v102, 0xff, v102\nv_cmp_ne_u32 vcc, 0, v102")
        pk("add", 96, 96, 98)
    def flag_set(off):
        a(f"s_lshl_b32 s7, s5, 2\ns_add_u32 s7, s7, s6\ns_add_u32 s7, s7, {O_FLG}\ns_cmp_eq_u32 s3, 0\ns_cselect_b64 exec, 1, 0")
        a(f"buffer_store_dword v1, off, {sWS}, s7 offset:{off}\ns_mov_b64 exec, -1")
    def flag_wait(lab, off, n, vt):
        a(f"s_cmp_lg_u32 s97, 0\ns_cbranch_scc1 {lab}_x\ns_add_u32 s51, s6, {off}\nv_min_u32 v{vt}, {n-1}, v1\nv_lshlrev_b32 v{vt}, 2, v{vt}")
        a(f"{lab}:")
        spin()
        a(f"buffer_load_dword v{vt+1}, v{vt}, {sWS}, s51 offen sc1\ns_waitcnt vmcnt(0)\nv_cmp_eq_u32 vcc, -1, v{vt+1}\ns_cbranch_vccnz {lab}")
        a(f"{lab}_x:")
    def rot(frm, to):
        k = 4 * ((to - frm) & 3)
        return f"row_ror:{k}" if k else "quad_perm:[0,1,2,3]"

    a("s_cmp_ge_u32 s2, 256\ns_cbranch_scc1 L_end")
    stamp(0)
    for d, o in [(8,0),(20,24),(12,8),(40,88),(16,16),(24,32),(28,48),(32,56),(44,64),(36,72)]:
        a(f"s_load_dwordx2 s[{d}:{d+1}], s[0:1], {o}")
    a("v_lshrrev_b32 v9, 6, v0\nv_and_b32 v1, 63, v0")
    a("s_getpc_b64 s[60:61]")
    a("L_pc:")
    a("v_readfirstlane_b32 s3, v9")
    a("s_and_b32 s4, s2, 7\ns_lshr_b32 s5, s2, 3")
    a(f"s_lshl_b32 s7, s3, 5\ns_add_u32 s7, s7, s5\ns_lshl_b32 s7, s7, 7\ns_min_u32 s7, s7, L_end-L_pc\nv_mov_b32 v2, s7")
    a("global_load_dword v127, v2, s[60:61]")
    a(f"s_lshl_b32 s6, s4, {GSH}\ns_add_u32 s6, s6, {GB}")
    for d, n in [(8, 8192), (40, 256<<20), (20, 4<<20), (12, 64<<20), (16, 64<<20), (24, 4<<20), (28, 512*3584), (32, 512*3584), (36, 8192), (44, 1792*1024)]:
        a(f"s_mov_b32 s{d+2}, {hex(n)}\ns_mov_b32 s{d+3}, 0x20000")
    a("s_mov_b32 s56, 0xffff0000\ns_mov_b32 s96, 300000")
    a("v_lshlrev_b32 v7, 4, v1\nv_lshlrev_b32 v8, 3, v1")
    a("v_and_b32 v10, 15, v1\nv_lshrrev_b32 v11, 4, v1")
    a("v_and_b32 v12, 3, v1\nv_bfe_u32 v9, v1, 2, 2\nv_and_b32 v13, 1, v11")
    a("s_cmp_lt_u32 s3, 2\ns_cbranch_scc1 L_aux")
    a("s_sub_u32 s3, s3, 2")
    a("v_lshrrev_b32 v4, 3, v1\nv_and_b32 v5, 7, v1\nv_and_b32 v6, 2, v4\nv_xor_b32 v5, v5, v6\nv_lshlrev_b32 v5, 4, v5\nv_lshl_add_u32 v4, v4, 13, v5\nv_xor_b32 v5, 64, v4")
    a("v_lshlrev_b32 v2, 4, v12\nv_lshl_add_u32 v2, v11, 6, v2\nv_lshl_add_u32 v2, v9, 10, v2")
    a("s_lshr_b32 s7, s5, 2\ns_lshl_b32 s48, s7, 23\ns_lshl_b32 s7, s4, 20\ns_add_u32 s48, s48, s7")
    a("s_and_b32 s7, s5, 3\ns_lshl_b32 s7, s7, 16\ns_add_u32 s48, s48, s7\ns_lshl_b32 s7, s3, 13\ns_add_u32 s48, s48, s7\ns_add_u32 s48, s48, 786432")
    a("s_add_u32 s49, s48, 4096")
    a(f"{QS('s7')}\ns_lshl_b32 s7, s7, 3\ns_add_u32 s7, s7, s3\ns_lshl_b32 s51, s7, 17\ns_lshl_b32 s7, s4, 10\ns_add_u32 s51, s51, s7\n{CG}\ns_lshl_b32 s7, s7, 7\ns_add_u32 s51, s51, s7\ns_add_u32 s52, s51, 65536")
    a("s_lshl_b32 s54, s3, 11\ns_lshl_b32 s55, s3, 10\ns_mov_b32 m0, s54")
    if QSL: a("s_bfe_u32 s61, s51, 0x30007\ns_cmp_eq_u32 s61, 3")
    def kload(t):
        i = 2*t if t < 4 else 2*(t-4)+1
        a(f"buffer_load_dwordx4 v[{16+4*t}:{19+4*t}], v2, {sK}, s{48+i//4} offen offset:{(i%4)*256} {NT}")
    def vload(i): a(f"buffer_load_dwordx4 v[{48+4*i}:{51+4*i}], v3, {sV}, s{48+i//4} offen offset:{(i%4)*256} {NT}")
    a("s_waitcnt lgkmcnt(0)")
    a(f"buffer_load_dwordx4 v[96:99], v7, {sX}, s55 offen")
    if QSL: a("s_cbranch_scc1 L_q_late")
    a(f"buffer_load_dwordx4 v4, {sWQ}, s51 offen {NT} lds\ns_add_u32 m0, s54, 1024")
    a(f"buffer_load_dwordx4 v5, {sWQ}, s52 offen {NT} lds")
    a("L_q_late:")
    if B0: a("s_barrier")
    for t in range(K0): kload(t)
    a("s_load_dword s100, s[40:41], 0")
    stamp(1)
    a("v_lshrrev_b32 v14, 2, v1\nv_lshlrev_b32 v14, 6, v14\nv_lshl_add_u32 v14, v12, 3, v14\nv_lshl_add_u32 v14, v13, 5, v14")
    a("v_lshl_add_u32 v9, v11, 3, v9")
    a("v_lshlrev_b32 v13, 1, v13\nv_xor_b32 v12, v12, v13\nv_lshlrev_b32 v12, 4, v12")
    a("v_lshl_add_u32 v5, v9, 10, v12")
    a("v_mul_u32_u24 v6, 3584, v9\nv_add_u32 v6, v6, v12")
    a("v_lshlrev_b32 v3, 4, v10\nv_lshl_add_u32 v3, v11, 10, v3")
    a("s_and_b32 s50, s5, 1")
    a("s_lshl_b32 s53, s3, 1\ns_add_u32 s53, s53, s50")
    a("s_lshl_b32 s54, s53, 11\ns_xor_b32 s55, s54, 2048")
    a(f"s_mul_i32 s7, s3, 1040\ns_add_u32 s7, s7, {L_OP}\nv_add_u32 v13, s7, v7")
    a("s_mov_b32 s57, 0x3f803f80\nv_mov_b32 v100, 0\nv_mov_b32 v101, 0\nv_mov_b32 v102, 0x3b000000")
    a(f"s_waitcnt vmcnt({K0+2})")
    if QSL:
        a(f"s_cmp_eq_u32 s61, 3\ns_cbranch_scc0 L_q_l2\nv_xor_b32 v103, 64, v4\ns_waitcnt vmcnt({K0})")
        a(f"buffer_load_dwordx4 v4, {sWQ}, s51 offen {NT} lds\ns_add_u32 m0, m0, 1024")
        a(f"buffer_load_dwordx4 v103, {sWQ}, s52 offen {NT} lds")
        a("L_q_l2:")
    stamp(2)
    for i in range(4): a(f"v_dot2c_f32_bf16 v100, s57, v{96+i}\nv_dot2c_f32_bf16 v101, v{96+i}, v{96+i}")
    for i in range(4): unpack(112+2*i, 113+2*i, 96+i)
    wred2(100, 101)
    a("v_readlane_b32 s58, v100, 63\nv_readlane_b32 s59, v101, 63")
    stats("s58", "s59", 109, 102)
    for j in range(4): a(f"v_pk_add_f32 v[{112+2*j}:{113+2*j}], v[{112+2*j}:{113+2*j}], v[110:111] op_sel_hi:[1,0] neg_lo:[0,1] neg_hi:[0,1]")
    stats2(109)
    for j in range(4): a(f"v_cvt_pk_bf16_f32 v{96+j}, v{112+2*j}, v{113+2*j}")
    for j in range(4): unpack(112+2*j, 113+2*j, 96+j)
    for j in range(4): a(f"v_pk_mul_f32 v[{112+2*j}:{113+2*j}], v[{112+2*j}:{113+2*j}], v[110:111] op_sel:[0,1] op_sel_hi:[1,1]")
    for j in range(4): a(f"v_cvt_pk_bf16_f32 v{96+j}, v{112+2*j}, v{113+2*j}")
    a("ds_write_b128 v13, v[96:99]")
    for t in range(K0, K0+K1): kload(t)
    for i in range(16): a(f"v_mov_b32 v{80+i}, 0")
    a(f"v_add_u32 v13, {L_QL}, v7")
    a(f"v_and_b32 v12, 3, v10\nv_lshlrev_b32 v12, 5, v12\nv_add_u32 v12, {L_MX}, v12")
    a(f"s_lshl_b32 s7, s3, 2\nv_add_u32 v9, s7, v12")
    a(f"s_mov_b32 s57, {hex(SCALE)}\ns_mov_b32 s58, {hex(LOG2E)}\ns_mov_b32 s59, 0x05040100\ns_mov_b32 s60, 0x07060302")
    a(f"s_mul_i32 s7, s3, {RW}\ns_add_u32 s7, s7, {L_RD}\nv_mul_u32_u24 v15, {RG}, v11\nv_lshl_add_u32 v15, v10, 4, v15\nv_add_u32 v15, s7, v15")
    a("s_lshr_b32 s7, s5, 2\ns_and_b32 s61, s5, 2\ns_lshl_b32 s61, s61, 2\ns_add_u32 s61, s61, s7")
    a("s_lshl_b32 s98, s3, 13\ns_lshl_b32 s7, s50, 11\ns_add_u32 s98, s98, s7\ns_lshl_b32 s7, s61, 4\ns_add_u32 s98, s98, s7\ns_add_u32 s98, s98, s6")
    a(f"s_lshl_b32 s99, s3, 4\ns_add_u32 s99, s99, s61\ns_lshl_b32 s99, s99, 1\ns_add_u32 s99, s99, s50\ns_lshl_b32 s99, s99, 2\ns_add_u32 s99, s99, s6\ns_add_u32 s99, s99, {O_LSE}")
    if QSL: a(f"s_bfe_u32 s7, s51, 0x30007\ns_cmp_eq_u32 s7, 3\ns_cbranch_scc0 L_q_l3\ns_waitcnt vmcnt({K1})\nL_q_l3:")
    a(f"s_waitcnt vmcnt({K0+K1}) lgkmcnt(0)\ns_barrier")
    if BQ: a("s_barrier")
    stamp(3)
    for t in range(K0+K1, 8): kload(t)
    a("s_barrier")
    for i in range(M1): vload(i)
    if M1: a("s_barrier")
    if PAIR: a("s_barrier")
    for i in range(M1, 8): vload(i)
    a("s_cmp_ge_u32 s5, 30\ns_cbranch_scc1 L_D\ns_cmp_ge_u32 s5, 16\ns_cbranch_scc1 L_G")

    def attn(role, hook):
        n = hook(0)
        stamp(4)
        if debug and role != "W": a(f"s_waitcnt vmcnt({8+n})"); stamp(14); a(f"s_waitcnt vmcnt({n if DIAG else 8+n-M1})"); stamp(15)
        a("s_barrier")
        stamp(5)
        a(f"ds_read_b128 v[104:107], v13\nv_mov_b32 v110, {L_MD}\nds_read_b32 v108, v110")
        a(f"s_waitcnt vmcnt({8 + n}) lgkmcnt(0)")
        D = [96] + [16+4*(t-1) for t in range(1, 8)]
        for t in range(8): mfma(D[t], 16+4*t, 104)
        def op(k, t):
            tt = t & 3; j = (tt + k) & 3
            if k < 3: a(f"v_add_f32_dpp v{D[t]+tt}, v{D[t]+j}, v{D[t]+tt} {rot(j, tt)} row_mask:0xf bank_mask:0xf")
            else: a(f"v_add_f32_dpp v{100+(t>>2)}, v{D[t]+j}, v{D[t]+tt} {rot(j, tt)} row_mask:0xf bank_mask:{hex(1<<tt)}")
        for t in range(8): op(1, t)
        a("v_readfirstlane_b32 s97, v108")
        od = [0, 4, 1, 5, 2, 6, 3, 7]
        for i in range(11):
            if i < 8: op(2, od[i])
            if i >= 3: op(3, od[i-3])
        a("v_cvt_pk_bf16_f32 v102, v100, v101"); unpack(100, 101, 102)
        a("v_mul_f32 v100, s57, v100\nv_mul_f32 v101, s57, v101")
        a("v_cvt_pk_bf16_f32 v102, v100, v101"); unpack(100, 101, 102)
        def allred(opn):
            a(f"v_{opn}_f32 v102, v100, v101")
            a(f"v_{opn}_f32_dpp v102, v102, v102 row_ror:4 row_mask:0xf bank_mask:0xf\nv_{opn}_f32_dpp v102, v102, v102 row_ror:8 row_mask:0xf bank_mask:0xf")
            a(f"v_mov_b32 v103, v102\nv_permlane16_swap_b32 v102, v103\nv_{opn}_f32 v102, v102, v103")
            a(f"v_mov_b32 v103, v102\nv_permlane32_swap_b32 v102, v103\nv_{opn}_f32 v102, v102, v103")
        allred("max")
        a("ds_write_b32 v9, v102")
        a("s_waitcnt lgkmcnt(0)\ns_barrier")
        a("ds_read_b128 v[104:107], v12\nds_read_b128 v[108:111], v12 offset:16")
        a("s_waitcnt lgkmcnt(0)")
        a("v_max3_f32 v102, v104, v105, v106\nv_max3_f32 v103, v107, v108, v109\nv_max3_f32 v102, v102, v110, v111\nv_max_f32 v104, v102, v103")
        a("v_sub_f32 v100, v100, v104\nv_sub_f32 v101, v101, v104\nv_mul_f32 v100, s58, v100\nv_mul_f32 v101, s58, v101\nv_exp_f32 v100, v100\nv_exp_f32 v101, v101")
        a("v_readlane_b32 s101, v104, s3")
        a("v_cvt_pk_bf16_f32 v105, v100, v101")
        allred("add")
        a(f"ds_write_b32 v9, v102 offset:{L_LS-L_MX}")
        for x in range(4):
            for c in range(4): a(f"v_mov_b32_dpp v{80+4*x+c}, v105 {rot(c, x)} row_mask:0xf bank_mask:{hex(1<<x)}")
        stamp(6)
        n += hook(1)
        a(f"s_lshl_b32 s7, s3, 11\ns_add_u32 s7, s7, {L_OP}\nv_add_u32 v12, s7, v8\nv_add_u32 v13, 1024, v12")
        a(f"s_lshl_b32 s7, s3, 9\ns_add_u32 s7, s7, {L_OP}\nv_and_b32 v106, 3, v1\nv_lshrrev_b32 v107, 2, v1\nv_lshlrev_b32 v104, 3, v107\nv_lshl_add_u32 v104, v106, 7, v104\nv_add_u32 v104, s7, v104")
        a(f"s_lshl_b32 s7, s3, 5\ns_add_u32 s7, s7, {L_LS}\nv_mov_b32 v105, s7")
        a("v_and_b32 v9, 7, v107\nv_lshlrev_b32 v9, 8, v9\nv_lshl_add_u32 v9, v106, 2, v9\nv_lshrrev_b32 v107, 5, v1\nv_lshl_add_u32 v9, v107, 12, v9")
        for c in range(4):
            a(f"s_waitcnt vmcnt({n + 6 - 2*c})")
            for x in range(4):
                a(f"v_perm_b32 v{16+8*x+c}, v{48+4*(2*c+1)+x}, v{48+4*(2*c)+x}, s59")
                a(f"v_perm_b32 v{20+8*x+c}, v{48+4*(2*c+1)+x}, v{48+4*(2*c)+x}, s60")
        stamp(7)
        for x in range(4):
            mfma(96, 80+4*x, 16+8*x, None if x == 0 else 96)
            mfma(100, 80+4*x, 20+8*x, None if x == 0 else 100)
        hook(2)
        a("ds_write2_b32 v12, v96, v100 offset0:0 offset1:1\nds_write2_b32 v12, v97, v101 offset0:128 offset1:129")
        a("ds_write2_b32 v13, v98, v102 offset0:0 offset1:1\nds_write2_b32 v13, v99, v103 offset0:128 offset1:129")
        a("s_waitcnt lgkmcnt(0)\ns_barrier")
        stamp(8)
        a(f"s_cmp_ge_u32 s3, 4\ns_cbranch_scc1 L_pub_done{role}")
        a("ds_read_b128 v[96:99], v105\nds_read_b128 v[100:103], v105 offset:16")
        for w in range(8): a(f"ds_read_b64 v[{16+2*w}:{17+2*w}], v104 offset:{w*2048}")
        a("s_waitcnt lgkmcnt(8)" if not debug else "s_waitcnt lgkmcnt(0)")
        pk("add", 96, 96, 98); pk("add", 100, 100, 102); pk("add", 96, 96, 100); a("v_add_f32 v96, v96, v97")
        a("v_rcp_f32 v97, v96\nv_log_f32 v98, v96")
        a("s_waitcnt lgkmcnt(0)")
        pk("add", 16, 16, 18); pk("add", 20, 20, 22); pk("add", 24, 24, 26); pk("add", 28, 28, 30)
        pk("add", 16, 16, 20); pk("add", 24, 24, 28); pk("add", 16, 16, 24)
        a("v_mul_f32 v16, v16, v97\nv_mul_f32 v17, v17, v97\nv_cvt_pk_bf16_f32 v16, v16, v17")
        a("v_mov_b32 v99, s101\nv_fmac_f32 v98, s58, v99")
        a("v_min_u32 v16, -2, v16\nv_min_u32 v98, -2, v98")
        a(f"buffer_store_dword v16, v9, {sWS}, s98 offen")
        a("s_mov_b64 exec, 1")
        a(f"buffer_store_dword v98, off, {sWS}, s99")
        a(f"s_mov_b64 exec, -1\ns_cmp_eq_u32 s97, 0\ns_cbranch_scc1 L_pub_done{role}")
        a(f"s_lshl_b32 s7, s5, 10\ns_add_u32 s7, s7, s6\ns_lshl_b32 s49, s3, 8\ns_add_u32 s7, s7, s49\ns_add_u32 s7, s7, {BX}\ns_add_u32 s49, s99, {BX}\nv_lshlrev_b32 v4, 2, v1")
        a(f"buffer_store_dword v98, off, {sWS}, s49 sc1\nbuffer_store_dword v16, v4, {sWS}, s7 offen sc1")
        a(f"L_pub_done{role}:")
        a("s_barrier")
        stamp(9)
        if debug and GS and role != "W": a(f"s_sleep {GS}")
        hook(3)

    def hookW(p):
        n = 0
        if p == 0:
            a(f"s_lshl_b32 s51, s4, 19\n{KH8}\ns_add_u32 s7, s7, s3\ns_lshl_b32 s7, s7, 15\ns_add_u32 s51, s51, s7\n{CW}\ns_lshl_b32 s7, s7, 7\ns_add_u32 s51, s51, s7\ns_add_u32 s52, s51, 16384")
            a("s_lshl_b32 s54, s3, 12\ns_add_u32 s55, s54, 2048")
            a("s_and_b32 s7, s5, 7\ns_lshl_b32 s62, s7, 10\ns_and_b32 s7, s3, 3\ns_lshl_b32 s7, s7, 8\ns_add_u32 s62, s62, s7")
            a("v_and_b32 v6, 31, v1\nv_lshlrev_b32 v6, 3, v6\nv_lshrrev_b32 v113, 5, v1\nv_lshl_add_u32 v6, v113, 2, v6")
            a("v_lshrrev_b32 v113, 3, v1\nv_and_b32 v114, 7, v1\nv_and_b32 v115, 2, v113\nv_xor_b32 v114, v114, v115\nv_lshlrev_b32 v114, 4, v114\nv_lshl_add_u32 v113, v113, 10, v114\nv_xor_b32 v114, 64, v113")
        if p == 1: a(f"buffer_load_dword v112, v6, {sX}, s62 offen"); n += 1
        if p == 0: a("s_bfe_u32 s7, s51, 0x30007\ns_cmp_eq_u32 s7, 3\ns_cselect_b64 s[0:1], -1, 0")
        for pos, so, ld in ((W1, "s51", "s54"), (W2, "s52", "s55")):
            if WSL and pos != 3 and p in (pos, 3): a("s_mov_b64 exec, s[0:1]" if p == 3 else "s_not_b64 exec, s[0:1]")
            if p == pos or (WSL and p == 3):
                dma(113, sWO, so, ld)
                a(f"s_add_u32 m0, {ld}, 1024\ns_add_u32 s7, {so}, 8192\nbuffer_load_dwordx4 v114, {sWO}, s7 offen {NTW} lds"); n += 2
                if WSL: a("s_mov_b64 exec, -1")
        if p == 1:
            a("v_bfe_u32 v116, v1, 2, 2\nv_and_b32 v117, 3, v1\nv_lshlrev_b32 v14, 10, v11\nv_lshl_add_u32 v14, v116, 7, v14\nv_lshl_add_u32 v14, v117, 3, v14\nv_lshrrev_b32 v116, 1, v116\nv_lshl_add_u32 v14, v116, 5, v14\nv_and_b32 v116, 1, v11\nv_lshl_add_u32 v14, v116, 6, v14")
            a("v_add_u32 v14, s54, v14\nv_xor_b32 v3, 32, v14\nv_xor_b32 v116, 64, v14\nv_xor_b32 v117, 64, v3")
            a(f"{KH8}\ns_add_u32 s7, s7, s3\ns_lshr_b32 s63, s7, 2\ns_lshl_b32 s63, s63, 7\ns_add_u32 s63, s63, s6\ns_add_u32 s63, s63, {O_LSE}")
            a("s_lshl_b32 s61, s7, 6\ns_lshr_b32 s7, s7, 1\ns_lshl_b32 s48, s7, 12\ns_add_u32 s48, s48, s6\ns_and_b32 s7, s3, 1\ns_lshl_b32 s7, s7, 10\ns_add_u32 s48, s48, s7")
            a(f"v_lshlrev_b32 v2, 3, v10\nv_add_u32 v115, {L_OP+32-L_RD}, v15")
        return n
    attn("W", hookW)
    def w_loads():
        a(f"buffer_load_dwordx2 v[32:33], v2, {sWS}, s63 offen sc1")
        for u in range(2): a(f"buffer_load_dwordx4 v[{16+4*u}:{19+4*u}], v7, {sWS}, s48 offen offset:{u*2048} sc1")
    if WG_:
        a("s_waitcnt vmcnt(0)")
        trfrag(48, 14, 0, 512); trfrag(52, 3, 0, 512); trfrag(56, 116, 0, 512); trfrag(60, 117, 0, 512)
        flag_wait("L_wg", O_FLG+256, 32, 122)
    w_loads()
    a("v_and_b32 v9, 7, v10\nv_lshrrev_b32 v13, 3, v10\nv_lshl_add_u32 v13, v9, 1, v13")
    a("v_lshlrev_b32 v12, 11, v13\nv_lshl_add_u32 v12, v11, 4, v12")
    a(f"s_add_u32 s49, s6, s61\ns_add_u32 s49, s49, {BX}\ns_add_u32 s55, s63, {BX}")
    a("s_waitcnt vmcnt(3)")
    stamp(10)
    if not WG_: trfrag(48, 14, 0, 512); trfrag(52, 3, 0, 512); trfrag(56, 116, 0, 512); trfrag(60, 117, 0, 512)
    a("s_cmp_eq_u32 s97, 0\ns_cbranch_scc1 L_w_go\ns_waitcnt vmcnt(0)")
    a("L_w_b:")
    a(f"buffer_load_dwordx2 v[32:33], v2, {sWS}, s55 offen sc1")
    for jp in range(2): a(f"buffer_load_dwordx4 v[{16+4*jp}:{19+4*jp}], v12, {sWS}, s49 offen offset:{jp*1024} sc1")
    a("s_branch L_w_x")
    a("L_w_poll:")
    if MASKP: a("s_mov_b64 exec, vcc")
    spin(); a("s_cmp_eq_u32 s97, 0\ns_cbranch_scc0 L_w_b")
    w_loads()
    a("L_w_x:")
    if MASKP: a("s_mov_b64 exec, -1")
    a("L_w_go:")
    a("s_waitcnt vmcnt(1) lgkmcnt(0)")
    for c in range(4): mfma(64+8*c, 48+4*c, 16)
    a("v_max_f32 v36, v32, v33")
    a("v_max_f32_dpp v36, v36, v36 row_ror:8 row_mask:0xf bank_mask:0xf")
    a("v_sub_f32 v34, v32, v36\nv_sub_f32 v35, v33, v36\nv_exp_f32 v34, v34\nv_exp_f32 v35, v35")
    a("s_waitcnt vmcnt(0)")
    for c in range(4): mfma(68+8*c, 48+4*c, 20)
    a("v_add_f32 v36, v34, v35")
    a("v_add_f32_dpp v36, v36, v36 row_ror:8 row_mask:0xf bank_mask:0xf\nv_rcp_f32 v36, v36")
    check_sent(list(range(16, 24)) + [32, 33], 37)
    a("v_mul_f32 v34, v34, v36\nv_mul_f32 v38, v35, v36")
    if debug: a("s_cmp_lg_u32 s96, 300000\ns_cbranch_scc1 L_dw1"); stamp(2); a("L_dw1:")
    a("s_cbranch_vccnz L_w_poll")
    stamp(11)
    for st in range(2):
        rs = (64+8*st, 66+8*st, 80+8*st, 82+8*st)
        for r in rs: pk("mul", r, r, 34, "op_sel_hi:[1,0]")
        for r in rs: a(f"v_pk_fma_f32 v[{r}:{r+1}], v[{r+4}:{r+5}], v[38:39], v[{r}:{r+1}] op_sel_hi:[1,0,1]")
        for r in range(4): a(f"v_add_f32_dpp v{64+8*st+r}, v{64+8*st+r}, v{64+8*st+r} row_ror:8 row_mask:0xf bank_mask:0x3")
        for r in range(4): a(f"v_add_f32_dpp v{64+8*st+r}, v{80+8*st+r}, v{80+8*st+r} row_ror:8 row_mask:0xf bank_mask:0xc")
        a(f"ds_write_b128 v{15 if st == 0 else 115}, v[{64+8*st}:{67+8*st}]")
    a("s_waitcnt lgkmcnt(0)\ns_barrier")
    stamp(12); cnt(1)
    a("s_cmp_ge_u32 s5, 8\ns_cbranch_scc1 L_kv_end\ns_cmp_ge_u32 s3, 4\ns_cbranch_scc1 L_kv_end")
    a(f"s_lshl_b32 s52, s62, 1\ns_add_u32 s52, s52, {WP}\ns_add_u32 s100, s100, 1\ns_and_b32 s100, s100, 0xff")
    unpack(120, 121, 112)
    a(f"s_and_b32 s7, s5, 4\ns_add_u32 s7, s7, s3\ns_lshl_b32 s48, s7, 10\ns_and_b32 s7, s5, 3\ns_lshl_b32 s7, s7, 4\ns_add_u32 s48, s48, s7\ns_add_u32 s48, s48, s6\ns_add_u32 s48, s48, {O_XN}")
    a("v_lshrrev_b32 v9, 4, v6\nv_lshlrev_b32 v9, 6, v9\nv_and_b32 v5, 12, v6\nv_add_u32 v9, v5, v9")
    a("v_and_b32 v5, 31, v1\nv_lshlrev_b32 v5, 4, v5\nv_lshrrev_b32 v4, 5, v1\nv_lshl_add_u32 v5, v4, 14, v5")
    a(f"s_add_u32 s49, s62, s6\ns_add_u32 s49, s49, {O_XN+BX}")
    a(f"s_lshl_b32 s7, s5, 7\ns_add_u32 s54, s6, s7\ns_add_u32 s54, s54, {O_H}\ns_and_b32 s7, s4, 1\ns_lshl_b32 s7, s7, 7\ns_sub_u32 s54, s54, s7\ns_xor_b32 s55, s54, {BX}")
    a("s_bitcmp1_b32 s4, 0\ns_cselect_b32 s58, s56, 0xffff\ns_mov_b32 s59, s58")
    a(f"s_lshl_b32 s7, s3, 3\ns_add_u32 s7, s7, {L_MX}\nv_mov_b32 v12, s7\nv_mov_b32 v13, {L_MX}")
    if RG_: flag_wait("L_rg", O_FLG, 16, 122)
    if debug and opt.get("rs"): a(f"s_sleep {opt['rs']}")
    gather("L_r_poll", 8, 16, 48, 32768, "s100", RD, opt.get("rpm", 0))
    a("v_cvt_pk_bf16_f32 v100, v96, v97")
    unpack(96, 97, 100)
    a("s_cbranch_scc1 L_r_poll" if opt.get("rpm", 0) else "s_cbranch_vccnz L_r_poll")
    stamp(13); cnt(3)
    pk("add", 96, 96, 120)
    a("v_cvt_pk_bf16_f32 v100, v96, v97")
    unpack(96, 97, 100)
    a("v_add_f32 v108, v96, v97\nv_mul_f32 v109, v96, v96\nv_fmac_f32 v109, v97, v97")
    wred2(108, 109)
    a("s_mov_b32 exec_lo, 0\ns_mov_b32 exec_hi, 0x80000000")
    a("ds_write_b64 v12, v[108:109]")
    a("s_mov_b64 exec, -1\nv_min_u32 v100, -2, v100")
    a("s_waitcnt lgkmcnt(0)\ns_barrier")
    stamp(15)
    a("ds_read_b128 v[104:107], v13\nds_read_b128 v[108:111], v13 offset:16")
    a("s_waitcnt lgkmcnt(0)")
    pk("add", 104, 104, 106); pk("add", 108, 108, 110); pk("add", 104, 104, 108)
    stats("v104", "v105", 109)
    a(f"v_pk_add_f32 v[96:97], v[96:97], v[110:111] op_sel_hi:[1,0] neg_lo:[0,1] neg_hi:[0,1]")
    stats2(109)
    a("v_cvt_pk_bf16_f32 v101, v96, v97")
    unpack(96, 97, 101)
    a("v_mul_f32 v96, v96, v111\nv_mul_f32 v97, v97, v111\nv_cvt_pk_bf16_f32 v101, v96, v97\nv_min_u32 v101, -2, v101")
    a(f"buffer_store_dword v101, v9, {sWS}, s48 offen")
    stamp(14)
    a("s_lshr_b32 s7, s4, 1\ns_cmp_lg_u32 s7, s3\ns_cbranch_scc1 L_r_noh")
    a("s_mov_b64 exec, s[58:59]")
    a(f"buffer_store_dword v100, v6, {sWS}, s54 offen")
    a("s_cmp_eq_u32 s97, 0\ns_cbranch_scc1 L_r_noh")
    a(f"buffer_store_dword v100, v6, {sWS}, s55 offen sc1")
    a("L_r_noh:")
    a("s_mov_b64 exec, -1\ns_cmp_eq_u32 s97, 0\ns_cbranch_scc1 L_kv_end")
    a(f"buffer_store_dword v101, v6, {sWS}, s49 offen sc1")
    a("s_branch L_kv_end")
    a("L_G:")
    DSL = opt.get("dsl", 0); DN = opt.get("dn", 4)
    def dn_dma():
        a(f"s_lshl_b32 s7, s3, 12\ns_add_u32 m0, s7, {L_DN}\ns_mov_b32 s7, s63")
        for i in range(4):
            a(f"buffer_load_dwordx4 v{113+(i&1)}, {sD}, s7 offen {NTW} lds")
            if i < 3: a("s_add_u32 m0, m0, 1024\ns_add_u32 s7, s7, 8192")
    def hookG(p):
        n = 0
        if DSL and p == GSP:
            if DSL == 1: a("s_mov_b64 exec, s[0:1]")
            dn_dma(); n += 4
            a("s_mov_b64 exec, -1")
        if p == 0:
            a("s_sub_u32 s61, s5, 16")
            a("s_mul_i32 s7, s4, 7\ns_lshr_b32 s62, s61, 1\ns_add_u32 s62, s62, s7")
            a(f"s_mul_i32 s51, s53, {32*3584}\ns_lshl_b32 s7, s62, 6\ns_add_u32 s51, s51, s7")
            a(f"s_xor_b32 s7, s53, 1\ns_mul_i32 s52, s7, {32*3584}\ns_lshl_b32 s7, s62, 6\ns_add_u32 s52, s52, s7")
            a("s_lshl_b32 s54, s3, 13\ns_lshl_b32 s7, s50, 11\ns_add_u32 s54, s54, s7")
            a("s_lshl_b32 s63, s62, 15\ns_lshl_b32 s7, s3, 7\ns_add_u32 s63, s63, s7")
            a("s_bitcmp1_b32 s62, 0\ns_cbranch_scc0 L_t_nosw")
            a("s_mov_b64 s[0:1], s[28:29]\ns_mov_b64 s[28:29], s[32:33]\ns_mov_b64 s[32:33], s[0:1]\ns_xor_b32 s54, s54, 4096")
            a("L_t_nosw:")
            a("s_xor_b32 s55, s54, 2048")
            a("v_lshrrev_b32 v113, 3, v1\nv_and_b32 v114, 7, v1\nv_and_b32 v115, 2, v113\nv_xor_b32 v114, v114, v115\nv_lshlrev_b32 v114, 4, v114\nv_lshl_add_u32 v113, v113, 10, v114\nv_xor_b32 v114, 64, v113")
        if p == 0: a("s_and_b32 s7, s62, 6\ns_cmp_eq_u32 s7, 6\ns_cselect_b64 s[0:1], -1, 0")
        for u, (so, ld) in enumerate((("s51", "s54"), ("s52", "s55"))):
            if u < GSL and p in (GSP, 3):
                a("s_mov_b64 exec, s[0:1]" if p != 3 else "s_not_b64 exec, s[0:1]")
                dma2(6, sG, so, ld, 3584); n += 2
                a("s_mov_b64 exec, -1")
            elif u >= GSL and p == (G1, G2)[u]: dma2(6, sG, so, ld, 3584); n += 2
        return n
    attn("G", hookG)
    a("s_xor_b32 s54, s54, 4096\ns_xor_b32 s55, s55, 4096")
    dma2(6, sU, "s51", "s54", 3584); dma2(6, sU, "s52", "s55", 3584)
    a(f"s_lshl_b32 s54, s3, 12\ns_add_u32 s54, s54, {L_DN}")
    if DSL == 1: a("s_not_b64 exec, s[0:1]")
    if DSL < 2: dn_dma()
    a("s_mov_b64 exec, -1")
    a("v_bfe_u32 v116, v1, 2, 2\nv_and_b32 v117, 3, v1\nv_lshlrev_b32 v118, 10, v11\nv_lshl_add_u32 v118, v116, 7, v118\nv_lshl_add_u32 v118, v117, 3, v118\nv_lshrrev_b32 v119, 1, v116\nv_lshl_add_u32 v118, v119, 5, v118\nv_and_b32 v119, 1, v11\nv_lshl_add_u32 v118, v119, 6, v118")
    a("v_add_u32 v118, s54, v118\nv_xor_b32 v119, 32, v118\nv_xor_b32 v120, 64, v118\nv_xor_b32 v121, 64, v119")
    a(f"v_lshlrev_b32 v122, 4, v11\nv_lshl_add_u32 v122, v117, 6, v122\nv_add_u32 v122, {L_PB}, v122")
    a("v_lshlrev_b32 v123, 8, v116\nv_lshl_add_u32 v123, v11, 6, v123\nv_lshl_add_u32 v123, v117, 4, v123\nv_mov_b32 v124, 0xff")
    a(f"s_lshl_b32 s7, s62, 1\ns_add_u32 s7, s7, s50\ns_lshl_b32 s7, s7, 3\ns_add_u32 s7, s7, s3\ns_lshl_b32 s63, s7, 10\ns_add_u32 s63, s63, {PO}\ns_add_u32 s100, s100, 1")
    a(f"s_lshl_b32 s7, s3, 13\nv_add_u32 v14, s7, v14\nv_xor_b32 v9, 32, v14")
    a(f"v_and_b32 v12, 3, v10\nv_lshlrev_b32 v13, 10, v12\nv_lshl_add_u32 v13, v11, 4, v13\nv_lshlrev_b32 v12, 4, v12\nv_lshl_add_u32 v12, v11, 6, v12")
    a(f"s_lshl_b32 s48, s50, 12\ns_add_u32 s48, s48, s6\ns_add_u32 s48, s48, {O_XN}\ns_lshl_b32 s7, s3, 7\ns_add_u32 s49, s48, s7\ns_add_u32 s49, s49, {BX}\ns_lshl_b32 s7, s3, 9\ns_add_u32 s48, s48, s7")
    a("s_waitcnt vmcnt(0)")
    stamp(10)
    for t in range(2):
        for m in range(2):
            for ks in range(2): trfrag(48 + 16*t + 8*m + 4*ks, 14 if t == 0 else 9, m*4096 + ks*2048)
    for c in range(4): trfrag(80+4*c, 118+c, 0, 512)
    a("s_branch L_g_poll")
    a("L_g_b:")
    a(f"buffer_load_dwordx4 v[16:19], v13, {sWS}, s49 offen sc1\nbuffer_load_dwordx4 v[20:23], v13, {sWS}, s49 offen offset:64 sc1")
    a("s_branch L_g_go")
    a("L_g_poll:")
    spin(); a("s_cmp_eq_u32 s97, 0\ns_cbranch_scc0 L_g_b")
    a(f"buffer_load_dwordx4 v[16:19], v12, {sWS}, s48 offen sc1\nbuffer_load_dwordx4 v[20:23], v12, {sWS}, s48 offen offset:256 sc1")
    a("L_g_go:")
    a("s_waitcnt vmcnt(1) lgkmcnt(0)")
    for c in range(4): mfma(96+4*c, 48+8*c, 16)
    a("s_waitcnt vmcnt(0)")
    for c in range(4): mfma(96+4*c, 52+8*c, 20, 96+4*c)
    check_sent(range(16, 24), 24)
    a("s_cbranch_vccnz L_g_poll")
    stamp(11)
    for c in range(1, 4):
        for r in range(4): a(f"v_mov_b32_dpp v{96+r}, v{96+4*c+r} quad_perm:[0,1,2,3] row_mask:0xf bank_mask:{hex(1<<c)}")
    a("ds_write_b128 v15, v[96:99]")
    a("s_waitcnt lgkmcnt(0)\ns_barrier")
    stamp(12)
    a("s_barrier")
    a("ds_read_b128 v[16:19], v122\ns_waitcnt lgkmcnt(0)")
    for c in range(4): mfma(96+4*c, 80+4*c, 16)
    for c in range(1, 4):
        for r in range(4): a(f"v_mov_b32_dpp v{96+r}, v{96+4*c+r} quad_perm:[0,1,2,3] row_mask:0xf bank_mask:{hex(1<<c)}")
    for r in range(4): a(f"v_bfi_b32 v{96+r}, v124, s100, v{96+r}")
    a(f"buffer_store_dwordx4 v[96:99], v123, {sWS}, s63 offen sc1")
    stamp(13)
    a("s_branch L_kv_end")
    a("L_D:")
    TCH = opt.get("tch", 0); TP = opt.get("tp", 3)
    def hookD(p):
        n = 0
        if TCH and p == TP:
            fl = {1: "sc1", 2: "nt", 3: "", 4: "sc0 sc1"}[TCH]
            a(f"s_lshl_b32 s7, s4, 1\ns_add_u32 s7, s7, s50\ns_lshl_b32 s7, s7, 3\ns_add_u32 s7, s7, s3\ns_lshl_b32 s51, s7, 11\ns_add_u32 s51, s51, {WP}\ns_mul_i32 s52, s7, 7168\ns_add_u32 s52, s52, {PO}")
            for i in range(2): a(f"buffer_load_dwordx4 v[112:115], v7, {sWS}, s51 offen offset:{i*1024} {fl}")
            for i in range(7):
                a(f"buffer_load_dwordx4 v[112:115], v7, {sWS}, s52 offen offset:{(i&3)*1024} {fl}")
                if i == 3: a("s_add_u32 s52, s52, 4096")
            n = 9
        return n
    attn("D", hookD)
    WB = opt.get("wb", 0)
    if WB:
        a("s_cmp_lg_u32 s53, 0\ns_cbranch_scc1 L_kv_end")
        if WB == 1: flag_wait("L_wbg", O_FLG, 16, 122)
        if WB == 3: flag_wait("L_wbg", O_FLG+192, 14, 122)
        stamp(10)
        a("buffer_wbl2 sc1")
        a("s_waitcnt vmcnt(0)")
        stamp(11)
    a("L_kv_end:")
    if debug:
        a(f"s_cmp_lg_u32 s3, {DW}\ns_cbranch_scc1 L_end")
        a(f"s_lshl_b32 s7, s2, 8\ns_add_u32 s7, s7, {hex(STAMP)}")
        a("L_stamps:")
        a("s_waitcnt lgkmcnt(0)\nv_mov_b32 v0, 0")
        for i in range(16):
            a(f"v_mov_b32 v2, s{64+2*i}\nv_mov_b32 v3, s{65+2*i}")
            a(f"buffer_store_dwordx2 v[2:3], v0, {sWS}, s7 offen offset:{8*i}")
            a("s_nop 1")
    a("s_endpgm")

    a("L_aux:")
    a("s_setprio 3")
    for i in range(4): a(f"v_mov_b32 v{100+i}, -1")
    a("s_lshl_b32 s58, s5, 1\ns_add_u32 s58, s58, s3\ns_lshl_b32 s7, s58, 10\ns_add_u32 s59, s7, s6")
    a("s_getreg_b32 s63, hwreg(HW_REG_XCC_ID, 0, 4)")
    if SLOW: a("s_and_b32 s63, s5, 1")
    if QSL: a("s_lshl_b32 s7, s58, 6\ns_add_u32 s7, s7, s4\ns_lshl_b32 s7, s7, 10\nv_lshrrev_b32 v4, 3, v1\nv_and_b32 v5, 7, v1\nv_lshlrev_b32 v5, 4, v5\nv_lshl_add_u32 v4, v4, 13, v5")
    a("s_waitcnt lgkmcnt(0)")
    if QSL: a(f"buffer_load_dwordx4 v[108:111], v4, {sWQ}, s7 offen offset:384")
    a("s_load_dword s48, s[40:41], 0")
    if B0: a("s_barrier")
    a("s_cmp_ge_u32 s58, 43\ns_cbranch_scc1 L_a_c3")
    a(f"buffer_store_dwordx4 v[100:103], v7, {sWS}, s59 offen")
    a("L_a_c3:")
    stamp(1)
    a("v_lshlrev_b32 v14, 10, v11\nv_lshl_add_u32 v14, v9, 7, v14\nv_lshl_add_u32 v14, v12, 3, v14\nv_lshrrev_b32 v4, 1, v9\nv_lshl_add_u32 v14, v4, 5, v14\nv_lshl_add_u32 v14, v13, 6, v14")
    a("s_lshl_b32 s7, s3, 6\nv_xor_b32 v14, s7, v14\nv_xor_b32 v15, 32, v14")
    a(f"v_lshrrev_b32 v4, 3, v10\nv_lshl_add_u32 v4, v4, 2, v12\nv_mul_u32_u24 v4, 1040, v4\nv_lshl_add_u32 v4, v11, 4, v4\n{QS('s57')}\ns_lshl_b32 s7, s57, 8\ns_add_u32 s7, s7, {L_OP}\nv_add_u32 v4, s7, v4")
    a("v_and_b32 v5, 31, v1\nv_lshrrev_b32 v6, 5, v1\nv_lshlrev_b32 v2, 2, v5\nv_lshl_add_u32 v2, v6, 15, v2")
    a(f"s_lshl_b32 s55, s4, 16\ns_add_u32 s55, s55, {QB}")
    a(f"s_lshl_b32 s51, s57, 11\n{CG}\ns_lshl_b32 s7, s7, 8\ns_add_u32 s51, s51, s7\ns_lshl_b32 s7, s3, 7\ns_add_u32 s51, s51, s7\ns_add_u32 s51, s51, s55")
    a(f"s_add_u32 s52, s51, 8192\ns_add_u32 s53, s51, 16384\ns_add_u32 s54, s51, 24576\nv_add_u32 v3, {QX}, v2\nv_mov_b32 v104, 0xff")
    a(f"s_lshr_b32 s7, s5, 2\ns_lshl_b32 s60, s7, 13\ns_add_u32 s60, s60, s55\ns_lshl_b32 s7, s3, 7\ns_add_u32 s60, s60, s7\ns_add_u32 s61, s60, {QX}\ns_add_u32 s62, s60, 4096\ns_mov_b32 s49, s60")
    a("v_lshrrev_b32 v106, 3, v1\nv_and_b32 v5, 7, v1\nv_and_b32 v13, 1, v106\nv_lshlrev_b32 v106, 8, v106\nv_lshl_add_u32 v106, v5, 4, v106")
    a(f"v_lshlrev_b32 v13, 9, v13\nv_lshrrev_b32 v5, 1, v5\nv_lshl_add_u32 v13, v5, 6, v13\nv_lshl_add_u32 v13, v11, 4, v13\nv_and_b32 v5, 1, v1\nv_lshl_add_u32 v13, v5, 3, v13\ns_lshl_b32 s7, s3, 8\ns_add_u32 s7, s7, {L_QL}\nv_add_u32 v13, s7, v13")
    a("v_lshlrev_b32 v105, 1, v12")
    a("s_waitcnt lgkmcnt(0)\ns_add_u32 s48, s48, 1\ns_lshl_b32 s63, s63, 4\ns_and_b32 s7, s48, 15\ns_or_b32 s63, s63, s7\nv_lshrrev_b32 v105, v105, s63")
    a("s_bfe_u32 s98, s63, 0x20000\ns_bfe_u32 s99, s63, 0x20002\ns_bfe_u32 s100, s63, 0x20004\ns_bfe_u32 s101, s63, 0x20006")
    a("s_waitcnt vmcnt(0)")
    stamp(2)
    a("s_barrier")
    stamp(3)
    if debug: a("s_waitcnt lgkmcnt(0)")
    for ks in range(4):
        a(f"ds_read_b128 v[{16+4*ks}:{19+4*ks}], v4 offset:{ks*64}")
        trfrag(32+8*ks, 14, ks*4096, 512); trfrag(36+8*ks, 15, ks*4096, 512)
        if ks == 2: a("s_waitcnt lgkmcnt(10)"); mfma(96, 16, 32); mfma(100, 16, 36)
    for ks in range(1, 4):
        a(f"s_waitcnt lgkmcnt({5*(3-ks)})")
        mfma(96, 16+4*ks, 32+8*ks, 96); mfma(100, 16+4*ks, 36+8*ks, 100)
    for j in range(4): a(f"v_mov_b32_dpp v{96+j}, v{100+j} quad_perm:[0,1,2,3] row_mask:0xa bank_mask:0xf")
    for j in range(4): a(f"v_bfi_b32 v{96+j}, 3, v105, v{96+j}")
    for j in range(4): a(f"buffer_store_dword v{96+j}, v2, {sWS}, s{51+j} offen")
    if BQ: a("s_barrier")
    stamp(4)
    a("v_lshrrev_b32 v9, 3, v1\nv_and_b32 v12, 7, v1\nv_lshrrev_b32 v4, 1, v12")
    a(f"v_mul_u32_u24 v15, {RG}, v4\nv_lshl_add_u32 v15, v9, 4, v15\nv_lshl_add_u32 v15, v5, 3, v15\ns_lshl_b32 s7, s3, 7\ns_add_u32 s7, s7, {L_RD}\nv_add_u32 v15, s7, v15")
    a("v_lshlrev_b32 v5, 2, v12\nv_lshl_add_u32 v6, v9, 10, v5")
    a("s_or_b32 s96, s96, 15")
    a("s_barrier")
    if M1: a("s_barrier")
    stamp(8)
    def qld():
        for s in range(4): a(f"buffer_load_dwordx4 v[{16+4*s}:{19+4*s}], v106, {sWS}, {'s49' if s < 2 else 's62'} offen offset:{(s%2)*2048} sc1")
    qld()
    if PAIR: a("s_barrier")
    stamp(11)
    a("s_branch L_q_ld")
    a("L_q_poll:")
    spin(); a("s_and_b32 s7, s96, 7\ns_cselect_b32 s49, s60, s61\ns_cbranch_scc1 L_q_ld2")
    for j in range(4): a(f"buffer_store_dword v{96+j}, v3, {sWS}, s{51+j} offen sc1")
    a("L_q_ld2:")
    a("s_add_u32 s62, s49, 4096")
    qld()
    a("L_q_ld:")
    a("s_waitcnt vmcnt(0)")
    if debug:
        a("s_and_b32 s7, s96, 15\ns_cmp_lg_u32 s7, 15\ns_cbranch_scc1 L_dbg1"); stamp(10); a("L_dbg1:")
    for i in range(16): a(f"v_xor_b32 v{16+i}, s{98+(i&3)}, v{16+i}")
    a("v_or_b32 v32, v16, v17\nv_or_b32 v33, v18, v19")
    for i in range(4, 16, 4): a(f"v_or3_b32 v32, v32, v{16+i}, v{17+i}\nv_or3_b32 v33, v33, v{18+i}, v{19+i}")
    a("v_and_b32 v32, 3, v32\nv_and_b32 v33, 3, v33\nv_cmp_ne_u32 vcc, 0, v32\nv_cmp_ne_u32 s[0:1], 0, v33")
    for i in range(0, 16, 4): a(f"v_and_b32 v{18+i}, -4, v{18+i}\nv_and_b32 v{19+i}, -4, v{19+i}")
    a("s_cbranch_vccnz L_q_poll")
    pk("add", 16, 16, 20); pk("add", 18, 18, 22); pk("add", 24, 24, 28); pk("add", 26, 26, 30); pk("add", 16, 16, 24); pk("add", 18, 18, 26)
    a(f"s_or_b32 s97, s0, s1\nv_mov_b32 v20, s97\nv_mov_b32 v21, {L_MD}")
    a("v_cvt_pk_bf16_f32 v16, v16, v17\nv_cvt_pk_bf16_f32 v17, v18, v19")
    a("ds_write_b64 v13, v[16:17]\nds_write_b32 v21, v20")
    stamp(5)
    a("s_cmp_eq_u32 s97, 0\ns_cbranch_scc1 L_a_fast")
    for j in range(4): a(f"buffer_store_dword v{96+j}, v3, {sWS}, s{51+j} offen sc1")
    for i in range(4): a(f"v_mov_b32 v{100+i}, -1")
    a(f"s_cmp_ge_u32 s58, 43\ns_cbranch_scc1 L_a_s1\ns_add_u32 s7, s59, {BX}")
    a(f"buffer_store_dwordx4 v[100:103], v7, {sWS}, s7 offen sc1")
    a("L_a_s1:")
    a(f"s_add_u32 s49, s6, {O_SY}\ns_lshl_b32 s7, s58, 2\ns_add_u32 s7, s7, s49\nv_mov_b32 v20, s48\nv_lshlrev_b32 v21, 2, v1\ns_waitcnt vmcnt(0)")
    a(f"buffer_store_dword v20, off, {sWS}, s7 sc1")
    a("L_a_s2:")
    spin()
    a(f"buffer_load_dword v22, v21, {sWS}, s49 offen sc1\ns_waitcnt vmcnt(0)\nv_cmp_ne_u32 vcc, s48, v22\ns_cbranch_vccnz L_a_s2")
    a("L_a_fast:")
    a("s_waitcnt lgkmcnt(0)\ns_barrier")
    if TOUCH:
        a("s_cmp_ge_u32 s58, 43\ns_cbranch_scc1 L_a_nt")
        a(f"buffer_load_dwordx4 v[100:103], v7, {sWS}, s59 offen sc1")
        a("L_a_nt:")
    PFL = opt.get("pfl", "")
    if WALL:
        a("s_lshl_b32 s7, s4, 6\ns_add_u32 s7, s7, s58\ns_lshl_b32 s7, s7, 13")
        for i in range(8):
            a(f"buffer_load_dwordx4 v[108:111], v7, {sWO}, s7 offen offset:{(i&3)*1024} {PFL}")
            if i == 3: a("s_add_u32 s7, s7, 4096")
    if WSL:
        a("s_lshl_b32 s7, s4, 6\ns_add_u32 s7, s7, s58\ns_lshl_b32 s7, s7, 13\nv_lshlrev_b32 v107, 4, v12\nv_lshl_add_u32 v107, v9, 10, v107")
        a(f"buffer_load_dwordx4 v[108:111], v107, {sWO}, s7 offen offset:384 {PFL}")
    if GPF:
        a("s_mul_i32 s7, s4, 7\ns_lshr_b32 s7, s7, 1\ns_or_b32 s49, s7, 3\ns_bfe_u32 s7, s49, 0x10002\ns_lshl_b32 s49, s49, 7\ns_lshl_b32 s62, s5, 4\ns_add_u32 s7, s7, s62\ns_mul_i32 s7, s7, 3584\ns_add_u32 s7, s7, s49")
        a("v_mul_u32_u24 v107, 7168, v9\nv_lshl_add_u32 v107, v12, 4, v107\ns_cmp_eq_u32 s3, 0\ns_cbranch_scc1 L_a_pg")
        a(f"buffer_load_dwordx4 v[112:115], v107, {sU}, s7 offen {PFL}\ns_branch L_a_px")
        a("L_a_pg:")
        a(f"buffer_load_dwordx4 v[112:115], v107, {sG}, s7 offen {PFL}")
        a("L_a_px:")
    a("s_barrier")
    a("s_barrier")
    if WG_ == 1: flag_set(256)
    a("s_barrier")
    if WG_ == 2: flag_set(256)
    a("s_cmp_ge_u32 s5, 16\ns_cbranch_scc1 L_a_gd")
    a(f"s_lshl_b32 s53, s4, 15\n{KH8}\ns_lshl_b32 s7, s7, 11\ns_add_u32 s53, s53, s7\n{CW}\ns_lshl_b32 s7, s7, 8\ns_add_u32 s53, s53, s7\ns_lshl_b32 s7, s3, 7\ns_add_u32 s53, s53, s7\ns_add_u32 s53, s53, {WP}")
    a("v_lshlrev_b32 v6, 4, v12\nv_lshl_add_u32 v6, v9, 11, v6")
    a(f"v_and_b32 v4, 3, v1\nv_mul_u32_u24 v15, {RG}, v4\nv_lshl_add_u32 v15, v9, 4, v15\nv_bfe_u32 v4, v1, 2, 1\nv_mul_i32_i24 v4, {L_OP+32-L_RD}, v4\ns_lshl_b32 s7, s3, 7\ns_add_u32 s7, s7, {L_RD}\nv_add3_u32 v15, v15, v4, s7")
    a("s_barrier")
    stamp(6)
    if RG_ == 1: flag_set(0)
    for w in range(8): a(f"ds_read_b128 v[{24+4*w}:{27+4*w}], v15 offset:{w*RW}")
    for w in range(0, 8, 2):
        a(f"s_waitcnt lgkmcnt({6-w})" if not debug else "s_waitcnt lgkmcnt(0)")
        pk("add", 24+4*w, 24+4*w, 28+4*w); pk("add", 26+4*w, 26+4*w, 30+4*w)
        if w == 2: pk("add", 24, 24, 32); pk("add", 26, 26, 34)
    pk("add", 40, 40, 48); pk("add", 42, 42, 50); pk("add", 24, 24, 40); pk("add", 26, 26, 42)
    for q in range(4): a(f"v_bfi_b32 v{24+q}, v104, s48, v{24+q}")
    a(f"buffer_store_dwordx4 v[24:27], v6, {sWS}, s53 offen sc1")
    if RG_ == 2: flag_set(0)
    stamp(7)
    a("s_cmp_lg_u32 s3, 0\ns_cbranch_scc1 L_a_end")
    a("s_and_b32 s50, s5, 1\ns_lshr_b32 s61, s5, 1\ns_lshl_b32 s7, s4, 3\ns_add_u32 s7, s7, s61")
    a(f"s_lshl_b32 s52, s7, 7\ns_lshl_b32 s62, s7, 4\ns_lshl_b32 s7, s50, 13\ns_add_u32 s52, s52, s7\ns_add_u32 s52, s52, {PO}\ns_lshl_b32 s7, s50, 12\ns_add_u32 s62, s62, s7")
    a("v_lshlrev_b32 v5, 4, v12\nv_lshl_add_u32 v5, v9, 14, v5")
    a("v_and_b32 v2, 3, v1\nv_bfe_u32 v3, v1, 2, 1\nv_lshrrev_b32 v4, 5, v1\nv_lshlrev_b32 v4, 2, v4\nv_lshl_add_u32 v4, v3, 3, v4\nv_lshl_add_u32 v6, v2, 10, v4\nv_lshl_add_u32 v4, v2, 7, v4")
    a(f"s_lshl_b32 s61, s61, 4\ns_lshl_b32 s7, s50, 9\ns_add_u32 s61, s61, s7\ns_add_u32 s61, s61, s6\ns_add_u32 s61, s61, {O_H}\ns_xor_b32 s53, s61, {BX}\ns_cmp_eq_u32 s97, 0\ns_cselect_b32 s51, s61, s53")
    a("s_and_b32 s49, s48, 0xff\ns_cmp_ge_u32 s5, 8\ns_cbranch_scc1 L_h_poll\ns_barrier")
    a("L_h_poll:")
    spin()
    a(f"buffer_load_dword v22, v4, {sWS}, s51 offen sc1")
    a("s_waitcnt vmcnt(0)")
    a("v_cmp_eq_u32 vcc, -1, v22\ns_cbranch_vccnz L_h_poll")
    unpack(20, 21, 22)
    stamp(9); cnt(2)
    if FG_: flag_wait("L_fg", O_FLG+128+64, 14, 122)
    if debug and opt.get("fs"): a(f"s_sleep {opt['fs']}")
    gather("L_f_poll", 7, 24, 56, 0x20000, "s49", FD, opt.get("fpm", 0))
    a("s_cbranch_scc1 L_f_poll" if opt.get("fpm", 0) else "s_cbranch_vccnz L_f_poll")
    stamp(12); cnt(3)
    a("v_mov_b32 v98, v96\nv_mov_b32 v99, v97\nv_permlane16_swap_b32 v96, v98\nv_permlane16_swap_b32 v97, v99")
    pk("add", 96, 96, 98)
    a("v_add_f32_dpp v96, v96, v96 row_ror:8 row_mask:0xf bank_mask:0xf\nv_add_f32_dpp v97, v97, v97 row_ror:8 row_mask:0xf bank_mask:0xf")
    a("v_cvt_pk_bf16_f32 v98, v96, v97")
    unpack(22, 23, 98)
    pk("add", 22, 22, 20); a("v_cvt_pk_bf16_f32 v22, v22, v23")
    a("s_mov_b32 exec_lo, 0xff\ns_mov_b32 exec_hi, 0xff")
    a(f"buffer_store_dword v22, v6, {sOUT}, s62 offen")
    stamp(13)
    a("s_cmp_lg_u32 s62, 0\ns_cbranch_scc1 L_a_end")
    a("v_mov_b32 v22, s48\ns_mov_b64 exec, 1")
    a(f"buffer_store_dword v22, off, {sWS}, 0")
    a("s_branch L_a_end")
    a("L_a_gd:")
    a("s_cmp_ge_u32 s5, 30\ns_cbranch_scc1 L_a_end")
    a(f"v_lshrrev_b32 v4, 5, v1\nv_bfe_u32 v13, v1, 2, 1\nv_lshl_add_u32 v13, v4, 1, v13\nv_mul_u32_u24 v15, {RG}, v13\nv_and_b32 v13, 3, v9\nv_lshl_add_u32 v15, v13, 4, v15\nv_and_b32 v13, 3, v1\nv_lshl_add_u32 v15, v13, 2, v15")
    a(f"s_lshl_b32 s7, s3, 7\ns_add_u32 s7, s7, {L_RD}\nv_add_u32 v15, s7, v15")
    a(f"v_lshlrev_b32 v14, 1, v12\nv_lshl_add_u32 v14, v4, 4, v14\nv_and_b32 v13, 3, v9\nv_lshl_add_u32 v14, v13, 6, v14\ns_lshl_b32 s7, s3, 5\ns_add_u32 s7, s7, {L_PB}\nv_add_u32 v14, s7, v14\nv_add_u32 v4, 64, v15")
    a(f"s_mov_b32 s57, {hex(LOG2E ^ 0x80000000)}")
    a("s_barrier")
    stamp(6)
    if FG_ == 1: flag_set(128)
    for w in range(4): a(f"ds_read2st64_b32 v[{24+2*w}:{25+2*w}], v15 offset0:{10*w} offset1:{10*w+5}")
    for w in range(4): a(f"ds_read2st64_b32 v[{32+2*w}:{33+2*w}], v4 offset0:{10*w} offset1:{10*w+5}")
    a("s_waitcnt lgkmcnt(4)" if not debug else "s_waitcnt lgkmcnt(0)")
    pk("add", 24, 24, 26); pk("add", 28, 28, 30); pk("add", 24, 24, 28); a("v_add_f32 v24, v24, v25")
    a("v_cvt_pk_bf16_f32 v24, v24, v24\nv_and_b32 v26, s56, v24")
    a("v_mul_f32 v26, s57, v26\nv_exp_f32 v26, v26")
    a("s_waitcnt lgkmcnt(0)")
    pk("add", 32, 32, 34); pk("add", 36, 36, 38)
    a("v_add_f32 v26, 1.0, v26\nv_rcp_f32 v26, v26")
    pk("add", 32, 32, 36); a("v_add_f32 v25, v32, v33")
    a("v_cvt_pk_bf16_f32 v26, v26, v25")
    unpack(25, 26, 26)
    a("v_mul_f32 v26, v26, v25")
    a("v_cvt_pk_bf16_f32 v26, v26, v26\nds_write_b16 v14, v26\ns_waitcnt lgkmcnt(0)\ns_barrier")
    if FG_ == 2: flag_set(128)
    stamp(7)
    a("L_a_end:")
    if debug:
        a("s_mov_b64 exec, -1\ns_cmp_lg_u32 s3, 0\ns_cbranch_scc1 L_end")
        a(f"s_lshl_b32 s7, s2, 8\ns_add_u32 s7, s7, {hex(STAMP+128)}\ns_branch L_stamps")
    a("L_end:\ns_endpgm")
    lines = hz.fix(a.l)
    hdr = open("header.txt").read()
    return wrap("\n".join(lines) + "\n", 256, 640, L_END, 128, sgpr=102, header=hdr)

if __name__ == "__main__":
    specs = sys.argv[1:] or ["k8"]
    for sp in specs:
        nm, _, o = sp.partition(":")
        opt = {}
        for kv in filter(None, o.split(",")):
            k, v = kv.split("=")
            try: v = int(v)
            except ValueError: pass
            opt[k] = v
        open(nm + ".s", "w").write(gen(False, **opt))
        open(nm + "d.s", "w").write(gen(True, **opt))
```

```python
import sys
from asmlib import *
import hz

GB=0x40000; GSH=17
O_OB=0; O_XN=0x8000; O_H=0xA000; O_LSE=0xA400; O_FLG=0xA800; O_SY=0xB000; BX=0x10000
WP=0x140000; PO=0x300000; L_DN=65536
QB=0x200000; QX=0x80000
STAMP=128<<20
L_W=0
L_QL=114688
L_MX=L_QL+1024
L_LS=L_MX+128
L_OP=L_LS+128
L_RD=L_OP+16384
L_PB=L_RD+10240
L_MD=L_PB+1152
L_END=L_MD+64
RW=1280; RG=320
sX,sK,sV,sWQ,sWO,sG,sU,sOUT,sWS,sD = [f"s[{i}:{i+3}]" for i in range(8,48,4)]
LOG2E=0x3fb8aa3b; SCALE=0x3db504f3; EPS=0x3727c5ac

def gen(debug=False, **opt):
    NT = opt.get("nt", "nt")
    K0 = opt.get("k0", 2); K1 = opt.get("k1", 3); BQ = opt.get("bq", 1); GS = opt.get("gsleep", 0); B0 = opt.get("b0", 1); TOUCH = opt.get("touch", 1); SLOW = opt.get("slow", 0); DW = opt.get("dw", 0); PAIR = opt.get("pair", 1); DIAG = opt.get("diag", 0)
    W1 = opt.get("w1", 1); W2 = opt.get("w2", 1); CGX = opt.get("cgx", 4); WCX = opt.get("wcx", 4)
    G1 = opt.get("g1", 3)
    RD = opt.get("rd", 1); FD = opt.get("fd", 1); PRO = opt.get("pro", 0); AB0 = opt.get("ab0", 1); QSL = opt.get("qsl", 0); WSL = opt.get("wsl", 1); WALL = opt.get("wall", 0); GPF = opt.get("gpf", 1); WG_ = opt.get("wg", 0); RG_ = opt.get("rg", 1); FG_ = opt.get("fg", 2); G2 = opt.get("g2", 3); GSL = opt.get("gsl", 0); GSP = opt.get("gsp", 1); GD = opt.get("gd", 1)
    NTW = opt.get("ntw", "nt")
    if NTW == "df": NTW = ""
    M1 = opt.get("m1", 2)
    PREOWN = opt.get("preown", 1)
    MASKP = opt.get("maskp", 1)
    DHINT = opt.get("dhint", 0)
    if WALL: WSL = 0; W1 = W2 = 3
    MAP = opt.get("map", 1)
    if MAP:
        QS = lambda r: f"s_lshr_b32 {r}, s5, 3\ns_and_b32 {r}, {r}, 2\ns_bitcmp1_b32 s5, 0\ns_addc_u32 {r}, {r}, 0"
        CG = CW = "s_bfe_u32 s7, s5, 0x30001\ns_xor_b32 s7, s7, 4"
        KH8 = "s_and_b32 s7, s5, 1\ns_lshl_b32 s7, s7, 3"
    else:
        QS = lambda r: f"s_and_b32 {r}, s5, 3"
        CG = f"s_lshr_b32 s7, s5, 2\ns_xor_b32 s7, s7, {CGX}"; CW = f"s_xor_b32 s7, s5, {WCX}\ns_and_b32 s7, s7, 7"; KH8 = "s_and_b32 s7, s5, 8"
    a = Asm()
    def stamp(i):
        if debug: a(f"s_memrealtime s[{64+2*i}:{65+2*i}]")
    def cnt(i):
        if debug: a(f"s_waitcnt lgkmcnt(0)\ns_sub_u32 s7, 300000, s96\ns_mul_i32 s7, s7, 100\ns_add_u32 s{64+2*i}, s64, s7\ns_addc_u32 s{65+2*i}, s65, 0")
    def spin(): a("s_sub_u32 s96, s96, 1\ns_cbranch_scc1 L_end")
    def spin_ab(dst, sa, sb):
        spin(); a(f"s_and_b32 s7, s96, 15")
        for d, x, y in zip(dst, sa, sb): a(f"s_cselect_b32 {d}, {x}, {y}")
    def unpack(dlo, dhi, src): a(f"v_lshlrev_b32 v{dlo}, 16, v{src}\nv_and_b32 v{dhi}, s56, v{src}")
    def pk(op, d, x, y, mods=""): a(f"v_pk_{op}_f32 v[{d}:{d+1}], v[{x}:{x+1}], v[{y}:{y+1}] {mods}")
    def dma(voff, srd, soff, lds):
        a(f"s_mov_b32 m0, {lds}\nbuffer_load_dwordx4 v{voff}, {srd}, {soff} offen {NTW} lds")
    def dma2(voff, srd, soff, lds, stride):
        dma(voff, srd, soff, lds)
        a(f"s_add_u32 m0, {lds}, 1024\ns_add_u32 s7, {soff}, {4*stride}")
        a(f"buffer_load_dwordx4 v{voff}, {srd}, s7 offen {NTW} lds")
    def trfrag(dst, vaddr, off, d2=1024):
        a(f"ds_read_b64_tr_b16 v[{dst}:{dst+1}], v{vaddr} offset:{off}")
        a(f"ds_read_b64_tr_b16 v[{dst+2}:{dst+3}], v{vaddr} offset:{off+d2}")
    def mfma(d, A, B, C=None):
        c = "0" if C is None else f"v[{C}:{C+3}]"
        a(f"v_mfma_f32_16x16x32_bf16 v[{d}:{d+3}], v[{A}:{A+3}], v[{B}:{B+3}], {c}")
    def check_sent(regs, t):
        r = list(regs)
        a(f"v_max3_u32 v{t}, v{r[0]}, v{r[1]}, v{r[2]}"); r = r[3:]
        while len(r) >= 2:
            a(f"v_max3_u32 v{t}, v{t}, v{r[0]}, v{r[1]}"); r = r[2:]
        if r: a(f"v_max_u32 v{t}, v{t}, v{r[0]}")
        a(f"v_cmp_eq_u32 vcc, -1, v{t}")
    def stats(s1, s2, t, vc=None):
        if vc is None: a(f"v_mul_f32 v{t+1}, 0x3b000000, {s1}\nv_mul_f32 v{t+2}, 0x3b000000, {s2}")
        else: a(f"v_mul_f32 v{t+1}, {s1}, v{vc}\nv_mul_f32 v{t+2}, {s2}, v{vc}")
        a(f"v_fma_f32 v{t+2}, -v{t+1}, v{t+1}, v{t+2}\nv_max_f32 v{t+2}, 0, v{t+2}")
        a(f"v_cvt_pk_bf16_f32 v{t+1}, v{t+1}, v{t+2}")
        a(f"v_and_b32 v{t+2}, s56, v{t+1}\nv_lshlrev_b32 v{t+1}, 16, v{t+1}")
        a(f"v_add_f32 v{t+2}, {hex(EPS)}, v{t+2}\nv_cvt_pk_bf16_f32 v{t+2}, v{t+2}, v{t+2}\nv_and_b32 v{t+2}, s56, v{t+2}")
        a(f"v_sqrt_f32 v{t+2}, v{t+2}")
    def stats2(t): a(f"v_cvt_pk_bf16_f32 v{t+2}, v{t+2}, v{t+2}\nv_and_b32 v{t+2}, s56, v{t+2}\nv_rcp_f32 v{t+2}, v{t+2}")
    def wred2(x, y):
        for m in ["quad_perm:[1,0,3,2] row_mask:0xf", "quad_perm:[2,3,0,1] row_mask:0xf", "row_half_mirror row_mask:0xf", "row_mirror row_mask:0xf",
                  "row_bcast:15 row_mask:0xa", "row_bcast:31 row_mask:0xc"]:
            a(f"v_add_f32_dpp v{x}, v{x}, v{x} {m} bank_mask:0xf\nv_add_f32_dpp v{y}, v{y}, v{y} {m} bank_mask:0xf")
    def red8(addr, n=8):
        for w in range(n): a(f"ds_read_b64 v[{24+2*w}:{25+2*w}], v{addr} offset:{w*RW}")
        a("s_waitcnt lgkmcnt(0)")
        pk("add", 24, 24, 26); pk("add", 28, 28, 30); pk("add", 32, 32, 34)
        if n == 8: pk("add", 36, 36, 38)
        pk("add", 24, 24, 28); pk("add", 32, 32, 36); pk("add", 24, 24, 32)
    def gather(lab, n, raw, cp, stride, tag, depth, pm):
        def rnd(m):
            a("s_mov_b32 s51, s52")
            for r in range(n):
                if m and pm: a(f"s_wqm_b64 exec, s[{8+2*r}:{9+2*r}]")
                a(f"buffer_load_dwordx4 v[{raw+4*r}:{raw+3+4*r}], v5, {sWS}, s51 offen sc1")
                if r < n-1: a(f"s_add_u32 s51, s51, {stride}")
        for _ in range(depth): rnd(0)
        a(f"s_branch {lab}_c")
        a(f"{lab}:")
        for _ in range(opt.get("bk" + lab[2], 0)): a(f"buffer_load_dword v123, off, {sWS}, s6 sc1\ns_waitcnt vmcnt(0)")
        if not pm and not opt.get("nm" + lab[2], 0): a("s_wqm_b64 exec, vcc")
        spin()
        rnd(1)
        a("s_mov_b64 exec, -1")
        a(f"{lab}_c:")
        for r in range(n):
            c = cp+4*r
            a(f"s_waitcnt vmcnt({n*depth-1-r})")
            for q in range(4): a(f"v_xor_b32 v{c+q}, {tag}, v{raw+4*r+q}")
            if pm:
                a(f"v_or3_b32 v102, v{c}, v{c+1}, v{c+2}\nv_or_b32 v102, v102, v{c+3}\nv_and_b32 v102, 0xff, v102\nv_cmp_ne_u32 s[{8+2*r}:{9+2*r}], 0, v102")
            elif r == 0: a(f"v_or3_b32 v102, v{c}, v{c+1}, v{c+2}\nv_or_b32 v102, v102, v{c+3}")
            else: a(f"v_or3_b32 v102, v102, v{c}, v{c+1}\nv_or3_b32 v102, v102, v{c+2}, v{c+3}")
            if r: pk("add", 96, cp if r == 1 else 96, c); pk("add", 98, cp+2 if r == 1 else 98, c+2)
            if pm and r >= 2: a(f"s_or_b64 vcc, {'s[8:9]' if r == 2 else 'vcc'}, s[{6+2*r}:{7+2*r}]")
        a("v_permlane32_swap_b32 v96, v98\nv_permlane32_swap_b32 v97, v99")
        if pm: a(f"s_or_b64 vcc, vcc, s[{6+2*n}:{7+2*n}]")
        else: a("v_and_b32 v102, 0xff, v102\nv_cmp_ne_u32 vcc, 0, v102")
        pk("add", 96, 96, 98)
    def flag_set(off):
        a(f"s_lshl_b32 s7, s5, 2\ns_add_u32 s7, s7, s6\ns_add_u32 s7, s7, {O_FLG}\ns_cmp_eq_u32 s3, 0\ns_cselect_b64 exec, 1, 0")
        a(f"buffer_store_dword v1, off, {sWS}, s7 offset:{off}\ns_mov_b64 exec, -1")
    def flag_wait(lab, off, n, vt):
        a(f"s_cmp_lg_u32 s97, 0\ns_cbranch_scc1 {lab}_x\ns_add_u32 s51, s6, {off}\nv_min_u32 v{vt}, {n-1}, v1\nv_lshlrev_b32 v{vt}, 2, v{vt}")
        a(f"{lab}:")
        spin()
        a(f"buffer_load_dword v{vt+1}, v{vt}, {sWS}, s51 offen sc1\ns_waitcnt vmcnt(0)\nv_cmp_eq_u32 vcc, -1, v{vt+1}\ns_cbranch_vccnz {lab}")
        a(f"{lab}_x:")
    def rot(frm, to):
        k = 4 * ((to - frm) & 3)
        return f"row_ror:{k}" if k else "quad_perm:[0,1,2,3]"

    P2 = opt.get("p2", 1)
    if P2:
        a("L_top:")
        stamp(0)
        a("s_load_dwordx8 s[68:75], s[0:1], 0\ns_load_dwordx16 s[76:91], s[0:1], 32")
        a("s_getpc_b64 s[60:61]")
        a("L_pc:")
        a("v_lshrrev_b32 v9, 6, v0\ns_lshr_b32 s5, s2, 3\nv_lshl_add_u32 v2, v9, 5, s5\nv_min_u32 v2, (L_end-L_pc)>>7, v2\nv_lshlrev_b32 v2, 7, v2")
        a("global_load_dword v127, v2, s[60:61]")
        a("s_cmp_ge_u32 s5, 32\ns_cbranch_scc1 L_end")
        a("v_readfirstlane_b32 s3, v9\nv_and_b32 v1, 63, v0\ns_and_b32 s4, s2, 7")
    else:
        a("s_cmp_ge_u32 s2, 256\ns_cbranch_scc1 L_end")
        stamp(0)
        for d, o in [(8,0),(20,24),(12,8),(40,88),(16,16),(24,32),(28,48),(32,56),(44,64),(36,72)]:
            a(f"s_load_dwordx2 s[{d}:{d+1}], s[0:1], {o}")
        a("v_lshrrev_b32 v9, 6, v0\nv_and_b32 v1, 63, v0")
        a("s_getpc_b64 s[60:61]")
        a("L_pc:")
        a("v_readfirstlane_b32 s3, v9")
        a("s_and_b32 s4, s2, 7\ns_lshr_b32 s5, s2, 3")
        a(f"s_lshl_b32 s7, s3, 5\ns_add_u32 s7, s7, s5\ns_lshl_b32 s7, s7, 7\ns_min_u32 s7, s7, L_end-L_pc\nv_mov_b32 v2, s7")
        a("global_load_dword v127, v2, s[60:61]")
    P3 = opt.get("p3", 1)
    SRDS = {8: 8192, 40: 256<<20, 20: 4<<20, 12: 64<<20, 16: 64<<20, 24: 4<<20, 28: 512*3584, 32: 512*3584, 36: 8192, 44: 1792*1024}
    def srd(l):
        for d in l: a(f"s_mov_b32 s{d+2}, {hex(SRDS[d])}\ns_mov_b32 s{d+3}, 0x20000")
    def com1(): a("v_lshrrev_b32 v11, 4, v1\nv_and_b32 v12, 3, v1\nv_bfe_u32 v9, v1, 2, 2")
    def com2():
        a(f"s_lshl_b32 s6, s4, {GSH}\ns_add_u32 s6, s6, {GB}")
        a("s_mov_b32 s56, 0xffff0000\ns_mov_b32 s96, 300000\nv_lshlrev_b32 v8, 3, v1\nv_and_b32 v10, 15, v1\nv_and_b32 v13, 1, v11")
    a("v_lshlrev_b32 v7, 4, v1")
    if not P3: srd(SRDS); com1(); com2()
    if AB0: a("s_cmp_lt_u32 s3, 2\ns_cbranch_scc0 L_kv\ns_barrier\ns_branch L_aux\nL_kv:")
    else: a("s_cmp_lt_u32 s3, 2\ns_cbranch_scc1 L_aux")
    a("s_sub_u32 s3, s3, 2")
    a("v_lshrrev_b32 v4, 3, v1\nv_and_b32 v5, 7, v1\nv_and_b32 v6, 2, v4\nv_xor_b32 v5, v5, v6\nv_lshlrev_b32 v5, 4, v5\nv_lshl_add_u32 v4, v4, 13, v5\nv_xor_b32 v5, 64, v4")
    def kaddr():
        a("v_lshlrev_b32 v2, 4, v12\nv_lshl_add_u32 v2, v11, 6, v2\nv_lshl_add_u32 v2, v9, 10, v2")
        a("s_lshr_b32 s7, s5, 2\ns_lshl_b32 s48, s7, 23\ns_lshl_b32 s7, s4, 20\ns_add_u32 s48, s48, s7")
        a("s_and_b32 s7, s5, 3\ns_lshl_b32 s7, s7, 16\ns_add_u32 s48, s48, s7\ns_lshl_b32 s7, s3, 13\ns_add_u32 s48, s48, s7\ns_add_u32 s48, s48, 786432")
        a("s_add_u32 s49, s48, 4096")
    if P3: srd([8, 20])
    else: kaddr()
    a(f"{QS('s7')}\ns_lshl_b32 s7, s7, 3\ns_add_u32 s7, s7, s3\ns_lshl_b32 s51, s7, 17\ns_lshl_b32 s7, s4, 10\ns_add_u32 s51, s51, s7\n{CG}\ns_lshl_b32 s7, s7, 7\ns_add_u32 s51, s51, s7\ns_add_u32 s52, s51, 65536")
    a("s_lshl_b32 s54, s3, 11\ns_lshl_b32 s55, s3, 10\ns_mov_b32 m0, s54")
    if QSL: a("s_bfe_u32 s61, s51, 0x30007\ns_cmp_eq_u32 s61, 3")
    def kload(t):
        i = 2*t if t < 4 else 2*(t-4)+1
        a(f"buffer_load_dwordx4 v[{16+4*t}:{19+4*t}], v2, {sK}, s{48+i//4} offen offset:{(i%4)*256} {NT}")
    def vload(i): a(f"buffer_load_dwordx4 v[{48+4*i}:{51+4*i}], v3, {sV}, s{48+i//4} offen offset:{(i%4)*256} {NT}")
    if PRO: stamp(14)
    a("s_waitcnt lgkmcnt(0)")
    if P2: a("s_mov_b64 s[8:9], s[68:69]\ns_mov_b64 s[20:21], s[74:75]")
    if PRO: stamp(15)
    a(f"buffer_load_dwordx4 v[96:99], v7, {sX}, s55 offen")
    if QSL: a("s_cbranch_scc1 L_q_late")
    a(f"buffer_load_dwordx4 v4, {sWQ}, s51 offen {NT} lds\ns_add_u32 m0, s54, 1024")
    a(f"buffer_load_dwordx4 v5, {sWQ}, s52 offen {NT} lds")
    a("L_q_late:")
    if P3: srd([12]); com1(); kaddr()
    if P2: a("s_mov_b64 s[12:13], s[70:71]\ns_mov_b64 s[40:41], s[90:91]")
    if B0: a("s_barrier")
    for t in range(K0): kload(t)
    a("s_load_dword s100, s[40:41], 0")
    if P2: a("s_mov_b64 s[16:17], s[72:73]\ns_mov_b64 s[24:25], s[76:77]\ns_mov_b64 s[28:29], s[80:81]\ns_mov_b64 s[32:33], s[82:83]\ns_mov_b64 s[44:45], s[84:85]\ns_mov_b64 s[36:37], s[86:87]")
    if P3: srd([40, 16, 24, 28, 32, 44]); com2()
    stamp(1)
    a("v_lshrrev_b32 v14, 2, v1\nv_lshlrev_b32 v14, 6, v14\nv_lshl_add_u32 v14, v12, 3, v14\nv_lshl_add_u32 v14, v13, 5, v14")
    a("v_lshl_add_u32 v9, v11, 3, v9")
    a("v_lshlrev_b32 v13, 1, v13\nv_xor_b32 v12, v12, v13\nv_lshlrev_b32 v12, 4, v12")
    a("v_lshl_add_u32 v5, v9, 10, v12")
    a("v_mul_u32_u24 v6, 3584, v9\nv_add_u32 v6, v6, v12")
    a("v_lshlrev_b32 v3, 4, v10\nv_lshl_add_u32 v3, v11, 10, v3")
    a("s_and_b32 s50, s5, 1")
    a("s_lshl_b32 s53, s3, 1\ns_add_u32 s53, s53, s50")
    a("s_lshl_b32 s54, s53, 11\ns_xor_b32 s55, s54, 2048")
    a(f"s_mul_i32 s7, s3, 1040\ns_add_u32 s7, s7, {L_OP}\nv_add_u32 v13, s7, v7")
    a("s_mov_b32 s57, 0x3f803f80\nv_mov_b32 v100, 0\nv_mov_b32 v101, 0\nv_mov_b32 v102, 0x3b000000")
    a(f"s_waitcnt vmcnt({K0+2})")
    if QSL:
        a(f"s_cmp_eq_u32 s61, 3\ns_cbranch_scc0 L_q_l2\nv_xor_b32 v103, 64, v4\ns_waitcnt vmcnt({K0})")
        a(f"buffer_load_dwordx4 v4, {sWQ}, s51 offen {NT} lds\ns_add_u32 m0, m0, 1024")
        a(f"buffer_load_dwordx4 v103, {sWQ}, s52 offen {NT} lds")
        a("L_q_l2:")
    stamp(2)
    for i in range(4): a(f"v_dot2c_f32_bf16 v100, s57, v{96+i}\nv_dot2c_f32_bf16 v101, v{96+i}, v{96+i}")
    for i in range(4): unpack(112+2*i, 113+2*i, 96+i)
    wred2(100, 101)
    a("v_readlane_b32 s58, v100, 63\nv_readlane_b32 s59, v101, 63")
    stats("s58", "s59", 109, 102)
    for j in range(4): a(f"v_pk_add_f32 v[{112+2*j}:{113+2*j}], v[{112+2*j}:{113+2*j}], v[110:111] op_sel_hi:[1,0] neg_lo:[0,1] neg_hi:[0,1]")
    stats2(109)
    for j in range(4): a(f"v_cvt_pk_bf16_f32 v{96+j}, v{112+2*j}, v{113+2*j}")
    for j in range(4): unpack(112+2*j, 113+2*j, 96+j)
    for j in range(4): a(f"v_pk_mul_f32 v[{112+2*j}:{113+2*j}], v[{112+2*j}:{113+2*j}], v[110:111] op_sel:[0,1] op_sel_hi:[1,1]")
    for j in range(4): a(f"v_cvt_pk_bf16_f32 v{96+j}, v{112+2*j}, v{113+2*j}")
    a("ds_write_b128 v13, v[96:99]")
    for t in range(K0, K0+K1): kload(t)
    for i in range(16): a(f"v_mov_b32 v{80+i}, 0")
    a(f"v_add_u32 v13, {L_QL}, v7")
    a(f"v_and_b32 v12, 3, v10\nv_lshlrev_b32 v12, 5, v12\nv_add_u32 v12, {L_MX}, v12")
    a(f"s_lshl_b32 s7, s3, 2\nv_add_u32 v9, s7, v12")
    a(f"s_mov_b32 s57, {hex(SCALE)}\ns_mov_b32 s58, {hex(LOG2E)}\ns_mov_b32 s59, 0x05040100\ns_mov_b32 s60, 0x07060302")
    a(f"s_mul_i32 s7, s3, {RW}\ns_add_u32 s7, s7, {L_RD}\nv_mul_u32_u24 v15, {RG}, v11\nv_lshl_add_u32 v15, v10, 4, v15\nv_add_u32 v15, s7, v15")
    a("s_lshr_b32 s7, s5, 2\ns_and_b32 s61, s5, 2\ns_lshl_b32 s61, s61, 2\ns_add_u32 s61, s61, s7")
    a("s_lshl_b32 s98, s3, 13\ns_lshl_b32 s7, s50, 11\ns_add_u32 s98, s98, s7\ns_lshl_b32 s7, s61, 4\ns_add_u32 s98, s98, s7\ns_add_u32 s98, s98, s6")
    a(f"s_lshl_b32 s99, s3, 4\ns_add_u32 s99, s99, s61\ns_lshl_b32 s99, s99, 1\ns_add_u32 s99, s99, s50\ns_lshl_b32 s99, s99, 2\ns_add_u32 s99, s99, s6\ns_add_u32 s99, s99, {O_LSE}")
    if QSL: a(f"s_bfe_u32 s7, s51, 0x30007\ns_cmp_eq_u32 s7, 3\ns_cbranch_scc0 L_q_l3\ns_waitcnt vmcnt({K1})\nL_q_l3:")
    a(f"s_waitcnt vmcnt({K0+K1}) lgkmcnt(0)\ns_barrier")
    if BQ: a("s_barrier")
    stamp(3)
    for t in range(K0+K1, 8): kload(t)
    a("s_barrier")
    for i in range(M1): vload(i)
    if M1: a("s_barrier")
    if PAIR: a("s_barrier")
    for i in range(M1, 8): vload(i)
    a("s_cmp_ge_u32 s5, 30\ns_cbranch_scc1 L_D\ns_cmp_ge_u32 s5, 16\ns_cbranch_scc1 L_G")

    def attn(role, hook):
        n = hook(0)
        stamp(4)
        if debug and role != "W" and not PRO: a(f"s_waitcnt vmcnt({8+n})"); stamp(14); a(f"s_waitcnt vmcnt({n if DIAG else 8+n-M1})"); stamp(15)
        a("s_barrier")
        stamp(5)
        a(f"ds_read_b128 v[104:107], v13\nv_mov_b32 v110, {L_MD}\nds_read_b32 v108, v110")
        a(f"s_waitcnt vmcnt({8 + n}) lgkmcnt(0)")
        D = [96] + [16+4*(t-1) for t in range(1, 8)]
        for t in range(8): mfma(D[t], 16+4*t, 104)
        def op(k, t):
            tt = t & 3; j = (tt + k) & 3
            if k < 3: a(f"v_add_f32_dpp v{D[t]+tt}, v{D[t]+j}, v{D[t]+tt} {rot(j, tt)} row_mask:0xf bank_mask:0xf")
            else: a(f"v_add_f32_dpp v{100+(t>>2)}, v{D[t]+j}, v{D[t]+tt} {rot(j, tt)} row_mask:0xf bank_mask:{hex(1<<tt)}")
        for t in range(8): op(1, t)
        a("v_readfirstlane_b32 s97, v108")
        od = [0, 4, 1, 5, 2, 6, 3, 7]
        for i in range(11):
            if i < 8: op(2, od[i])
            if i >= 3: op(3, od[i-3])
        a("v_cvt_pk_bf16_f32 v102, v100, v101"); unpack(100, 101, 102)
        a("v_mul_f32 v100, s57, v100\nv_mul_f32 v101, s57, v101")
        a("v_cvt_pk_bf16_f32 v102, v100, v101"); unpack(100, 101, 102)
        def allred(opn):
            a(f"v_{opn}_f32 v102, v100, v101")
            a(f"v_{opn}_f32_dpp v102, v102, v102 row_ror:4 row_mask:0xf bank_mask:0xf\nv_{opn}_f32_dpp v102, v102, v102 row_ror:8 row_mask:0xf bank_mask:0xf")
            a(f"v_mov_b32 v103, v102\nv_permlane16_swap_b32 v102, v103\nv_{opn}_f32 v102, v102, v103")
            a(f"v_mov_b32 v103, v102\nv_permlane32_swap_b32 v102, v103\nv_{opn}_f32 v102, v102, v103")
        allred("max")
        a("ds_write_b32 v9, v102")
        a("s_waitcnt lgkmcnt(0)\ns_barrier")
        a("ds_read_b128 v[104:107], v12\nds_read_b128 v[108:111], v12 offset:16")
        a("s_waitcnt lgkmcnt(0)")
        a("v_max3_f32 v102, v104, v105, v106\nv_max3_f32 v103, v107, v108, v109\nv_max3_f32 v102, v102, v110, v111\nv_max_f32 v104, v102, v103")
        a("v_sub_f32 v100, v100, v104\nv_sub_f32 v101, v101, v104\nv_mul_f32 v100, s58, v100\nv_mul_f32 v101, s58, v101\nv_exp_f32 v100, v100\nv_exp_f32 v101, v101")
        a("v_readlane_b32 s101, v104, s3")
        a("v_cvt_pk_bf16_f32 v105, v100, v101")
        allred("add")
        a(f"ds_write_b32 v9, v102 offset:{L_LS-L_MX}")
        for x in range(4):
            for c in range(4): a(f"v_mov_b32_dpp v{80+4*x+c}, v105 {rot(c, x)} row_mask:0xf bank_mask:{hex(1<<x)}")
        stamp(6)
        n += hook(1)
        a(f"s_lshl_b32 s7, s3, 11\ns_add_u32 s7, s7, {L_OP}\nv_add_u32 v12, s7, v8\nv_add_u32 v13, 1024, v12")
        a(f"s_lshl_b32 s7, s3, 9\ns_add_u32 s7, s7, {L_OP}\nv_and_b32 v106, 3, v1\nv_lshrrev_b32 v107, 2, v1\nv_lshlrev_b32 v104, 3, v107\nv_lshl_add_u32 v104, v106, 7, v104\nv_add_u32 v104, s7, v104")
        a(f"s_lshl_b32 s7, s3, 5\ns_add_u32 s7, s7, {L_LS}\nv_mov_b32 v105, s7")
        a("v_and_b32 v9, 7, v107\nv_lshlrev_b32 v9, 8, v9\nv_lshl_add_u32 v9, v106, 2, v9\nv_lshrrev_b32 v107, 5, v1\nv_lshl_add_u32 v9, v107, 12, v9")
        for c in range(4):
            a(f"s_waitcnt vmcnt({n + 6 - 2*c})")
            for x in range(4):
                a(f"v_perm_b32 v{16+8*x+c}, v{48+4*(2*c+1)+x}, v{48+4*(2*c)+x}, s59")
                a(f"v_perm_b32 v{20+8*x+c}, v{48+4*(2*c+1)+x}, v{48+4*(2*c)+x}, s60")
        stamp(7)
        for x in range(4):
            mfma(96, 80+4*x, 16+8*x, None if x == 0 else 96)
            mfma(100, 80+4*x, 20+8*x, None if x == 0 else 100)
        hook(2)
        a("ds_write2_b32 v12, v96, v100 offset0:0 offset1:1\nds_write2_b32 v12, v97, v101 offset0:128 offset1:129")
        a("ds_write2_b32 v13, v98, v102 offset0:0 offset1:1\nds_write2_b32 v13, v99, v103 offset0:128 offset1:129")
        a("s_waitcnt lgkmcnt(0)\ns_barrier")
        stamp(8)
        a(f"s_cmp_ge_u32 s3, 4\ns_cbranch_scc1 L_pub_done{role}")
        a("ds_read_b128 v[96:99], v105\nds_read_b128 v[100:103], v105 offset:16")
        for w in range(8): a(f"ds_read_b64 v[{16+2*w}:{17+2*w}], v104 offset:{w*2048}")
        a("s_waitcnt lgkmcnt(8)" if not debug else "s_waitcnt lgkmcnt(0)")
        pk("add", 96, 96, 98); pk("add", 100, 100, 102); pk("add", 96, 96, 100); a("v_add_f32 v96, v96, v97")
        a("v_rcp_f32 v97, v96\nv_log_f32 v98, v96")
        a("s_waitcnt lgkmcnt(0)")
        pk("add", 16, 16, 18); pk("add", 20, 20, 22); pk("add", 24, 24, 26); pk("add", 28, 28, 30)
        pk("add", 16, 16, 20); pk("add", 24, 24, 28); pk("add", 16, 16, 24)
        a("v_mul_f32 v16, v16, v97\nv_mul_f32 v17, v17, v97\nv_cvt_pk_bf16_f32 v16, v16, v17")
        a("v_mov_b32 v99, s101\nv_fmac_f32 v98, s58, v99")
        a("v_min_u32 v16, -2, v16\nv_min_u32 v98, -2, v98")
        a(f"buffer_store_dword v16, v9, {sWS}, s98 offen")
        a("s_mov_b64 exec, 1")
        a(f"buffer_store_dword v98, off, {sWS}, s99")
        a(f"s_mov_b64 exec, -1\ns_cmp_eq_u32 s97, 0\ns_cbranch_scc1 L_pub_done{role}")
        a(f"s_lshl_b32 s7, s5, 10\ns_add_u32 s7, s7, s6\ns_lshl_b32 s49, s3, 8\ns_add_u32 s7, s7, s49\ns_add_u32 s7, s7, {BX}\ns_add_u32 s49, s99, {BX}\nv_lshlrev_b32 v4, 2, v1")
        a(f"buffer_store_dword v98, off, {sWS}, s49 sc1\nbuffer_store_dword v16, v4, {sWS}, s7 offen sc1")
        a(f"L_pub_done{role}:")
        a("s_barrier")
        stamp(9)
        if debug and GS and role != "W": a(f"s_sleep {GS}")
        hook(3)

    def hookW(p):
        n = 0
        if p == 0:
            a(f"s_lshl_b32 s51, s4, 19\n{KH8}\ns_add_u32 s7, s7, s3\ns_lshl_b32 s7, s7, 15\ns_add_u32 s51, s51, s7\n{CW}\ns_lshl_b32 s7, s7, 7\ns_add_u32 s51, s51, s7\ns_add_u32 s52, s51, 16384")
            a("s_lshl_b32 s54, s3, 12\ns_add_u32 s55, s54, 2048")
            a("s_and_b32 s7, s5, 7\ns_lshl_b32 s62, s7, 10\ns_and_b32 s7, s3, 3\ns_lshl_b32 s7, s7, 8\ns_add_u32 s62, s62, s7")
            a("v_and_b32 v6, 31, v1\nv_lshlrev_b32 v6, 3, v6\nv_lshrrev_b32 v113, 5, v1\nv_lshl_add_u32 v6, v113, 2, v6")
            a("v_lshrrev_b32 v113, 3, v1\nv_and_b32 v114, 7, v1\nv_and_b32 v115, 2, v113\nv_xor_b32 v114, v114, v115\nv_lshlrev_b32 v114, 4, v114\nv_lshl_add_u32 v113, v113, 10, v114\nv_xor_b32 v114, 64, v113")
        if p == 1: a(f"buffer_load_dword v112, v6, {sX}, s62 offen"); n += 1
        if p == 0: a("s_bfe_u32 s7, s51, 0x30007\ns_cmp_eq_u32 s7, 3\ns_cselect_b64 s[0:1], -1, 0")
        for pos, so, ld in ((W1, "s51", "s54"), (W2, "s52", "s55")):
            if WSL and pos != 3 and p in (pos, 3): a("s_mov_b64 exec, s[0:1]" if p == 3 else "s_not_b64 exec, s[0:1]")
            if p == pos or (WSL and p == 3):
                dma(113, sWO, so, ld)
                a(f"s_add_u32 m0, {ld}, 1024\ns_add_u32 s7, {so}, 8192\nbuffer_load_dwordx4 v114, {sWO}, s7 offen {NTW} lds"); n += 2
                if WSL: a("s_mov_b64 exec, -1")
        if p == 1:
            a("v_bfe_u32 v116, v1, 2, 2\nv_and_b32 v117, 3, v1\nv_lshlrev_b32 v14, 10, v11\nv_lshl_add_u32 v14, v116, 7, v14\nv_lshl_add_u32 v14, v117, 3, v14\nv_lshrrev_b32 v116, 1, v116\nv_lshl_add_u32 v14, v116, 5, v14\nv_and_b32 v116, 1, v11\nv_lshl_add_u32 v14, v116, 6, v14")
            a("v_add_u32 v14, s54, v14\nv_xor_b32 v3, 32, v14\nv_xor_b32 v116, 64, v14\nv_xor_b32 v117, 64, v3")
            a(f"{KH8}\ns_add_u32 s7, s7, s3\ns_lshr_b32 s63, s7, 2\ns_lshl_b32 s63, s63, 7\ns_add_u32 s63, s63, s6\ns_add_u32 s63, s63, {O_LSE}")
            a("s_lshl_b32 s61, s7, 6\ns_lshr_b32 s7, s7, 1\ns_lshl_b32 s48, s7, 12\ns_add_u32 s48, s48, s6\ns_and_b32 s7, s3, 1\ns_lshl_b32 s7, s7, 10\ns_add_u32 s48, s48, s7")
            a(f"v_lshlrev_b32 v2, 3, v10\nv_add_u32 v115, {L_OP+32-L_RD}, v15")
        return n
    attn("W", hookW)
    def w_loads():
        a(f"buffer_load_dwordx2 v[32:33], v2, {sWS}, s63 offen sc1")
        for u in range(2): a(f"buffer_load_dwordx4 v[{16+4*u}:{19+4*u}], v7, {sWS}, s48 offen offset:{u*2048} sc1")
    if WG_:
        a("s_waitcnt vmcnt(0)")
        trfrag(48, 14, 0, 512); trfrag(52, 3, 0, 512); trfrag(56, 116, 0, 512); trfrag(60, 117, 0, 512)
        flag_wait("L_wg", O_FLG+256, 32, 122)
    w_loads()
    a("v_and_b32 v9, 7, v10\nv_lshrrev_b32 v13, 3, v10\nv_lshl_add_u32 v13, v9, 1, v13")
    a("v_lshlrev_b32 v12, 11, v13\nv_lshl_add_u32 v12, v11, 4, v12")
    a(f"s_add_u32 s49, s6, s61\ns_add_u32 s49, s49, {BX}\ns_add_u32 s55, s63, {BX}")
    a("s_waitcnt vmcnt(3)")
    stamp(10)
    if not WG_: trfrag(48, 14, 0, 512); trfrag(52, 3, 0, 512); trfrag(56, 116, 0, 512); trfrag(60, 117, 0, 512)
    a("s_cmp_eq_u32 s97, 0\ns_cbranch_scc1 L_w_go\ns_waitcnt vmcnt(0)")
    a("L_w_b:")
    a(f"buffer_load_dwordx2 v[32:33], v2, {sWS}, s55 offen sc1")
    for jp in range(2): a(f"buffer_load_dwordx4 v[{16+4*jp}:{19+4*jp}], v12, {sWS}, s49 offen offset:{jp*1024} sc1")
    a("s_branch L_w_x")
    a("L_w_poll:")
    if MASKP: a("s_mov_b64 exec, vcc")
    spin(); a("s_cmp_eq_u32 s97, 0\ns_cbranch_scc0 L_w_b")
    w_loads()
    a("L_w_x:")
    if MASKP: a("s_mov_b64 exec, -1")
    a("L_w_go:")
    a("s_waitcnt vmcnt(1) lgkmcnt(0)")
    for c in range(4): mfma(64+8*c, 48+4*c, 16)
    a("v_max_f32 v36, v32, v33")
    a("v_max_f32_dpp v36, v36, v36 row_ror:8 row_mask:0xf bank_mask:0xf")
    a("v_sub_f32 v34, v32, v36\nv_sub_f32 v35, v33, v36\nv_exp_f32 v34, v34\nv_exp_f32 v35, v35")
    a("s_waitcnt vmcnt(0)")
    for c in range(4): mfma(68+8*c, 48+4*c, 20)
    a("v_add_f32 v36, v34, v35")
    a("v_add_f32_dpp v36, v36, v36 row_ror:8 row_mask:0xf bank_mask:0xf\nv_rcp_f32 v36, v36")
    check_sent(list(range(16, 24)) + [32, 33], 37)
    a("v_mul_f32 v34, v34, v36\nv_mul_f32 v38, v35, v36")
    if debug: a("s_cmp_lg_u32 s96, 300000\ns_cbranch_scc1 L_dw1"); stamp(2); a("L_dw1:")
    a("s_cbranch_vccnz L_w_poll")
    stamp(11)
    for st in range(2):
        rs = (64+8*st, 66+8*st, 80+8*st, 82+8*st)
        for r in rs: pk("mul", r, r, 34, "op_sel_hi:[1,0]")
        for r in rs: a(f"v_pk_fma_f32 v[{r}:{r+1}], v[{r+4}:{r+5}], v[38:39], v[{r}:{r+1}] op_sel_hi:[1,0,1]")
        for r in range(4): a(f"v_add_f32_dpp v{64+8*st+r}, v{64+8*st+r}, v{64+8*st+r} row_ror:8 row_mask:0xf bank_mask:0x3")
        for r in range(4): a(f"v_add_f32_dpp v{64+8*st+r}, v{80+8*st+r}, v{80+8*st+r} row_ror:8 row_mask:0xf bank_mask:0xc")
        a(f"ds_write_b128 v{15 if st == 0 else 115}, v[{64+8*st}:{67+8*st}]")
    a("s_waitcnt lgkmcnt(0)\ns_barrier")
    stamp(12); cnt(1)
    a("s_cmp_ge_u32 s5, 8\ns_cbranch_scc1 L_kv_end\ns_cmp_ge_u32 s3, 4\ns_cbranch_scc1 L_kv_end")
    a(f"s_lshl_b32 s52, s62, 1\ns_add_u32 s52, s52, {WP}\ns_add_u32 s100, s100, 1\ns_and_b32 s100, s100, 0xff")
    unpack(120, 121, 112)
    a(f"s_and_b32 s7, s5, 4\ns_add_u32 s7, s7, s3\ns_lshl_b32 s48, s7, 10\ns_and_b32 s7, s5, 3\ns_lshl_b32 s7, s7, 4\ns_add_u32 s48, s48, s7\ns_add_u32 s48, s48, s6\ns_add_u32 s48, s48, {O_XN}")
    a("v_lshrrev_b32 v9, 4, v6\nv_lshlrev_b32 v9, 6, v9\nv_and_b32 v5, 12, v6\nv_add_u32 v9, v5, v9")
    a("v_and_b32 v5, 31, v1\nv_lshlrev_b32 v5, 4, v5\nv_lshrrev_b32 v4, 5, v1\nv_lshl_add_u32 v5, v4, 14, v5")
    a(f"s_add_u32 s49, s62, s6\ns_add_u32 s49, s49, {O_XN+BX}")
    a(f"s_lshl_b32 s7, s5, 7\ns_add_u32 s54, s6, s7\ns_add_u32 s54, s54, {O_H}\ns_and_b32 s7, s4, 1\ns_lshl_b32 s7, s7, 7\ns_sub_u32 s54, s54, s7\ns_xor_b32 s55, s54, {BX}")
    a("s_bitcmp1_b32 s4, 0\ns_cselect_b32 s58, s56, 0xffff\ns_mov_b32 s59, s58")
    a(f"s_lshl_b32 s7, s3, 3\ns_add_u32 s7, s7, {L_MX}\nv_mov_b32 v12, s7\nv_mov_b32 v13, {L_MX}")
    if RG_: flag_wait("L_rg", O_FLG, 16, 122)
    if debug and opt.get("rs"): a(f"s_sleep {opt['rs']}")
    gather("L_r_poll", 8, 16, 48, 32768, "s100", RD, opt.get("rpm", 0))
    a("v_cvt_pk_bf16_f32 v100, v96, v97")
    unpack(96, 97, 100)
    a("s_cbranch_scc1 L_r_poll" if opt.get("rpm", 0) else "s_cbranch_vccnz L_r_poll")
    stamp(13); cnt(3)
    pk("add", 96, 96, 120)
    a("v_cvt_pk_bf16_f32 v100, v96, v97")
    unpack(96, 97, 100)
    a("v_add_f32 v108, v96, v97\nv_mul_f32 v109, v96, v96\nv_fmac_f32 v109, v97, v97")
    wred2(108, 109)
    a("s_mov_b32 exec_lo, 0\ns_mov_b32 exec_hi, 0x80000000")
    a("ds_write_b64 v12, v[108:109]")
    a("s_mov_b64 exec, -1\nv_min_u32 v100, -2, v100")
    a("s_waitcnt lgkmcnt(0)\ns_barrier")
    stamp(15)
    a("ds_read_b128 v[104:107], v13\nds_read_b128 v[108:111], v13 offset:16")
    a("s_waitcnt lgkmcnt(0)")
    pk("add", 104, 104, 106); pk("add", 108, 108, 110); pk("add", 104, 104, 108)
    stats("v104", "v105", 109)
    a(f"v_pk_add_f32 v[96:97], v[96:97], v[110:111] op_sel_hi:[1,0] neg_lo:[0,1] neg_hi:[0,1]")
    stats2(109)
    a("v_cvt_pk_bf16_f32 v101, v96, v97")
    unpack(96, 97, 101)
    a("v_mul_f32 v96, v96, v111\nv_mul_f32 v97, v97, v111\nv_cvt_pk_bf16_f32 v101, v96, v97\nv_min_u32 v101, -2, v101")
    a(f"buffer_store_dword v101, v9, {sWS}, s48 offen")
    stamp(14)
    a("s_lshr_b32 s7, s4, 1\ns_cmp_lg_u32 s7, s3\ns_cbranch_scc1 L_r_noh")
    a("s_mov_b64 exec, s[58:59]")
    a(f"buffer_store_dword v100, v6, {sWS}, s54 offen")
    a("s_cmp_eq_u32 s97, 0\ns_cbranch_scc1 L_r_noh")
    a(f"buffer_store_dword v100, v6, {sWS}, s55 offen sc1")
    a("L_r_noh:")
    a("s_mov_b64 exec, -1\ns_cmp_eq_u32 s97, 0\ns_cbranch_scc1 L_kv_end")
    a(f"buffer_store_dword v101, v6, {sWS}, s49 offen sc1")
    a("s_branch L_kv_end")
    a("L_G:")
    DSL = opt.get("dsl", 0); DN = opt.get("dn", 4)
    def dn_dma():
        a(f"s_lshl_b32 s7, s3, 12\ns_add_u32 m0, s7, {L_DN}\ns_mov_b32 s7, s63")
        for i in range(4):
            a(f"buffer_load_dwordx4 v{113+(i&1)}, {sD}, s7 offen {NTW} lds")
            if i < 3: a("s_add_u32 m0, m0, 1024\ns_add_u32 s7, s7, 8192")
    def hookG(p):
        n = 0
        if DSL and p == GSP:
            if DSL == 1: a("s_mov_b64 exec, s[0:1]")
            dn_dma(); n += 4
            a("s_mov_b64 exec, -1")
        if p == 0:
            a("s_sub_u32 s61, s5, 16")
            a("s_mul_i32 s7, s4, 7\ns_lshr_b32 s62, s61, 1\ns_add_u32 s62, s62, s7")
            a(f"s_mul_i32 s51, s53, {32*3584}\ns_lshl_b32 s7, s62, 6\ns_add_u32 s51, s51, s7")
            a(f"s_xor_b32 s7, s53, 1\ns_mul_i32 s52, s7, {32*3584}\ns_lshl_b32 s7, s62, 6\ns_add_u32 s52, s52, s7")
            a("s_lshl_b32 s54, s3, 13\ns_lshl_b32 s7, s50, 11\ns_add_u32 s54, s54, s7")
            a("s_lshl_b32 s63, s62, 15\ns_lshl_b32 s7, s3, 7\ns_add_u32 s63, s63, s7")
            a("s_bitcmp1_b32 s62, 0\ns_cbranch_scc0 L_t_nosw")
            a("s_mov_b64 s[0:1], s[28:29]\ns_mov_b64 s[28:29], s[32:33]\ns_mov_b64 s[32:33], s[0:1]\ns_xor_b32 s54, s54, 4096")
            a("L_t_nosw:")
            a("s_xor_b32 s55, s54, 2048")
            a("v_lshrrev_b32 v113, 3, v1\nv_and_b32 v114, 7, v1\nv_and_b32 v115, 2, v113\nv_xor_b32 v114, v114, v115\nv_lshlrev_b32 v114, 4, v114\nv_lshl_add_u32 v113, v113, 10, v114\nv_xor_b32 v114, 64, v113")
        if p == 0: a("s_and_b32 s7, s62, 6\ns_cmp_eq_u32 s7, 6\ns_cselect_b64 s[0:1], -1, 0")
        for u, (so, ld) in enumerate((("s51", "s54"), ("s52", "s55"))):
            if u < GSL and p in (GSP, 3):
                a("s_mov_b64 exec, s[0:1]" if p != 3 else "s_not_b64 exec, s[0:1]")
                dma2(6, sG, so, ld, 3584); n += 2
                a("s_mov_b64 exec, -1")
            elif u >= GSL and p == (G1, G2)[u]: dma2(6, sG, so, ld, 3584); n += 2
        return n
    attn("G", hookG)
    a("s_xor_b32 s54, s54, 4096\ns_xor_b32 s55, s55, 4096")
    dma2(6, sU, "s51", "s54", 3584); dma2(6, sU, "s52", "s55", 3584)
    a(f"s_lshl_b32 s54, s3, 12\ns_add_u32 s54, s54, {L_DN}")
    if DSL == 1: a("s_not_b64 exec, s[0:1]")
    if DSL < 2: dn_dma()
    a("s_mov_b64 exec, -1")
    a("v_bfe_u32 v116, v1, 2, 2\nv_and_b32 v117, 3, v1\nv_lshlrev_b32 v118, 10, v11\nv_lshl_add_u32 v118, v116, 7, v118\nv_lshl_add_u32 v118, v117, 3, v118\nv_lshrrev_b32 v119, 1, v116\nv_lshl_add_u32 v118, v119, 5, v118\nv_and_b32 v119, 1, v11\nv_lshl_add_u32 v118, v119, 6, v118")
    a("v_add_u32 v118, s54, v118\nv_xor_b32 v119, 32, v118\nv_xor_b32 v120, 64, v118\nv_xor_b32 v121, 64, v119")
    a(f"v_lshlrev_b32 v122, 4, v11\nv_lshl_add_u32 v122, v117, 6, v122\nv_add_u32 v122, {L_PB}, v122")
    a("v_lshlrev_b32 v123, 8, v116\nv_lshl_add_u32 v123, v11, 6, v123\nv_lshl_add_u32 v123, v117, 4, v123\nv_mov_b32 v124, 0xff")
    a(f"s_lshl_b32 s7, s62, 1\ns_add_u32 s7, s7, s50\ns_lshl_b32 s7, s7, 3\ns_add_u32 s7, s7, s3\ns_lshl_b32 s63, s7, 10\ns_add_u32 s63, s63, {PO}\ns_add_u32 s100, s100, 1")
    a(f"s_lshl_b32 s7, s3, 13\nv_add_u32 v14, s7, v14\nv_xor_b32 v9, 32, v14")
    a(f"v_and_b32 v12, 3, v10\nv_lshlrev_b32 v13, 10, v12\nv_lshl_add_u32 v13, v11, 4, v13\nv_lshlrev_b32 v12, 4, v12\nv_lshl_add_u32 v12, v11, 6, v12")
    a(f"s_lshl_b32 s48, s50, 12\ns_add_u32 s48, s48, s6\ns_add_u32 s48, s48, {O_XN}\ns_lshl_b32 s7, s3, 7\ns_add_u32 s49, s48, s7\ns_add_u32 s49, s49, {BX}\ns_lshl_b32 s7, s3, 9\ns_add_u32 s48, s48, s7")
    a("s_waitcnt vmcnt(0)")
    stamp(10)
    for t in range(2):
        for m in range(2):
            for ks in range(2): trfrag(48 + 16*t + 8*m + 4*ks, 14 if t == 0 else 9, m*4096 + ks*2048)
    for c in range(4): trfrag(80+4*c, 118+c, 0, 512)
    a("s_branch L_g_poll")
    a("L_g_b:")
    a(f"buffer_load_dwordx4 v[16:19], v13, {sWS}, s49 offen sc1\nbuffer_load_dwordx4 v[20:23], v13, {sWS}, s49 offen offset:64 sc1")
    a("s_branch L_g_go")
    a("L_g_poll:")
    spin(); a("s_cmp_eq_u32 s97, 0\ns_cbranch_scc0 L_g_b")
    a(f"buffer_load_dwordx4 v[16:19], v12, {sWS}, s48 offen sc1\nbuffer_load_dwordx4 v[20:23], v12, {sWS}, s48 offen offset:256 sc1")
    a("L_g_go:")
    a("s_waitcnt vmcnt(1) lgkmcnt(0)")
    for c in range(4): mfma(96+4*c, 48+8*c, 16)
    a("s_waitcnt vmcnt(0)")
    for c in range(4): mfma(96+4*c, 52+8*c, 20, 96+4*c)
    check_sent(range(16, 24), 24)
    a("s_cbranch_vccnz L_g_poll")
    stamp(11)
    for c in range(1, 4):
        for r in range(4): a(f"v_mov_b32_dpp v{96+r}, v{96+4*c+r} quad_perm:[0,1,2,3] row_mask:0xf bank_mask:{hex(1<<c)}")
    a("ds_write_b128 v15, v[96:99]")
    a("s_waitcnt lgkmcnt(0)\ns_barrier")
    stamp(12)
    a("s_barrier")
    a("ds_read_b128 v[16:19], v122\ns_waitcnt lgkmcnt(0)")
    for c in range(4): mfma(96+4*c, 80+4*c, 16)
    for c in range(1, 4):
        for r in range(4): a(f"v_mov_b32_dpp v{96+r}, v{96+4*c+r} quad_perm:[0,1,2,3] row_mask:0xf bank_mask:{hex(1<<c)}")
    for r in range(4): a(f"v_bfi_b32 v{96+r}, v124, s100, v{96+r}")
    a(f"buffer_store_dwordx4 v[96:99], v123, {sWS}, s63 offen sc1")
    stamp(13)
    a("s_branch L_kv_end")
    a("L_D:")
    TCH = opt.get("tch", 0); TP = opt.get("tp", 3)
    def hookD(p):
        n = 0
        if TCH and p == TP:
            fl = {1: "sc1", 2: "nt", 3: "", 4: "sc0 sc1"}[TCH]
            a(f"s_lshl_b32 s7, s4, 1\ns_add_u32 s7, s7, s50\ns_lshl_b32 s7, s7, 3\ns_add_u32 s7, s7, s3\ns_lshl_b32 s51, s7, 11\ns_add_u32 s51, s51, {WP}\ns_mul_i32 s52, s7, 7168\ns_add_u32 s52, s52, {PO}")
            for i in range(2): a(f"buffer_load_dwordx4 v[112:115], v7, {sWS}, s51 offen offset:{i*1024} {fl}")
            for i in range(7):
                a(f"buffer_load_dwordx4 v[112:115], v7, {sWS}, s52 offen offset:{(i&3)*1024} {fl}")
                if i == 3: a("s_add_u32 s52, s52, 4096")
            n = 9
        return n
    attn("D", hookD)
    WB = opt.get("wb", 0)
    if WB:
        a("s_cmp_lg_u32 s53, 0\ns_cbranch_scc1 L_kv_end")
        if WB == 1: flag_wait("L_wbg", O_FLG, 16, 122)
        if WB == 3: flag_wait("L_wbg", O_FLG+192, 14, 122)
        stamp(10)
        a("buffer_wbl2 sc1")
        a("s_waitcnt vmcnt(0)")
        stamp(11)
    a("L_kv_end:")
    if debug:
        a(f"s_cmp_lg_u32 s3, {DW}\ns_cbranch_scc1 L_end")
        a(f"s_lshl_b32 s7, s2, 8\ns_add_u32 s7, s7, {hex(STAMP)}")
        a("L_stamps:")
        a("s_waitcnt lgkmcnt(0)\nv_mov_b32 v0, 0")
        for i in range(16):
            a(f"v_mov_b32 v2, s{64+2*i}\nv_mov_b32 v3, s{65+2*i}")
            a(f"buffer_store_dwordx2 v[2:3], v0, {sWS}, s7 offen offset:{8*i}")
            a("s_nop 1")
    a("s_endpgm")

    a("L_aux:")
    a("s_setprio 3")
    if P3: srd([40, 24, 28, 32, 36]); com1(); com2()
    for i in range(4): a(f"v_mov_b32 v{100+i}, -1")
    a("s_lshl_b32 s58, s5, 1\ns_add_u32 s58, s58, s3\ns_lshl_b32 s7, s58, 10\ns_add_u32 s59, s7, s6")
    a("s_getreg_b32 s63, hwreg(HW_REG_XCC_ID, 0, 4)")
    if SLOW: a("s_and_b32 s63, s5, 1")
    if QSL: a("s_lshl_b32 s7, s58, 6\ns_add_u32 s7, s7, s4\ns_lshl_b32 s7, s7, 10\nv_lshrrev_b32 v4, 3, v1\nv_and_b32 v5, 7, v1\nv_lshlrev_b32 v5, 4, v5\nv_lshl_add_u32 v4, v4, 13, v5")
    a("s_waitcnt lgkmcnt(0)")
    if P2: a("s_mov_b64 s[40:41], s[90:91]"); a("s_mov_b64 s[16:17], s[72:73]\ns_mov_b64 s[24:25], s[76:77]\ns_mov_b64 s[28:29], s[80:81]\ns_mov_b64 s[32:33], s[82:83]\ns_mov_b64 s[44:45], s[84:85]\ns_mov_b64 s[36:37], s[86:87]")
    a("s_load_dword s48, s[40:41], 0")
    if PRO: stamp(12)
    if B0 and not AB0: a("s_barrier")
    a("s_cmp_ge_u32 s58, 43\ns_cbranch_scc1 L_a_c3")
    a(f"buffer_store_dwordx4 v[100:103], v7, {sWS}, s59 offen")
    a("L_a_c3:")
    stamp(1)
    a("v_lshlrev_b32 v14, 10, v11\nv_lshl_add_u32 v14, v9, 7, v14\nv_lshl_add_u32 v14, v12, 3, v14\nv_lshrrev_b32 v4, 1, v9\nv_lshl_add_u32 v14, v4, 5, v14\nv_lshl_add_u32 v14, v13, 6, v14")
    a("s_lshl_b32 s7, s3, 6\nv_xor_b32 v14, s7, v14\nv_xor_b32 v15, 32, v14")
    a(f"v_lshrrev_b32 v4, 3, v10\nv_lshl_add_u32 v4, v4, 2, v12\nv_mul_u32_u24 v4, 1040, v4\nv_lshl_add_u32 v4, v11, 4, v4\n{QS('s57')}\ns_lshl_b32 s7, s57, 8\ns_add_u32 s7, s7, {L_OP}\nv_add_u32 v4, s7, v4")
    a("v_and_b32 v5, 31, v1\nv_lshrrev_b32 v6, 5, v1\nv_lshlrev_b32 v2, 2, v5\nv_lshl_add_u32 v2, v6, 15, v2")
    a(f"s_lshl_b32 s55, s4, 16\ns_add_u32 s55, s55, {QB}")
    a(f"s_lshl_b32 s51, s57, 11\n{CG}\ns_lshl_b32 s7, s7, 8\ns_add_u32 s51, s51, s7\ns_lshl_b32 s7, s3, 7\ns_add_u32 s51, s51, s7\ns_add_u32 s51, s51, s55")
    a(f"s_add_u32 s52, s51, 8192\ns_add_u32 s53, s51, 16384\ns_add_u32 s54, s51, 24576\nv_add_u32 v3, {QX}, v2\nv_mov_b32 v104, 0xff")
    a(f"s_lshr_b32 s7, s5, 2\ns_lshl_b32 s60, s7, 13\ns_add_u32 s60, s60, s55\ns_lshl_b32 s7, s3, 7\ns_add_u32 s60, s60, s7\ns_add_u32 s61, s60, {QX}\ns_add_u32 s62, s60, 4096\ns_mov_b32 s49, s60")
    a("v_lshrrev_b32 v106, 3, v1\nv_and_b32 v5, 7, v1\nv_and_b32 v13, 1, v106\nv_lshlrev_b32 v106, 8, v106\nv_lshl_add_u32 v106, v5, 4, v106")
    a(f"v_lshlrev_b32 v13, 9, v13\nv_lshrrev_b32 v5, 1, v5\nv_lshl_add_u32 v13, v5, 6, v13\nv_lshl_add_u32 v13, v11, 4, v13\nv_and_b32 v5, 1, v1\nv_lshl_add_u32 v13, v5, 3, v13\ns_lshl_b32 s7, s3, 8\ns_add_u32 s7, s7, {L_QL}\nv_add_u32 v13, s7, v13")
    a("v_lshlrev_b32 v105, 1, v12")
    a("s_waitcnt lgkmcnt(0)\ns_add_u32 s48, s48, 1\ns_lshl_b32 s63, s63, 4\ns_and_b32 s7, s48, 15\ns_or_b32 s63, s63, s7\nv_lshrrev_b32 v105, v105, s63")
    a("s_bfe_u32 s98, s63, 0x20000\ns_bfe_u32 s99, s63, 0x20002\ns_bfe_u32 s100, s63, 0x20004\ns_bfe_u32 s101, s63, 0x20006")
    a("s_waitcnt vmcnt(0)")
    stamp(2)
    a("s_barrier")
    stamp(3)
    if debug: a("s_waitcnt lgkmcnt(0)")
    for ks in range(4):
        a(f"ds_read_b128 v[{16+4*ks}:{19+4*ks}], v4 offset:{ks*64}")
        trfrag(32+8*ks, 14, ks*4096, 512); trfrag(36+8*ks, 15, ks*4096, 512)
        if ks == 2: a("s_waitcnt lgkmcnt(10)"); mfma(96, 16, 32); mfma(100, 16, 36)
    for ks in range(1, 4):
        a(f"s_waitcnt lgkmcnt({5*(3-ks)})")
        mfma(96, 16+4*ks, 32+8*ks, 96); mfma(100, 16+4*ks, 36+8*ks, 100)
    for j in range(4): a(f"v_mov_b32_dpp v{96+j}, v{100+j} quad_perm:[0,1,2,3] row_mask:0xa bank_mask:0xf")
    for j in range(4): a(f"v_bfi_b32 v{96+j}, 3, v105, v{96+j}")
    for j in range(4): a(f"buffer_store_dword v{96+j}, v2, {sWS}, s{51+j} offen")
    if BQ: a("s_barrier")
    stamp(4)
    a("v_lshrrev_b32 v9, 3, v1\nv_and_b32 v12, 7, v1\nv_lshrrev_b32 v4, 1, v12")
    a(f"v_mul_u32_u24 v15, {RG}, v4\nv_lshl_add_u32 v15, v9, 4, v15\nv_lshl_add_u32 v15, v5, 3, v15\ns_lshl_b32 s7, s3, 7\ns_add_u32 s7, s7, {L_RD}\nv_add_u32 v15, s7, v15")
    a("v_lshlrev_b32 v5, 2, v12\nv_lshl_add_u32 v6, v9, 10, v5")
    a("s_or_b32 s96, s96, 15")
    a("s_barrier")
    if M1: a("s_barrier")
    stamp(8)
    def qld():
        for s in range(4): a(f"buffer_load_dwordx4 v[{16+4*s}:{19+4*s}], v106, {sWS}, {'s49' if s < 2 else 's62'} offen offset:{(s%2)*2048} sc1")
    qld()
    if PAIR: a("s_barrier")
    stamp(11)
    a("s_branch L_q_ld")
    a("L_q_poll:")
    spin(); a("s_and_b32 s7, s96, 7\ns_cselect_b32 s49, s60, s61\ns_cbranch_scc1 L_q_ld2")
    for j in range(4): a(f"buffer_store_dword v{96+j}, v3, {sWS}, s{51+j} offen sc1")
    a("L_q_ld2:")
    a("s_add_u32 s62, s49, 4096")
    qld()
    a("L_q_ld:")
    a("s_waitcnt vmcnt(0)")
    if debug:
        a("s_and_b32 s7, s96, 15\ns_cmp_lg_u32 s7, 15\ns_cbranch_scc1 L_dbg1"); stamp(10); a("L_dbg1:")
    for i in range(16): a(f"v_xor_b32 v{16+i}, s{98+(i&3)}, v{16+i}")
    a("v_or_b32 v32, v16, v17\nv_or_b32 v33, v18, v19")
    for i in range(4, 16, 4): a(f"v_or3_b32 v32, v32, v{16+i}, v{17+i}\nv_or3_b32 v33, v33, v{18+i}, v{19+i}")
    a("v_and_b32 v32, 3, v32\nv_and_b32 v33, 3, v33\nv_cmp_ne_u32 vcc, 0, v32\nv_cmp_ne_u32 s[0:1], 0, v33")
    for i in range(0, 16, 4): a(f"v_and_b32 v{18+i}, -4, v{18+i}\nv_and_b32 v{19+i}, -4, v{19+i}")
    a("s_cbranch_vccnz L_q_poll")
    pk("add", 16, 16, 20); pk("add", 18, 18, 22); pk("add", 24, 24, 28); pk("add", 26, 26, 30); pk("add", 16, 16, 24); pk("add", 18, 18, 26)
    a(f"s_or_b32 s97, s0, s1\nv_mov_b32 v20, s97\nv_mov_b32 v21, {L_MD}")
    a("v_cvt_pk_bf16_f32 v16, v16, v17\nv_cvt_pk_bf16_f32 v17, v18, v19")
    a("ds_write_b64 v13, v[16:17]\nds_write_b32 v21, v20")
    stamp(5)
    a("s_cmp_eq_u32 s97, 0\ns_cbranch_scc1 L_a_fast")
    for j in range(4): a(f"buffer_store_dword v{96+j}, v3, {sWS}, s{51+j} offen sc1")
    for i in range(4): a(f"v_mov_b32 v{100+i}, -1")
    a(f"s_cmp_ge_u32 s58, 43\ns_cbranch_scc1 L_a_s1\ns_add_u32 s7, s59, {BX}")
    a(f"buffer_store_dwordx4 v[100:103], v7, {sWS}, s7 offen sc1")
    a("L_a_s1:")
    a(f"s_add_u32 s49, s6, {O_SY}\ns_lshl_b32 s7, s58, 2\ns_add_u32 s7, s7, s49\nv_mov_b32 v20, s48\nv_lshlrev_b32 v21, 2, v1\ns_waitcnt vmcnt(0)")
    a(f"buffer_store_dword v20, off, {sWS}, s7 sc1")
    a("L_a_s2:")
    spin()
    a(f"buffer_load_dword v22, v21, {sWS}, s49 offen sc1\ns_waitcnt vmcnt(0)\nv_cmp_ne_u32 vcc, s48, v22\ns_cbranch_vccnz L_a_s2")
    a("L_a_fast:")
    a("s_waitcnt lgkmcnt(0)\ns_barrier")
    if TOUCH:
        a("s_cmp_ge_u32 s58, 43\ns_cbranch_scc1 L_a_nt")
        a(f"buffer_load_dwordx4 v[100:103], v7, {sWS}, s59 offen sc1")
        a("L_a_nt:")
    PFL = opt.get("pfl", "")
    if WALL:
        a("s_lshl_b32 s7, s4, 6\ns_add_u32 s7, s7, s58\ns_lshl_b32 s7, s7, 13")
        for i in range(8):
            a(f"buffer_load_dwordx4 v[108:111], v7, {sWO}, s7 offen offset:{(i&3)*1024} {PFL}")
            if i == 3: a("s_add_u32 s7, s7, 4096")
    if WSL:
        a("s_lshl_b32 s7, s4, 6\ns_add_u32 s7, s7, s58\ns_lshl_b32 s7, s7, 13\nv_lshlrev_b32 v107, 4, v12\nv_lshl_add_u32 v107, v9, 10, v107")
        a(f"buffer_load_dwordx4 v[108:111], v107, {sWO}, s7 offen offset:384 {PFL}")
    if GPF:
        a("s_mul_i32 s7, s4, 7\ns_lshr_b32 s7, s7, 1\ns_or_b32 s49, s7, 3\ns_bfe_u32 s7, s49, 0x10002\ns_lshl_b32 s49, s49, 7\ns_lshl_b32 s62, s5, 4\ns_add_u32 s7, s7, s62\ns_mul_i32 s7, s7, 3584\ns_add_u32 s7, s7, s49")
        a("v_mul_u32_u24 v107, 7168, v9\nv_lshl_add_u32 v107, v12, 4, v107\ns_cmp_eq_u32 s3, 0\ns_cbranch_scc1 L_a_pg")
        a(f"buffer_load_dwordx4 v[112:115], v107, {sU}, s7 offen {PFL}\ns_branch L_a_px")
        a("L_a_pg:")
        a(f"buffer_load_dwordx4 v[112:115], v107, {sG}, s7 offen {PFL}")
        a("L_a_px:")
    a("s_barrier")
    a("s_barrier")
    if WG_ == 1: flag_set(256)
    a("s_barrier")
    if WG_ == 2: flag_set(256)
    a("s_cmp_ge_u32 s5, 16\ns_cbranch_scc1 L_a_gd")
    a(f"s_lshl_b32 s53, s4, 15\n{KH8}\ns_lshl_b32 s7, s7, 11\ns_add_u32 s53, s53, s7\n{CW}\ns_lshl_b32 s7, s7, 8\ns_add_u32 s53, s53, s7\ns_lshl_b32 s7, s3, 7\ns_add_u32 s53, s53, s7\ns_add_u32 s53, s53, {WP}")
    a("v_lshlrev_b32 v6, 4, v12\nv_lshl_add_u32 v6, v9, 11, v6")
    a(f"v_and_b32 v4, 3, v1\nv_mul_u32_u24 v15, {RG}, v4\nv_lshl_add_u32 v15, v9, 4, v15\nv_bfe_u32 v4, v1, 2, 1\nv_mul_i32_i24 v4, {L_OP+32-L_RD}, v4\ns_lshl_b32 s7, s3, 7\ns_add_u32 s7, s7, {L_RD}\nv_add3_u32 v15, v15, v4, s7")
    a("s_barrier")
    stamp(6)
    if RG_ == 1: flag_set(0)
    for w in range(8): a(f"ds_read_b128 v[{24+4*w}:{27+4*w}], v15 offset:{w*RW}")
    for w in range(0, 8, 2):
        a(f"s_waitcnt lgkmcnt({6-w})" if not debug else "s_waitcnt lgkmcnt(0)")
        pk("add", 24+4*w, 24+4*w, 28+4*w); pk("add", 26+4*w, 26+4*w, 30+4*w)
        if w == 2: pk("add", 24, 24, 32); pk("add", 26, 26, 34)
    pk("add", 40, 40, 48); pk("add", 42, 42, 50); pk("add", 24, 24, 40); pk("add", 26, 26, 42)
    for q in range(4): a(f"v_bfi_b32 v{24+q}, v104, s48, v{24+q}")
    a(f"buffer_store_dwordx4 v[24:27], v6, {sWS}, s53 offen sc1")
    if RG_ == 2: flag_set(0)
    stamp(7)
    a("s_cmp_lg_u32 s3, 0\ns_cbranch_scc1 L_a_end")
    a("s_and_b32 s50, s5, 1\ns_lshr_b32 s61, s5, 1\ns_lshl_b32 s7, s4, 3\ns_add_u32 s7, s7, s61")
    a(f"s_lshl_b32 s52, s7, 7\ns_lshl_b32 s62, s7, 4\ns_lshl_b32 s7, s50, 13\ns_add_u32 s52, s52, s7\ns_add_u32 s52, s52, {PO}\ns_lshl_b32 s7, s50, 12\ns_add_u32 s62, s62, s7")
    a("v_lshlrev_b32 v5, 4, v12\nv_lshl_add_u32 v5, v9, 14, v5")
    a("v_and_b32 v2, 3, v1\nv_bfe_u32 v3, v1, 2, 1\nv_lshrrev_b32 v4, 5, v1\nv_lshlrev_b32 v4, 2, v4\nv_lshl_add_u32 v4, v3, 3, v4\nv_lshl_add_u32 v6, v2, 10, v4\nv_lshl_add_u32 v4, v2, 7, v4")
    a(f"s_lshl_b32 s61, s61, 4\ns_lshl_b32 s7, s50, 9\ns_add_u32 s61, s61, s7\ns_add_u32 s61, s61, s6\ns_add_u32 s61, s61, {O_H}\ns_xor_b32 s53, s61, {BX}\ns_cmp_eq_u32 s97, 0\ns_cselect_b32 s51, s61, s53")
    a("s_and_b32 s49, s48, 0xff\ns_cmp_ge_u32 s5, 8\ns_cbranch_scc1 L_h_poll\ns_barrier")
    a("L_h_poll:")
    spin()
    a(f"buffer_load_dword v22, v4, {sWS}, s51 offen sc1")
    a("s_waitcnt vmcnt(0)")
    a("v_cmp_eq_u32 vcc, -1, v22\ns_cbranch_vccnz L_h_poll")
    unpack(20, 21, 22)
    stamp(9); cnt(2)
    if FG_: flag_wait("L_fg", O_FLG+128+64, 14, 122)
    if debug and opt.get("fs"): a(f"s_sleep {opt['fs']}")
    gather("L_f_poll", 7, 24, 56, 0x20000, "s49", FD, opt.get("fpm", 0))
    a("s_cbranch_scc1 L_f_poll" if opt.get("fpm", 0) else "s_cbranch_vccnz L_f_poll")
    stamp(12); cnt(3)
    a("v_mov_b32 v98, v96\nv_mov_b32 v99, v97\nv_permlane16_swap_b32 v96, v98\nv_permlane16_swap_b32 v97, v99")
    pk("add", 96, 96, 98)
    a("v_add_f32_dpp v96, v96, v96 row_ror:8 row_mask:0xf bank_mask:0xf\nv_add_f32_dpp v97, v97, v97 row_ror:8 row_mask:0xf bank_mask:0xf")
    a("v_cvt_pk_bf16_f32 v98, v96, v97")
    unpack(22, 23, 98)
    pk("add", 22, 22, 20); a("v_cvt_pk_bf16_f32 v22, v22, v23")
    a("s_mov_b32 exec_lo, 0xff\ns_mov_b32 exec_hi, 0xff")
    a(f"buffer_store_dword v22, v6, {sOUT}, s62 offen")
    stamp(13)
    a("s_cmp_lg_u32 s62, 0\ns_cbranch_scc1 L_a_end")
    a("v_mov_b32 v22, s48\ns_mov_b64 exec, 1")
    a(f"buffer_store_dword v22, off, {sWS}, 0")
    a("s_branch L_a_end")
    a("L_a_gd:")
    a("s_cmp_ge_u32 s5, 30\ns_cbranch_scc1 L_a_end")
    a(f"v_lshrrev_b32 v4, 5, v1\nv_bfe_u32 v13, v1, 2, 1\nv_lshl_add_u32 v13, v4, 1, v13\nv_mul_u32_u24 v15, {RG}, v13\nv_and_b32 v13, 3, v9\nv_lshl_add_u32 v15, v13, 4, v15\nv_and_b32 v13, 3, v1\nv_lshl_add_u32 v15, v13, 2, v15")
    a(f"s_lshl_b32 s7, s3, 7\ns_add_u32 s7, s7, {L_RD}\nv_add_u32 v15, s7, v15")
    a(f"v_lshlrev_b32 v14, 1, v12\nv_lshl_add_u32 v14, v4, 4, v14\nv_and_b32 v13, 3, v9\nv_lshl_add_u32 v14, v13, 6, v14\ns_lshl_b32 s7, s3, 5\ns_add_u32 s7, s7, {L_PB}\nv_add_u32 v14, s7, v14\nv_add_u32 v4, 64, v15")
    a(f"s_mov_b32 s57, {hex(LOG2E ^ 0x80000000)}")
    a("s_barrier")
    stamp(6)
    if FG_ == 1: flag_set(128)
    for w in range(4): a(f"ds_read2st64_b32 v[{24+2*w}:{25+2*w}], v15 offset0:{10*w} offset1:{10*w+5}")
    for w in range(4): a(f"ds_read2st64_b32 v[{32+2*w}:{33+2*w}], v4 offset0:{10*w} offset1:{10*w+5}")
    a("s_waitcnt lgkmcnt(4)" if not debug else "s_waitcnt lgkmcnt(0)")
    pk("add", 24, 24, 26); pk("add", 28, 28, 30); pk("add", 24, 24, 28); a("v_add_f32 v24, v24, v25")
    a("v_cvt_pk_bf16_f32 v24, v24, v24\nv_and_b32 v26, s56, v24")
    a("v_mul_f32 v26, s57, v26\nv_exp_f32 v26, v26")
    a("s_waitcnt lgkmcnt(0)")
    pk("add", 32, 32, 34); pk("add", 36, 36, 38)
    a("v_add_f32 v26, 1.0, v26\nv_rcp_f32 v26, v26")
    pk("add", 32, 32, 36); a("v_add_f32 v25, v32, v33")
    a("v_cvt_pk_bf16_f32 v26, v26, v25")
    unpack(25, 26, 26)
    a("v_mul_f32 v26, v26, v25")
    a("v_cvt_pk_bf16_f32 v26, v26, v26\nds_write_b16 v14, v26\ns_waitcnt lgkmcnt(0)\ns_barrier")
    if FG_ == 2: flag_set(128)
    stamp(7)
    a("L_a_end:")
    if debug:
        a("s_mov_b64 exec, -1\ns_cmp_lg_u32 s3, 0\ns_cbranch_scc1 L_end")
        a(f"s_lshl_b32 s7, s2, 8\ns_add_u32 s7, s7, {hex(STAMP+128)}\ns_branch L_stamps")
    a("L_end:\ns_endpgm")
    lines = hz.fix(a.l)
    hdr = open("header.txt").read()
    return wrap("\n".join(lines) + "\n", 256, 640, L_END, 128, sgpr=102, header=hdr)

if __name__ == "__main__":
    specs = sys.argv[1:] or ["k8"]
    for sp in specs:
        nm, _, o = sp.partition(":")
        opt = {}
        for kv in filter(None, o.split(",")):
            k, v = kv.split("=")
            try: v = int(v)
            except ValueError: pass
            opt[k] = v
        open(nm + ".s", "w").write(gen(False, **opt))
        open(nm + "d.s", "w").write(gen(True, **opt))
```

```python
import sys
from asmlib import *
import hz

GB=0x40000; GSH=17
O_OB=0; O_XN=0x8000; O_H=0xA000; O_LSE=0xA400; O_FLG=0xA800; O_SY=0xB000; BX=0x10000
WP=0x140000; PO=0x300000; L_DN=65536
QB=0x200000; QX=0x80000
STAMP=128<<20
L_W=0
L_QL=114688
L_MX=L_QL+1024
L_LS=L_MX+128
L_OP=L_LS+128
L_RD=L_OP+16384
L_PB=L_RD+10240
L_MD=L_PB+1152
L_END=L_MD+64
RW=1280; RG=320
sX,sK,sV,sWQ,sWO,sG,sU,sOUT,sWS,sD = [f"s[{i}:{i+3}]" for i in range(8,48,4)]
LOG2E=0x3fb8aa3b; SCALE=0x3db504f3; EPS=0x3727c5ac

def gen(debug=False, **opt):
    NT = opt.get("nt", "nt")
    K0 = opt.get("k0", 2); K1 = opt.get("k1", 3); BQ = opt.get("bq", 1); GS = opt.get("gsleep", 0); B0 = opt.get("b0", 1); TOUCH = opt.get("touch", 1); SLOW = opt.get("slow", 0); DW = opt.get("dw", 0); PAIR = opt.get("pair", 1); DIAG = opt.get("diag", 0)
    W1 = opt.get("w1", 1); W2 = opt.get("w2", 1); CGX = opt.get("cgx", 4); WCX = opt.get("wcx", 4)
    G1 = opt.get("g1", 3)
    RD = opt.get("rd", 1); FD = opt.get("fd", 1); PRO = opt.get("pro", 0); AB0 = opt.get("ab0", 1); QSL = opt.get("qsl", 0); WSL = opt.get("wsl", 1); WALL = opt.get("wall", 0); GPF = opt.get("gpf", 1); WG_ = opt.get("wg", 0); RG_ = opt.get("rg", 1); FG_ = opt.get("fg", 2); G2 = opt.get("g2", 3); GSL = opt.get("gsl", 0); GSP = opt.get("gsp", 2); GUB = opt.get("gub", 0); GD = opt.get("gd", 1)
    NTW = opt.get("ntw", "nt")
    if NTW == "df": NTW = ""
    M1 = opt.get("m1", 2)
    PREOWN = opt.get("preown", 1)
    MASKP = opt.get("maskp", 1)
    DHINT = opt.get("dhint", 0)
    if WALL: WSL = 0; W1 = W2 = 3
    MAP = opt.get("map", 1)
    if MAP:
        QS = lambda r: f"s_lshr_b32 {r}, s5, 3\ns_and_b32 {r}, {r}, 2\ns_bitcmp1_b32 s5, 0\ns_addc_u32 {r}, {r}, 0"
        CG = CW = "s_bfe_u32 s7, s5, 0x30001\ns_xor_b32 s7, s7, 4"
        KH8 = "s_and_b32 s7, s5, 1\ns_lshl_b32 s7, s7, 3"
    else:
        QS = lambda r: f"s_and_b32 {r}, s5, 3"
        CG = f"s_lshr_b32 s7, s5, 2\ns_xor_b32 s7, s7, {CGX}"; CW = f"s_xor_b32 s7, s5, {WCX}\ns_and_b32 s7, s7, 7"; KH8 = "s_and_b32 s7, s5, 8"
    a = Asm()
    LITE = opt.get("lite", 1)
    def stamp(i):
        if debug and (not LITE or i in (0, 13)): a(f"s_memrealtime s[{64+2*i}:{65+2*i}]")
    def cnt(i):
        if debug and not LITE: a(f"s_waitcnt lgkmcnt(0)\ns_sub_u32 s7, 300000, s96\ns_mul_i32 s7, s7, 100\ns_add_u32 s{64+2*i}, s64, s7\ns_addc_u32 s{65+2*i}, s65, 0")
    def spin(): a("s_sub_u32 s96, s96, 1\ns_cbranch_scc1 L_end")
    def spin_ab(dst, sa, sb):
        spin(); a(f"s_and_b32 s7, s96, 15")
        for d, x, y in zip(dst, sa, sb): a(f"s_cselect_b32 {d}, {x}, {y}")
    def unpack(dlo, dhi, src): a(f"v_lshlrev_b32 v{dlo}, 16, v{src}\nv_and_b32 v{dhi}, s56, v{src}")
    def pk(op, d, x, y, mods=""): a(f"v_pk_{op}_f32 v[{d}:{d+1}], v[{x}:{x+1}], v[{y}:{y+1}] {mods}")
    def dma(voff, srd, soff, lds):
        a(f"s_mov_b32 m0, {lds}\nbuffer_load_dwordx4 v{voff}, {srd}, {soff} offen {NTW} lds")
    gu = [0]
    def dma2(voff, srd, soff, lds, stride):
        fl = "" if (opt.get("ntg", 0) >> (2 * (srd == sU) + (soff == "s52"))) & 1 else "nt"
        a(f"s_mov_b32 m0, {lds}\nbuffer_load_dwordx4 v{voff}, {srd}, {soff} offen {fl} lds")
        a(f"s_add_u32 m0, {lds}, 1024\ns_add_u32 s7, {soff}, {4*stride}")
        a(f"buffer_load_dwordx4 v{voff}, {srd}, s7 offen {fl} lds")
    def trfrag(dst, vaddr, off, d2=1024):
        a(f"ds_read_b64_tr_b16 v[{dst}:{dst+1}], v{vaddr} offset:{off}")
        a(f"ds_read_b64_tr_b16 v[{dst+2}:{dst+3}], v{vaddr} offset:{off+d2}")
    def mfma(d, A, B, C=None):
        c = "0" if C is None else f"v[{C}:{C+3}]"
        a(f"v_mfma_f32_16x16x32_bf16 v[{d}:{d+3}], v[{A}:{A+3}], v[{B}:{B+3}], {c}")
    def check_sent(regs, t):
        r = list(regs)
        a(f"v_max3_u32 v{t}, v{r[0]}, v{r[1]}, v{r[2]}"); r = r[3:]
        while len(r) >= 2:
            a(f"v_max3_u32 v{t}, v{t}, v{r[0]}, v{r[1]}"); r = r[2:]
        if r: a(f"v_max_u32 v{t}, v{t}, v{r[0]}")
        a(f"v_cmp_eq_u32 vcc, -1, v{t}")
    def stats(s1, s2, t, vc=None):
        if vc is None: a(f"v_mul_f32 v{t+1}, 0x3b000000, {s1}\nv_mul_f32 v{t+2}, 0x3b000000, {s2}")
        else: a(f"v_mul_f32 v{t+1}, {s1}, v{vc}\nv_mul_f32 v{t+2}, {s2}, v{vc}")
        a(f"v_fma_f32 v{t+2}, -v{t+1}, v{t+1}, v{t+2}\nv_max_f32 v{t+2}, 0, v{t+2}")
        a(f"v_cvt_pk_bf16_f32 v{t+1}, v{t+1}, v{t+2}")
        a(f"v_and_b32 v{t+2}, s56, v{t+1}\nv_lshlrev_b32 v{t+1}, 16, v{t+1}")
        a(f"v_add_f32 v{t+2}, {hex(EPS)}, v{t+2}\nv_cvt_pk_bf16_f32 v{t+2}, v{t+2}, v{t+2}\nv_and_b32 v{t+2}, s56, v{t+2}")
        a(f"v_sqrt_f32 v{t+2}, v{t+2}")
    def stats2(t): a(f"v_cvt_pk_bf16_f32 v{t+2}, v{t+2}, v{t+2}\nv_and_b32 v{t+2}, s56, v{t+2}\nv_rcp_f32 v{t+2}, v{t+2}")
    def wred2(x, y):
        for m in ["quad_perm:[1,0,3,2] row_mask:0xf", "quad_perm:[2,3,0,1] row_mask:0xf", "row_half_mirror row_mask:0xf", "row_mirror row_mask:0xf",
                  "row_bcast:15 row_mask:0xa", "row_bcast:31 row_mask:0xc"]:
            a(f"v_add_f32_dpp v{x}, v{x}, v{x} {m} bank_mask:0xf\nv_add_f32_dpp v{y}, v{y}, v{y} {m} bank_mask:0xf")
    def red8(addr, n=8):
        for w in range(n): a(f"ds_read_b64 v[{24+2*w}:{25+2*w}], v{addr} offset:{w*RW}")
        a("s_waitcnt lgkmcnt(0)")
        pk("add", 24, 24, 26); pk("add", 28, 28, 30); pk("add", 32, 32, 34)
        if n == 8: pk("add", 36, 36, 38)
        pk("add", 24, 24, 28); pk("add", 32, 32, 36); pk("add", 24, 24, 32)
    def gather(lab, n, raw, cp, stride, tag, depth, pm):
        def rnd(m):
            a("s_mov_b32 s51, s52")
            for r in range(n):
                if m and pm: a(f"s_wqm_b64 exec, s[{8+2*r}:{9+2*r}]")
                a(f"buffer_load_dwordx4 v[{raw+4*r}:{raw+3+4*r}], v5, {sWS}, s51 offen sc1")
                if r < n-1: a(f"s_add_u32 s51, s51, {stride}")
        for _ in range(depth): rnd(0)
        a(f"s_branch {lab}_c")
        a(f"{lab}:")
        for _ in range(opt.get("bk" + lab[2], 0)): a(f"buffer_load_dword v123, off, {sWS}, s6 sc1\ns_waitcnt vmcnt(0)")
        if not pm and not opt.get("nm" + lab[2], 0): a("s_wqm_b64 exec, vcc")
        spin()
        rnd(1)
        a("s_mov_b64 exec, -1")
        a(f"{lab}_c:")
        for r in range(n):
            c = cp+4*r
            a(f"s_waitcnt vmcnt({n*depth-1-r})")
            for q in range(4): a(f"v_xor_b32 v{c+q}, {tag}, v{raw+4*r+q}")
            if pm:
                a(f"v_or3_b32 v102, v{c}, v{c+1}, v{c+2}\nv_or_b32 v102, v102, v{c+3}\nv_and_b32 v102, 0xff, v102\nv_cmp_ne_u32 s[{8+2*r}:{9+2*r}], 0, v102")
            elif r == 0: a(f"v_or3_b32 v102, v{c}, v{c+1}, v{c+2}\nv_or_b32 v102, v102, v{c+3}")
            else: a(f"v_or3_b32 v102, v102, v{c}, v{c+1}\nv_or3_b32 v102, v102, v{c+2}, v{c+3}")
            if r: pk("add", 96, cp if r == 1 else 96, c); pk("add", 98, cp+2 if r == 1 else 98, c+2)
            if pm and r >= 2: a(f"s_or_b64 vcc, {'s[8:9]' if r == 2 else 'vcc'}, s[{6+2*r}:{7+2*r}]")
        a("v_permlane32_swap_b32 v96, v98\nv_permlane32_swap_b32 v97, v99")
        if pm: a(f"s_or_b64 vcc, vcc, s[{6+2*n}:{7+2*n}]")
        else: a("v_and_b32 v102, 0xff, v102\nv_cmp_ne_u32 vcc, 0, v102")
        pk("add", 96, 96, 98)
    def flag_set(off):
        a(f"s_lshl_b32 s7, s5, 2\ns_add_u32 s7, s7, s6\ns_add_u32 s7, s7, {O_FLG}\ns_cmp_eq_u32 s3, 0\ns_cselect_b64 exec, 1, 0")
        a(f"buffer_store_dword v1, off, {sWS}, s7 offset:{off}\ns_mov_b64 exec, -1")
    def flag_wait(lab, off, n, vt):
        a(f"s_cmp_lg_u32 s97, 0\ns_cbranch_scc1 {lab}_x\ns_add_u32 s51, s6, {off}\nv_min_u32 v{vt}, {n-1}, v1\nv_lshlrev_b32 v{vt}, 2, v{vt}")
        a(f"{lab}:")
        spin()
        a(f"buffer_load_dword v{vt+1}, v{vt}, {sWS}, s51 offen sc1\ns_waitcnt vmcnt(0)\nv_cmp_eq_u32 vcc, -1, v{vt+1}\ns_cbranch_vccnz {lab}")
        a(f"{lab}_x:")
    def rot(frm, to):
        k = 4 * ((to - frm) & 3)
        return f"row_ror:{k}" if k else "quad_perm:[0,1,2,3]"

    P2 = opt.get("p2", 1)
    if P2:
        a("L_top:")
        stamp(0)
        a("s_load_dwordx8 s[68:75], s[0:1], 0\ns_load_dwordx16 s[76:91], s[0:1], 32")
        a("s_getpc_b64 s[60:61]")
        a("L_pc:")
        a("v_lshrrev_b32 v9, 6, v0\ns_lshr_b32 s5, s2, 3\nv_lshl_add_u32 v2, v9, 5, s5\nv_min_u32 v2, (L_end-L_pc)>>7, v2\nv_lshlrev_b32 v2, 7, v2")
        a("global_load_dword v127, v2, s[60:61]")
        a("s_cmp_ge_u32 s5, 32\ns_cbranch_scc1 L_end")
        a("v_readfirstlane_b32 s3, v9\nv_and_b32 v1, 63, v0\ns_and_b32 s4, s2, 7")
    else:
        a("s_cmp_ge_u32 s2, 256\ns_cbranch_scc1 L_end")
        stamp(0)
        for d, o in [(8,0),(20,24),(12,8),(40,88),(16,16),(24,32),(28,48),(32,56),(44,64),(36,72)]:
            a(f"s_load_dwordx2 s[{d}:{d+1}], s[0:1], {o}")
        a("v_lshrrev_b32 v9, 6, v0\nv_and_b32 v1, 63, v0")
        a("s_getpc_b64 s[60:61]")
        a("L_pc:")
        a("v_readfirstlane_b32 s3, v9")
        a("s_and_b32 s4, s2, 7\ns_lshr_b32 s5, s2, 3")
        a(f"s_lshl_b32 s7, s3, 5\ns_add_u32 s7, s7, s5\ns_lshl_b32 s7, s7, 7\ns_min_u32 s7, s7, L_end-L_pc\nv_mov_b32 v2, s7")
        a("global_load_dword v127, v2, s[60:61]")
    P3 = opt.get("p3", 1)
    SRDS = {8: 8192, 40: 256<<20, 20: 4<<20, 12: 64<<20, 16: 64<<20, 24: 4<<20, 28: 512*3584, 32: 512*3584, 36: 8192, 44: 1792*1024}
    def srd(l):
        for d in l: a(f"s_mov_b32 s{d+2}, {hex(SRDS[d])}\ns_mov_b32 s{d+3}, 0x20000")
    def com1(): a("v_lshrrev_b32 v11, 4, v1\nv_and_b32 v12, 3, v1\nv_bfe_u32 v9, v1, 2, 2")
    def com2():
        a(f"s_lshl_b32 s6, s4, {GSH}\ns_add_u32 s6, s6, {GB}")
        a("s_mov_b32 s56, 0xffff0000\ns_mov_b32 s96, 300000\nv_lshlrev_b32 v8, 3, v1\nv_and_b32 v10, 15, v1\nv_and_b32 v13, 1, v11")
    a("v_lshlrev_b32 v7, 4, v1")
    if not P3: srd(SRDS); com1(); com2()
    if AB0: a("s_cmp_lt_u32 s3, 2\ns_cbranch_scc0 L_kv\ns_barrier\ns_branch L_aux\nL_kv:")
    else: a("s_cmp_lt_u32 s3, 2\ns_cbranch_scc1 L_aux")
    a("s_sub_u32 s3, s3, 2")
    a("v_lshrrev_b32 v4, 3, v1\nv_and_b32 v5, 7, v1\nv_and_b32 v6, 2, v4\nv_xor_b32 v5, v5, v6\nv_lshlrev_b32 v5, 4, v5\nv_lshl_add_u32 v4, v4, 13, v5\nv_xor_b32 v5, 64, v4")
    def kaddr():
        a("v_lshlrev_b32 v2, 4, v12\nv_lshl_add_u32 v2, v11, 6, v2\nv_lshl_add_u32 v2, v9, 10, v2")
        a("s_lshr_b32 s7, s5, 2\ns_lshl_b32 s48, s7, 23\ns_lshl_b32 s7, s4, 20\ns_add_u32 s48, s48, s7")
        a("s_and_b32 s7, s5, 3\ns_lshl_b32 s7, s7, 16\ns_add_u32 s48, s48, s7\ns_lshl_b32 s7, s3, 13\ns_add_u32 s48, s48, s7\ns_add_u32 s48, s48, 786432")
        a("s_add_u32 s49, s48, 4096")
    if P3: srd([8, 20])
    else: kaddr()
    a(f"{QS('s7')}\ns_lshl_b32 s7, s7, 3\ns_add_u32 s7, s7, s3\ns_lshl_b32 s51, s7, 17\ns_lshl_b32 s7, s4, 10\ns_add_u32 s51, s51, s7\n{CG}\ns_lshl_b32 s7, s7, 7\ns_add_u32 s51, s51, s7\ns_add_u32 s52, s51, 65536")
    a("s_lshl_b32 s54, s3, 11\ns_lshl_b32 s55, s3, 10\ns_mov_b32 m0, s54")
    if QSL: a("s_bfe_u32 s61, s51, 0x30007\ns_cmp_eq_u32 s61, 3")
    def kload(t):
        i = 2*t if t < 4 else 2*(t-4)+1
        a(f"buffer_load_dwordx4 v[{16+4*t}:{19+4*t}], v2, {sK}, s{48+i//4} offen offset:{(i%4)*256} {NT}")
    def vload(i): a(f"buffer_load_dwordx4 v[{48+4*i}:{51+4*i}], v3, {sV}, s{48+i//4} offen offset:{(i%4)*256} {NT}")
    if PRO: stamp(14)
    a("s_waitcnt lgkmcnt(0)")
    if P2: a("s_mov_b64 s[8:9], s[68:69]\ns_mov_b64 s[20:21], s[74:75]")
    if PRO: stamp(15)
    a(f"buffer_load_dwordx4 v[96:99], v7, {sX}, s55 offen")
    if QSL: a("s_cbranch_scc1 L_q_late")
    a(f"buffer_load_dwordx4 v4, {sWQ}, s51 offen {NT} lds\ns_add_u32 m0, s54, 1024")
    a(f"buffer_load_dwordx4 v5, {sWQ}, s52 offen {NT} lds")
    a("L_q_late:")
    if P3: srd([12]); com1(); kaddr()
    if P2: a("s_mov_b64 s[12:13], s[70:71]\ns_mov_b64 s[40:41], s[90:91]")
    if B0: a("s_barrier")
    for t in range(K0): kload(t)
    a("s_load_dword s100, s[40:41], 0")
    if P2: a("s_mov_b64 s[16:17], s[72:73]\ns_mov_b64 s[24:25], s[76:77]\ns_mov_b64 s[28:29], s[80:81]\ns_mov_b64 s[32:33], s[82:83]\ns_mov_b64 s[44:45], s[84:85]\ns_mov_b64 s[36:37], s[86:87]")
    if P3: srd([40, 16, 24, 28, 32, 44]); com2()
    stamp(1)
    a("v_lshrrev_b32 v14, 2, v1\nv_lshlrev_b32 v14, 6, v14\nv_lshl_add_u32 v14, v12, 3, v14\nv_lshl_add_u32 v14, v13, 5, v14")
    a("v_lshl_add_u32 v9, v11, 3, v9")
    a("v_lshlrev_b32 v13, 1, v13\nv_xor_b32 v12, v12, v13\nv_lshlrev_b32 v12, 4, v12")
    a("v_lshl_add_u32 v5, v9, 10, v12")
    a("v_mul_u32_u24 v6, 3584, v9\nv_add_u32 v6, v6, v12")
    a("v_lshlrev_b32 v3, 4, v10\nv_lshl_add_u32 v3, v11, 10, v3")
    a("s_and_b32 s50, s5, 1")
    a("s_lshl_b32 s53, s3, 1\ns_add_u32 s53, s53, s50")
    a("s_lshl_b32 s54, s53, 11\ns_xor_b32 s55, s54, 2048")
    a(f"s_mul_i32 s7, s3, 1040\ns_add_u32 s7, s7, {L_OP}\nv_add_u32 v13, s7, v7")
    a("s_mov_b32 s57, 0x3f803f80\nv_mov_b32 v100, 0\nv_mov_b32 v101, 0\nv_mov_b32 v102, 0x3b000000")
    a(f"s_waitcnt vmcnt({K0+2})")
    if QSL:
        a(f"s_cmp_eq_u32 s61, 3\ns_cbranch_scc0 L_q_l2\nv_xor_b32 v103, 64, v4\ns_waitcnt vmcnt({K0})")
        a(f"buffer_load_dwordx4 v4, {sWQ}, s51 offen {NT} lds\ns_add_u32 m0, m0, 1024")
        a(f"buffer_load_dwordx4 v103, {sWQ}, s52 offen {NT} lds")
        a("L_q_l2:")
    stamp(2)
    for i in range(4): a(f"v_dot2c_f32_bf16 v100, s57, v{96+i}\nv_dot2c_f32_bf16 v101, v{96+i}, v{96+i}")
    for i in range(4): unpack(112+2*i, 113+2*i, 96+i)
    wred2(100, 101)
    a("v_readlane_b32 s58, v100, 63\nv_readlane_b32 s59, v101, 63")
    stats("s58", "s59", 109, 102)
    for j in range(4): a(f"v_pk_add_f32 v[{112+2*j}:{113+2*j}], v[{112+2*j}:{113+2*j}], v[110:111] op_sel_hi:[1,0] neg_lo:[0,1] neg_hi:[0,1]")
    stats2(109)
    for j in range(4): a(f"v_cvt_pk_bf16_f32 v{96+j}, v{112+2*j}, v{113+2*j}")
    for j in range(4): unpack(112+2*j, 113+2*j, 96+j)
    for j in range(4): a(f"v_pk_mul_f32 v[{112+2*j}:{113+2*j}], v[{112+2*j}:{113+2*j}], v[110:111] op_sel:[0,1] op_sel_hi:[1,1]")
    for j in range(4): a(f"v_cvt_pk_bf16_f32 v{96+j}, v{112+2*j}, v{113+2*j}")
    a("ds_write_b128 v13, v[96:99]")
    for t in range(K0, K0+K1): kload(t)
    for i in range(16): a(f"v_mov_b32 v{80+i}, 0")
    a(f"v_add_u32 v13, {L_QL}, v7")
    a(f"v_and_b32 v12, 3, v10\nv_lshlrev_b32 v12, 5, v12\nv_add_u32 v12, {L_MX}, v12")
    a(f"s_lshl_b32 s7, s3, 2\nv_add_u32 v9, s7, v12")
    a(f"s_mov_b32 s57, {hex(SCALE)}\ns_mov_b32 s58, {hex(LOG2E)}\ns_mov_b32 s59, 0x05040100\ns_mov_b32 s60, 0x07060302")
    a(f"s_mul_i32 s7, s3, {RW}\ns_add_u32 s7, s7, {L_RD}\nv_mul_u32_u24 v15, {RG}, v11\nv_lshl_add_u32 v15, v10, 4, v15\nv_add_u32 v15, s7, v15")
    a("s_lshr_b32 s7, s5, 2\ns_and_b32 s61, s5, 2\ns_lshl_b32 s61, s61, 2\ns_add_u32 s61, s61, s7")
    a("s_lshl_b32 s98, s3, 13\ns_lshl_b32 s7, s50, 11\ns_add_u32 s98, s98, s7\ns_lshl_b32 s7, s61, 4\ns_add_u32 s98, s98, s7\ns_add_u32 s98, s98, s6")
    a(f"s_lshl_b32 s99, s3, 4\ns_add_u32 s99, s99, s61\ns_lshl_b32 s99, s99, 1\ns_add_u32 s99, s99, s50\ns_lshl_b32 s99, s99, 2\ns_add_u32 s99, s99, s6\ns_add_u32 s99, s99, {O_LSE}")
    if QSL: a(f"s_bfe_u32 s7, s51, 0x30007\ns_cmp_eq_u32 s7, 3\ns_cbranch_scc0 L_q_l3\ns_waitcnt vmcnt({K1})\nL_q_l3:")
    a(f"s_waitcnt vmcnt({K0+K1}) lgkmcnt(0)\ns_barrier")
    if BQ: a("s_barrier")
    stamp(3)
    for t in range(K0+K1, 8): kload(t)
    a("s_barrier")
    for i in range(M1): vload(i)
    if M1: a("s_barrier")
    if PAIR: a("s_barrier")
    for i in range(M1, 8): vload(i)
    a("s_cmp_ge_u32 s5, 30\ns_cbranch_scc1 L_D\ns_cmp_ge_u32 s5, 16\ns_cbranch_scc1 L_G")

    def attn(role, hook):
        n = hook(0)
        stamp(4)
        if debug and role != "W" and not PRO and not LITE: a(f"s_waitcnt vmcnt({8+n})"); stamp(14); a(f"s_waitcnt vmcnt({n if DIAG else 8+n-M1})"); stamp(15)
        a("s_barrier")
        stamp(5)
        a(f"ds_read_b128 v[104:107], v13\nv_mov_b32 v110, {L_MD}\nds_read_b32 v108, v110")
        a(f"s_waitcnt vmcnt({8 + n}) lgkmcnt(0)")
        D = [96] + [16+4*(t-1) for t in range(1, 8)]
        for t in range(8): mfma(D[t], 16+4*t, 104)
        def op(k, t):
            tt = t & 3; j = (tt + k) & 3
            if k < 3: a(f"v_add_f32_dpp v{D[t]+tt}, v{D[t]+j}, v{D[t]+tt} {rot(j, tt)} row_mask:0xf bank_mask:0xf")
            else: a(f"v_add_f32_dpp v{100+(t>>2)}, v{D[t]+j}, v{D[t]+tt} {rot(j, tt)} row_mask:0xf bank_mask:{hex(1<<tt)}")
        for t in range(8): op(1, t)
        a("v_readfirstlane_b32 s97, v108")
        od = [0, 4, 1, 5, 2, 6, 3, 7]
        for i in range(11):
            if i < 8: op(2, od[i])
            if i >= 3: op(3, od[i-3])
        a("v_cvt_pk_bf16_f32 v102, v100, v101"); unpack(100, 101, 102)
        a("v_mul_f32 v100, s57, v100\nv_mul_f32 v101, s57, v101")
        a("v_cvt_pk_bf16_f32 v102, v100, v101"); unpack(100, 101, 102)
        def allred(opn):
            a(f"v_{opn}_f32 v102, v100, v101")
            a(f"v_{opn}_f32_dpp v102, v102, v102 row_ror:4 row_mask:0xf bank_mask:0xf\nv_{opn}_f32_dpp v102, v102, v102 row_ror:8 row_mask:0xf bank_mask:0xf")
            a(f"v_mov_b32 v103, v102\nv_permlane16_swap_b32 v102, v103\nv_{opn}_f32 v102, v102, v103")
            a(f"v_mov_b32 v103, v102\nv_permlane32_swap_b32 v102, v103\nv_{opn}_f32 v102, v102, v103")
        allred("max")
        a("ds_write_b32 v9, v102")
        a("s_waitcnt lgkmcnt(0)\ns_barrier")
        a("ds_read_b128 v[104:107], v12\nds_read_b128 v[108:111], v12 offset:16")
        a("s_waitcnt lgkmcnt(0)")
        a("v_max3_f32 v102, v104, v105, v106\nv_max3_f32 v103, v107, v108, v109\nv_max3_f32 v102, v102, v110, v111\nv_max_f32 v104, v102, v103")
        a("v_sub_f32 v100, v100, v104\nv_sub_f32 v101, v101, v104\nv_mul_f32 v100, s58, v100\nv_mul_f32 v101, s58, v101\nv_exp_f32 v100, v100\nv_exp_f32 v101, v101")
        a("v_readlane_b32 s101, v104, s3")
        a("v_cvt_pk_bf16_f32 v105, v100, v101")
        allred("add")
        a(f"ds_write_b32 v9, v102 offset:{L_LS-L_MX}")
        for x in range(4):
            for c in range(4): a(f"v_mov_b32_dpp v{80+4*x+c}, v105 {rot(c, x)} row_mask:0xf bank_mask:{hex(1<<x)}")
        stamp(6)
        n += hook(1)
        a(f"s_lshl_b32 s7, s3, 11\ns_add_u32 s7, s7, {L_OP}\nv_add_u32 v12, s7, v8\nv_add_u32 v13, 1024, v12")
        a(f"s_lshl_b32 s7, s3, 9\ns_add_u32 s7, s7, {L_OP}\nv_and_b32 v106, 3, v1\nv_lshrrev_b32 v107, 2, v1\nv_lshlrev_b32 v104, 3, v107\nv_lshl_add_u32 v104, v106, 7, v104\nv_add_u32 v104, s7, v104")
        a(f"s_lshl_b32 s7, s3, 5\ns_add_u32 s7, s7, {L_LS}\nv_mov_b32 v105, s7")
        a("v_and_b32 v9, 7, v107\nv_lshlrev_b32 v9, 8, v9\nv_lshl_add_u32 v9, v106, 2, v9\nv_lshrrev_b32 v107, 5, v1\nv_lshl_add_u32 v9, v107, 12, v9")
        for c in range(4):
            a(f"s_waitcnt vmcnt({n + 6 - 2*c})")
            for x in range(4):
                a(f"v_perm_b32 v{16+8*x+c}, v{48+4*(2*c+1)+x}, v{48+4*(2*c)+x}, s59")
                a(f"v_perm_b32 v{20+8*x+c}, v{48+4*(2*c+1)+x}, v{48+4*(2*c)+x}, s60")
        stamp(7)
        for x in range(4):
            mfma(96, 80+4*x, 16+8*x, None if x == 0 else 96)
            mfma(100, 80+4*x, 20+8*x, None if x == 0 else 100)
        hook(2)
        a("ds_write2_b32 v12, v96, v100 offset0:0 offset1:1\nds_write2_b32 v12, v97, v101 offset0:128 offset1:129")
        a("ds_write2_b32 v13, v98, v102 offset0:0 offset1:1\nds_write2_b32 v13, v99, v103 offset0:128 offset1:129")
        a("s_waitcnt lgkmcnt(0)\ns_barrier")
        stamp(8)
        a(f"s_cmp_ge_u32 s3, 4\ns_cbranch_scc1 L_pub_done{role}")
        a("ds_read_b128 v[96:99], v105\nds_read_b128 v[100:103], v105 offset:16")
        for w in range(8): a(f"ds_read_b64 v[{16+2*w}:{17+2*w}], v104 offset:{w*2048}")
        a("s_waitcnt lgkmcnt(8)" if (not debug or LITE) else "s_waitcnt lgkmcnt(0)")
        pk("add", 96, 96, 98); pk("add", 100, 100, 102); pk("add", 96, 96, 100); a("v_add_f32 v96, v96, v97")
        a("v_rcp_f32 v97, v96\nv_log_f32 v98, v96")
        a("s_waitcnt lgkmcnt(0)")
        pk("add", 16, 16, 18); pk("add", 20, 20, 22); pk("add", 24, 24, 26); pk("add", 28, 28, 30)
        pk("add", 16, 16, 20); pk("add", 24, 24, 28); pk("add", 16, 16, 24)
        a("v_mul_f32 v16, v16, v97\nv_mul_f32 v17, v17, v97\nv_cvt_pk_bf16_f32 v16, v16, v17")
        a("v_mov_b32 v99, s101\nv_fmac_f32 v98, s58, v99")
        a("v_min_u32 v16, -2, v16\nv_min_u32 v98, -2, v98")
        a(f"buffer_store_dword v16, v9, {sWS}, s98 offen")
        a("s_mov_b64 exec, 1")
        a(f"buffer_store_dword v98, off, {sWS}, s99")
        a(f"s_mov_b64 exec, -1\ns_cmp_eq_u32 s97, 0\ns_cbranch_scc1 L_pub_done{role}")
        a(f"s_lshl_b32 s7, s5, 10\ns_add_u32 s7, s7, s6\ns_lshl_b32 s49, s3, 8\ns_add_u32 s7, s7, s49\ns_add_u32 s7, s7, {BX}\ns_add_u32 s49, s99, {BX}\nv_lshlrev_b32 v4, 2, v1")
        a(f"buffer_store_dword v98, off, {sWS}, s49 sc1\nbuffer_store_dword v16, v4, {sWS}, s7 offen sc1")
        a(f"L_pub_done{role}:")
        a("s_barrier")
        stamp(9)
        if debug and GS and role == "G": a(f"s_cmp_ge_u32 s4, 4\ns_cbranch_scc1 L_gs\ns_sleep {GS}\nL_gs:")
        if opt.get("ggate") and role == "G":
            a("s_cmp_ge_u32 s4, 4\ns_cbranch_scc1 L_gg_x\ns_mov_b32 s49, s51")
            flag_wait("L_gg", O_FLG + (256 if opt["ggate"] == 1 else 0), 32 if opt["ggate"] == 1 else 16, 122)
            a("s_cmp_ge_u32 s4, 4\ns_cselect_b32 s51, s51, s49")
        hook(3)

    def hookW(p):
        n = 0
        if p == 0:
            a(f"s_lshl_b32 s51, s4, 19\n{KH8}\ns_add_u32 s7, s7, s3\ns_lshl_b32 s7, s7, 15\ns_add_u32 s51, s51, s7\n{CW}\ns_lshl_b32 s7, s7, 7\ns_add_u32 s51, s51, s7\ns_add_u32 s52, s51, 16384")
            a("s_lshl_b32 s54, s3, 12\ns_add_u32 s55, s54, 2048")
            a("s_and_b32 s7, s5, 7\ns_lshl_b32 s62, s7, 10\ns_and_b32 s7, s3, 3\ns_lshl_b32 s7, s7, 8\ns_add_u32 s62, s62, s7")
            a("v_and_b32 v6, 31, v1\nv_lshlrev_b32 v6, 3, v6\nv_lshrrev_b32 v113, 5, v1\nv_lshl_add_u32 v6, v113, 2, v6")
            a("v_lshrrev_b32 v113, 3, v1\nv_and_b32 v114, 7, v1\nv_and_b32 v115, 2, v113\nv_xor_b32 v114, v114, v115\nv_lshlrev_b32 v114, 4, v114\nv_lshl_add_u32 v113, v113, 10, v114\nv_xor_b32 v114, 64, v113")
        if p == 1: a(f"buffer_load_dword v112, v6, {sX}, s62 offen"); n += 1
        if p == 0: a("s_bfe_u32 s7, s51, 0x30007\ns_cmp_eq_u32 s7, 3\ns_cselect_b64 s[0:1], -1, 0")
        for pos, so, ld in ((W1, "s51", "s54"), (W2, "s52", "s55")):
            if WSL and pos != 3 and p in (pos, 3): a("s_mov_b64 exec, s[0:1]" if p == 3 else "s_not_b64 exec, s[0:1]")
            if p == pos or (WSL and p == 3):
                dma(113, sWO, so, ld)
                a(f"s_add_u32 m0, {ld}, 1024\ns_add_u32 s7, {so}, 8192\nbuffer_load_dwordx4 v114, {sWO}, s7 offen {NTW} lds"); n += 2
                if WSL: a("s_mov_b64 exec, -1")
        if p == 1:
            a("v_bfe_u32 v116, v1, 2, 2\nv_and_b32 v117, 3, v1\nv_lshlrev_b32 v14, 10, v11\nv_lshl_add_u32 v14, v116, 7, v14\nv_lshl_add_u32 v14, v117, 3, v14\nv_lshrrev_b32 v116, 1, v116\nv_lshl_add_u32 v14, v116, 5, v14\nv_and_b32 v116, 1, v11\nv_lshl_add_u32 v14, v116, 6, v14")
            a("v_add_u32 v14, s54, v14\nv_xor_b32 v3, 32, v14\nv_xor_b32 v116, 64, v14\nv_xor_b32 v117, 64, v3")
            a(f"{KH8}\ns_add_u32 s7, s7, s3\ns_lshr_b32 s63, s7, 2\ns_lshl_b32 s63, s63, 7\ns_add_u32 s63, s63, s6\ns_add_u32 s63, s63, {O_LSE}")
            a("s_lshl_b32 s61, s7, 6\ns_lshr_b32 s7, s7, 1\ns_lshl_b32 s48, s7, 12\ns_add_u32 s48, s48, s6\ns_and_b32 s7, s3, 1\ns_lshl_b32 s7, s7, 10\ns_add_u32 s48, s48, s7")
            a(f"v_lshlrev_b32 v2, 3, v10\nv_add_u32 v115, {L_OP+32-L_RD}, v15")
        return n
    attn("W", hookW)
    def w_loads():
        a(f"buffer_load_dwordx2 v[32:33], v2, {sWS}, s63 offen sc1")
        for u in range(2): a(f"buffer_load_dwordx4 v[{16+4*u}:{19+4*u}], v7, {sWS}, s48 offen offset:{u*2048} sc1")
    if WG_:
        a("s_waitcnt vmcnt(0)")
        trfrag(48, 14, 0, 512); trfrag(52, 3, 0, 512); trfrag(56, 116, 0, 512); trfrag(60, 117, 0, 512)
        flag_wait("L_wg", O_FLG+256, 32, 122)
    w_loads()
    a("v_and_b32 v9, 7, v10\nv_lshrrev_b32 v13, 3, v10\nv_lshl_add_u32 v13, v9, 1, v13")
    a("v_lshlrev_b32 v12, 11, v13\nv_lshl_add_u32 v12, v11, 4, v12")
    a(f"s_add_u32 s49, s6, s61\ns_add_u32 s49, s49, {BX}\ns_add_u32 s55, s63, {BX}")
    a("s_waitcnt vmcnt(3)")
    stamp(10)
    if not WG_: trfrag(48, 14, 0, 512); trfrag(52, 3, 0, 512); trfrag(56, 116, 0, 512); trfrag(60, 117, 0, 512)
    a("s_cmp_eq_u32 s97, 0\ns_cbranch_scc1 L_w_go\ns_waitcnt vmcnt(0)")
    a("L_w_b:")
    a(f"buffer_load_dwordx2 v[32:33], v2, {sWS}, s55 offen sc1")
    for jp in range(2): a(f"buffer_load_dwordx4 v[{16+4*jp}:{19+4*jp}], v12, {sWS}, s49 offen offset:{jp*1024} sc1")
    a("s_branch L_w_x")
    a("L_w_poll:")
    if MASKP: a("s_mov_b64 exec, vcc")
    spin(); a("s_cmp_eq_u32 s97, 0\ns_cbranch_scc0 L_w_b")
    w_loads()
    a("L_w_x:")
    if MASKP: a("s_mov_b64 exec, -1")
    a("L_w_go:")
    a("s_waitcnt vmcnt(1) lgkmcnt(0)")
    for c in range(4): mfma(64+8*c, 48+4*c, 16)
    a("v_max_f32 v36, v32, v33")
    a("v_max_f32_dpp v36, v36, v36 row_ror:8 row_mask:0xf bank_mask:0xf")
    a("v_sub_f32 v34, v32, v36\nv_sub_f32 v35, v33, v36\nv_exp_f32 v34, v34\nv_exp_f32 v35, v35")
    a("s_waitcnt vmcnt(0)")
    for c in range(4): mfma(68+8*c, 48+4*c, 20)
    a("v_add_f32 v36, v34, v35")
    a("v_add_f32_dpp v36, v36, v36 row_ror:8 row_mask:0xf bank_mask:0xf\nv_rcp_f32 v36, v36")
    check_sent(list(range(16, 24)) + [32, 33], 37)
    a("v_mul_f32 v34, v34, v36\nv_mul_f32 v38, v35, v36")
    if debug: a("s_cmp_lg_u32 s96, 300000\ns_cbranch_scc1 L_dw1"); stamp(2); a("L_dw1:")
    a("s_cbranch_vccnz L_w_poll")
    stamp(11)
    for st in range(2):
        rs = (64+8*st, 66+8*st, 80+8*st, 82+8*st)
        for r in rs: pk("mul", r, r, 34, "op_sel_hi:[1,0]")
        for r in rs: a(f"v_pk_fma_f32 v[{r}:{r+1}], v[{r+4}:{r+5}], v[38:39], v[{r}:{r+1}] op_sel_hi:[1,0,1]")
        for r in range(4): a(f"v_add_f32_dpp v{64+8*st+r}, v{64+8*st+r}, v{64+8*st+r} row_ror:8 row_mask:0xf bank_mask:0x3")
        for r in range(4): a(f"v_add_f32_dpp v{64+8*st+r}, v{80+8*st+r}, v{80+8*st+r} row_ror:8 row_mask:0xf bank_mask:0xc")
        a(f"ds_write_b128 v{15 if st == 0 else 115}, v[{64+8*st}:{67+8*st}]")
    a("s_waitcnt lgkmcnt(0)\ns_barrier")
    stamp(12); cnt(1)
    a("s_cmp_ge_u32 s5, 8\ns_cbranch_scc1 L_kv_end\ns_cmp_ge_u32 s3, 4\ns_cbranch_scc1 L_kv_end")
    a(f"s_lshl_b32 s52, s62, 1\ns_add_u32 s52, s52, {WP}\ns_add_u32 s100, s100, 1\ns_and_b32 s100, s100, 0xff")
    unpack(120, 121, 112)
    a(f"s_and_b32 s7, s5, 4\ns_add_u32 s7, s7, s3\ns_lshl_b32 s48, s7, 10\ns_and_b32 s7, s5, 3\ns_lshl_b32 s7, s7, 4\ns_add_u32 s48, s48, s7\ns_add_u32 s48, s48, s6\ns_add_u32 s48, s48, {O_XN}")
    a("v_lshrrev_b32 v9, 4, v6\nv_lshlrev_b32 v9, 6, v9\nv_and_b32 v5, 12, v6\nv_add_u32 v9, v5, v9")
    a("v_and_b32 v5, 31, v1\nv_lshlrev_b32 v5, 4, v5\nv_lshrrev_b32 v4, 5, v1\nv_lshl_add_u32 v5, v4, 14, v5")
    a(f"s_add_u32 s49, s62, s6\ns_add_u32 s49, s49, {O_XN+BX}")
    a(f"s_lshl_b32 s7, s5, 7\ns_add_u32 s54, s6, s7\ns_add_u32 s54, s54, {O_H}\ns_and_b32 s7, s4, 1\ns_lshl_b32 s7, s7, 7\ns_sub_u32 s54, s54, s7\ns_xor_b32 s55, s54, {BX}")
    a("s_bitcmp1_b32 s4, 0\ns_cselect_b32 s58, s56, 0xffff\ns_mov_b32 s59, s58")
    a(f"s_lshl_b32 s7, s3, 3\ns_add_u32 s7, s7, {L_MX}\nv_mov_b32 v12, s7\nv_mov_b32 v13, {L_MX}")
    if RG_: flag_wait("L_rg", O_FLG, 16, 122)
    if debug and opt.get("rs"): a(f"s_sleep {opt['rs']}")
    gather("L_r_poll", 8, 16, 48, 32768, "s100", RD, opt.get("rpm", 0))
    a("v_cvt_pk_bf16_f32 v100, v96, v97")
    unpack(96, 97, 100)
    a("s_cbranch_scc1 L_r_poll" if opt.get("rpm", 0) else "s_cbranch_vccnz L_r_poll")
    stamp(13); cnt(3)
    pk("add", 96, 96, 120)
    a("v_cvt_pk_bf16_f32 v100, v96, v97")
    unpack(96, 97, 100)
    a("v_add_f32 v108, v96, v97\nv_mul_f32 v109, v96, v96\nv_fmac_f32 v109, v97, v97")
    wred2(108, 109)
    a("s_mov_b32 exec_lo, 0\ns_mov_b32 exec_hi, 0x80000000")
    a("ds_write_b64 v12, v[108:109]")
    a("s_mov_b64 exec, -1\nv_min_u32 v100, -2, v100")
    a("s_waitcnt lgkmcnt(0)\ns_barrier")
    stamp(15)
    a("ds_read_b128 v[104:107], v13\nds_read_b128 v[108:111], v13 offset:16")
    a("s_waitcnt lgkmcnt(0)")
    pk("add", 104, 104, 106); pk("add", 108, 108, 110); pk("add", 104, 104, 108)
    stats("v104", "v105", 109)
    a(f"v_pk_add_f32 v[96:97], v[96:97], v[110:111] op_sel_hi:[1,0] neg_lo:[0,1] neg_hi:[0,1]")
    stats2(109)
    a("v_cvt_pk_bf16_f32 v101, v96, v97")
    unpack(96, 97, 101)
    a("v_mul_f32 v96, v96, v111\nv_mul_f32 v97, v97, v111\nv_cvt_pk_bf16_f32 v101, v96, v97\nv_min_u32 v101, -2, v101")
    a(f"buffer_store_dword v101, v9, {sWS}, s48 offen")
    stamp(14)
    a("s_lshr_b32 s7, s4, 1\ns_cmp_lg_u32 s7, s3\ns_cbranch_scc1 L_r_noh")
    a("s_mov_b64 exec, s[58:59]")
    a(f"buffer_store_dword v100, v6, {sWS}, s54 offen")
    a("s_cmp_eq_u32 s97, 0\ns_cbranch_scc1 L_r_noh")
    a(f"buffer_store_dword v100, v6, {sWS}, s55 offen sc1")
    a("L_r_noh:")
    a("s_mov_b64 exec, -1\ns_cmp_eq_u32 s97, 0\ns_cbranch_scc1 L_kv_end")
    a(f"buffer_store_dword v101, v6, {sWS}, s49 offen sc1")
    a("s_branch L_kv_end")
    a("L_G:")
    DSL = opt.get("dsl", 1); DN = opt.get("dn", 4)
    def dn_dma():
        a(f"s_lshl_b32 s7, s3, 12\ns_add_u32 m0, s7, {L_DN}\ns_mov_b32 s7, s63")
        for i in range(4):
            a(f"buffer_load_dwordx4 v{113+(i&1)}, {sD}, s7 offen {'' if opt.get('ntd', 0) else 'nt'} lds")
            if i < 3: a("s_add_u32 m0, m0, 1024\ns_add_u32 s7, s7, 8192")
    def hookG(p):
        n = 0
        if DSL and p == GSP:
            if DSL == 1: a("s_mov_b64 exec, s[0:1]")
            dn_dma(); n += 4
            a("s_mov_b64 exec, -1")
        if p == 0:
            a("s_sub_u32 s61, s5, 16")
            a("s_mul_i32 s7, s4, 7\ns_lshr_b32 s62, s61, 1\ns_add_u32 s62, s62, s7")
            a(f"s_mul_i32 s51, s53, {32*3584}\ns_lshl_b32 s7, s62, 6\ns_add_u32 s51, s51, s7")
            a(f"s_xor_b32 s7, s53, 1\ns_mul_i32 s52, s7, {32*3584}\ns_lshl_b32 s7, s62, 6\ns_add_u32 s52, s52, s7")
            a("s_lshl_b32 s54, s3, 13\ns_lshl_b32 s7, s50, 11\ns_add_u32 s54, s54, s7")
            a("s_lshl_b32 s63, s62, 15\ns_lshl_b32 s7, s3, 7\ns_add_u32 s63, s63, s7")
            a("s_bitcmp1_b32 s62, 0\ns_cbranch_scc0 L_t_nosw")
            a("s_mov_b64 s[0:1], s[28:29]\ns_mov_b64 s[28:29], s[32:33]\ns_mov_b64 s[32:33], s[0:1]\ns_xor_b32 s54, s54, 4096")
            a("L_t_nosw:")
            a("s_xor_b32 s55, s54, 2048")
            a("v_lshrrev_b32 v113, 3, v1\nv_and_b32 v114, 7, v1\nv_and_b32 v115, 2, v113\nv_xor_b32 v114, v114, v115\nv_lshlrev_b32 v114, 4, v114\nv_lshl_add_u32 v113, v113, 10, v114\nv_xor_b32 v114, 64, v113")
        if p == 0: a("s_and_b32 s7, s62, 6\ns_cmp_eq_u32 s7, 6\ns_cselect_b64 s[0:1], -1, 0")
        for u, (so, ld) in enumerate((("s51", "s54"), ("s52", "s55"))):
            if u < GSL and p in (GSP, 3):
                a("s_mov_b64 exec, s[0:1]" if p != 3 else "s_not_b64 exec, s[0:1]")
                dma2(6, sG, so, ld, 3584); n += 2
                a("s_mov_b64 exec, -1")
            elif u >= GSL and p == (G1, G2)[u]: dma2(6, sG, so, ld, 3584); n += 2
            if p == 3 and (GUB >> u) & 1: a("s_barrier")
        return n
    attn("G", hookG)
    a("s_xor_b32 s54, s54, 4096\ns_xor_b32 s55, s55, 4096")
    dma2(6, sU, "s51", "s54", 3584)
    if GUB & 4: a("s_barrier")
    dma2(6, sU, "s52", "s55", 3584)
    if GUB & 8: a("s_barrier")
    a(f"s_lshl_b32 s54, s3, 12\ns_add_u32 s54, s54, {L_DN}")
    if DSL == 1: a("s_not_b64 exec, s[0:1]")
    if DSL < 2: dn_dma()
    a("s_mov_b64 exec, -1")
    a("v_bfe_u32 v116, v1, 2, 2\nv_and_b32 v117, 3, v1\nv_lshlrev_b32 v118, 10, v11\nv_lshl_add_u32 v118, v116, 7, v118\nv_lshl_add_u32 v118, v117, 3, v118\nv_lshrrev_b32 v119, 1, v116\nv_lshl_add_u32 v118, v119, 5, v118\nv_and_b32 v119, 1, v11\nv_lshl_add_u32 v118, v119, 6, v118")
    a("v_add_u32 v118, s54, v118\nv_xor_b32 v119, 32, v118\nv_xor_b32 v120, 64, v118\nv_xor_b32 v121, 64, v119")
    a(f"v_lshlrev_b32 v122, 4, v11\nv_lshl_add_u32 v122, v117, 6, v122\nv_add_u32 v122, {L_PB}, v122")
    a("v_lshlrev_b32 v123, 8, v116\nv_lshl_add_u32 v123, v11, 6, v123\nv_lshl_add_u32 v123, v117, 4, v123\nv_mov_b32 v124, 0xff")
    a(f"s_lshl_b32 s7, s62, 1\ns_add_u32 s7, s7, s50\ns_lshl_b32 s7, s7, 3\ns_add_u32 s7, s7, s3\ns_lshl_b32 s63, s7, 10\ns_add_u32 s63, s63, {PO}\ns_add_u32 s100, s100, 1")
    a(f"s_lshl_b32 s7, s3, 13\nv_add_u32 v14, s7, v14\nv_xor_b32 v9, 32, v14")
    a(f"v_and_b32 v12, 3, v10\nv_lshlrev_b32 v13, 10, v12\nv_lshl_add_u32 v13, v11, 4, v13\nv_lshlrev_b32 v12, 4, v12\nv_lshl_add_u32 v12, v11, 6, v12")
    a(f"s_lshl_b32 s48, s50, 12\ns_add_u32 s48, s48, s6\ns_add_u32 s48, s48, {O_XN}\ns_lshl_b32 s7, s3, 7\ns_add_u32 s49, s48, s7\ns_add_u32 s49, s49, {BX}\ns_lshl_b32 s7, s3, 9\ns_add_u32 s48, s48, s7")
    a("s_waitcnt vmcnt(0)")
    stamp(10)
    for t in range(2):
        for m in range(2):
            for ks in range(2): trfrag(48 + 16*t + 8*m + 4*ks, 14 if t == 0 else 9, m*4096 + ks*2048)
    for c in range(4): trfrag(80+4*c, 118+c, 0, 512)
    a("s_branch L_g_poll")
    a("L_g_b:")
    a(f"buffer_load_dwordx4 v[16:19], v13, {sWS}, s49 offen sc1\nbuffer_load_dwordx4 v[20:23], v13, {sWS}, s49 offen offset:64 sc1")
    a("s_branch L_g_go")
    a("L_g_poll:")
    spin(); a("s_cmp_eq_u32 s97, 0\ns_cbranch_scc0 L_g_b")
    a(f"buffer_load_dwordx4 v[16:19], v12, {sWS}, s48 offen sc1\nbuffer_load_dwordx4 v[20:23], v12, {sWS}, s48 offen offset:256 sc1")
    a("L_g_go:")
    a("s_waitcnt vmcnt(1) lgkmcnt(0)")
    for c in range(4): mfma(96+4*c, 48+8*c, 16)
    a("s_waitcnt vmcnt(0)")
    for c in range(4): mfma(96+4*c, 52+8*c, 20, 96+4*c)
    check_sent(range(16, 24), 24)
    a("s_cbranch_vccnz L_g_poll")
    stamp(11)
    for c in range(1, 4):
        for r in range(4): a(f"v_mov_b32_dpp v{96+r}, v{96+4*c+r} quad_perm:[0,1,2,3] row_mask:0xf bank_mask:{hex(1<<c)}")
    a("ds_write_b128 v15, v[96:99]")
    a("s_waitcnt lgkmcnt(0)\ns_barrier")
    stamp(12)
    a("s_barrier")
    a("ds_read_b128 v[16:19], v122\ns_waitcnt lgkmcnt(0)")
    for c in range(4): mfma(96+4*c, 80+4*c, 16)
    for c in range(1, 4):
        for r in range(4): a(f"v_mov_b32_dpp v{96+r}, v{96+4*c+r} quad_perm:[0,1,2,3] row_mask:0xf bank_mask:{hex(1<<c)}")
    for r in range(4): a(f"v_bfi_b32 v{96+r}, v124, s100, v{96+r}")
    a(f"buffer_store_dwordx4 v[96:99], v123, {sWS}, s63 offen sc1")
    stamp(13)
    a("s_branch L_kv_end")
    a("L_D:")
    TCH = opt.get("tch", 0); TP = opt.get("tp", 3)
    def hookD(p):
        n = 0
        if TCH and p == TP:
            fl = {1: "sc1", 2: "nt", 3: "", 4: "sc0 sc1"}[TCH]
            a(f"s_lshl_b32 s7, s4, 1\ns_add_u32 s7, s7, s50\ns_lshl_b32 s7, s7, 3\ns_add_u32 s7, s7, s3\ns_lshl_b32 s51, s7, 11\ns_add_u32 s51, s51, {WP}\ns_mul_i32 s52, s7, 7168\ns_add_u32 s52, s52, {PO}")
            for i in range(2): a(f"buffer_load_dwordx4 v[112:115], v7, {sWS}, s51 offen offset:{i*1024} {fl}")
            for i in range(7):
                a(f"buffer_load_dwordx4 v[112:115], v7, {sWS}, s52 offen offset:{(i&3)*1024} {fl}")
                if i == 3: a("s_add_u32 s52, s52, 4096")
            n = 9
        return n
    attn("D", hookD)
    WB = opt.get("wb", 0)
    if WB:
        a("s_cmp_lg_u32 s53, 0\ns_cbranch_scc1 L_kv_end")
        if WB == 1: flag_wait("L_wbg", O_FLG, 16, 122)
        if WB == 3: flag_wait("L_wbg", O_FLG+192, 14, 122)
        stamp(10)
        a("buffer_wbl2 sc1")
        a("s_waitcnt vmcnt(0)")
        stamp(11)
    a("L_kv_end:")
    if debug:
        a(f"s_cmp_lg_u32 s3, {DW}\ns_cbranch_scc1 L_end")
        a(f"s_lshl_b32 s7, s2, 8\ns_add_u32 s7, s7, {hex(STAMP)}")
        a("L_stamps:")
        a("s_waitcnt lgkmcnt(0)\nv_mov_b32 v0, 0")
        for i in range(16):
            a(f"v_mov_b32 v2, s{64+2*i}\nv_mov_b32 v3, s{65+2*i}")
            a(f"buffer_store_dwordx2 v[2:3], v0, {sWS}, s7 offen offset:{8*i}")
            a("s_nop 1")
    a("s_endpgm")

    a("L_aux:")
    a("s_setprio 3")
    if P3: srd([40, 24, 28, 32, 36] + ([16] if opt.get("vpf") else [])); com1(); com2()
    for i in range(4): a(f"v_mov_b32 v{100+i}, -1")
    a("s_lshl_b32 s58, s5, 1\ns_add_u32 s58, s58, s3\ns_lshl_b32 s7, s58, 10\ns_add_u32 s59, s7, s6")
    a("s_getreg_b32 s63, hwreg(HW_REG_XCC_ID, 0, 4)")
    if SLOW: a("s_and_b32 s63, s5, 1")
    if QSL: a("s_lshl_b32 s7, s58, 6\ns_add_u32 s7, s7, s4\ns_lshl_b32 s7, s7, 10\nv_lshrrev_b32 v4, 3, v1\nv_and_b32 v5, 7, v1\nv_lshlrev_b32 v5, 4, v5\nv_lshl_add_u32 v4, v4, 13, v5")
    a("s_waitcnt lgkmcnt(0)")
    if P2: a("s_mov_b64 s[40:41], s[90:91]"); a("s_mov_b64 s[16:17], s[72:73]\ns_mov_b64 s[24:25], s[76:77]\ns_mov_b64 s[28:29], s[80:81]\ns_mov_b64 s[32:33], s[82:83]\ns_mov_b64 s[44:45], s[84:85]\ns_mov_b64 s[36:37], s[86:87]")
    a("s_load_dword s48, s[40:41], 0")
    if PRO: stamp(12)
    if B0 and not AB0: a("s_barrier")
    a("s_cmp_ge_u32 s58, 43\ns_cbranch_scc1 L_a_c3")
    a(f"buffer_store_dwordx4 v[100:103], v7, {sWS}, s59 offen")
    a("L_a_c3:")
    stamp(1)
    a("v_lshlrev_b32 v14, 10, v11\nv_lshl_add_u32 v14, v9, 7, v14\nv_lshl_add_u32 v14, v12, 3, v14\nv_lshrrev_b32 v4, 1, v9\nv_lshl_add_u32 v14, v4, 5, v14\nv_lshl_add_u32 v14, v13, 6, v14")
    a("s_lshl_b32 s7, s3, 6\nv_xor_b32 v14, s7, v14\nv_xor_b32 v15, 32, v14")
    a(f"v_lshrrev_b32 v4, 3, v10\nv_lshl_add_u32 v4, v4, 2, v12\nv_mul_u32_u24 v4, 1040, v4\nv_lshl_add_u32 v4, v11, 4, v4\n{QS('s57')}\ns_lshl_b32 s7, s57, 8\ns_add_u32 s7, s7, {L_OP}\nv_add_u32 v4, s7, v4")
    a("v_and_b32 v5, 31, v1\nv_lshrrev_b32 v6, 5, v1\nv_lshlrev_b32 v2, 2, v5\nv_lshl_add_u32 v2, v6, 15, v2")
    a(f"s_lshl_b32 s55, s4, 16\ns_add_u32 s55, s55, {QB}")
    a(f"s_lshl_b32 s51, s57, 11\n{CG}\ns_lshl_b32 s7, s7, 8\ns_add_u32 s51, s51, s7\ns_lshl_b32 s7, s3, 7\ns_add_u32 s51, s51, s7\ns_add_u32 s51, s51, s55")
    a(f"s_add_u32 s52, s51, 8192\ns_add_u32 s53, s51, 16384\ns_add_u32 s54, s51, 24576\nv_add_u32 v3, {QX}, v2\nv_mov_b32 v104, 0xff")
    a(f"s_lshr_b32 s7, s5, 2\ns_lshl_b32 s60, s7, 13\ns_add_u32 s60, s60, s55\ns_lshl_b32 s7, s3, 7\ns_add_u32 s60, s60, s7\ns_add_u32 s61, s60, {QX}\ns_add_u32 s62, s60, 4096\ns_mov_b32 s49, s60")
    a("v_lshrrev_b32 v106, 3, v1\nv_and_b32 v5, 7, v1\nv_and_b32 v13, 1, v106\nv_lshlrev_b32 v106, 8, v106\nv_lshl_add_u32 v106, v5, 4, v106")
    a(f"v_lshlrev_b32 v13, 9, v13\nv_lshrrev_b32 v5, 1, v5\nv_lshl_add_u32 v13, v5, 6, v13\nv_lshl_add_u32 v13, v11, 4, v13\nv_and_b32 v5, 1, v1\nv_lshl_add_u32 v13, v5, 3, v13\ns_lshl_b32 s7, s3, 8\ns_add_u32 s7, s7, {L_QL}\nv_add_u32 v13, s7, v13")
    a("v_lshlrev_b32 v105, 1, v12")
    a("s_waitcnt lgkmcnt(0)\ns_add_u32 s48, s48, 1\ns_lshl_b32 s63, s63, 4\ns_and_b32 s7, s48, 15\ns_or_b32 s63, s63, s7\nv_lshrrev_b32 v105, v105, s63")
    a("s_bfe_u32 s98, s63, 0x20000\ns_bfe_u32 s99, s63, 0x20002\ns_bfe_u32 s100, s63, 0x20004\ns_bfe_u32 s101, s63, 0x20006")
    a("s_waitcnt vmcnt(0)")
    stamp(2)
    a("s_barrier")
    stamp(3)
    if debug and not LITE: a("s_waitcnt lgkmcnt(0)")
    for ks in range(4):
        a(f"ds_read_b128 v[{16+4*ks}:{19+4*ks}], v4 offset:{ks*64}")
        trfrag(32+8*ks, 14, ks*4096, 512); trfrag(36+8*ks, 15, ks*4096, 512)
        if ks == 2: a("s_waitcnt lgkmcnt(10)"); mfma(96, 16, 32); mfma(100, 16, 36)
    for ks in range(1, 4):
        a(f"s_waitcnt lgkmcnt({5*(3-ks)})")
        mfma(96, 16+4*ks, 32+8*ks, 96); mfma(100, 16+4*ks, 36+8*ks, 100)
    for j in range(4): a(f"v_mov_b32_dpp v{96+j}, v{100+j} quad_perm:[0,1,2,3] row_mask:0xa bank_mask:0xf")
    for j in range(4): a(f"v_bfi_b32 v{96+j}, 3, v105, v{96+j}")
    for j in range(4): a(f"buffer_store_dword v{96+j}, v2, {sWS}, s{51+j} offen")
    if BQ: a("s_barrier")
    stamp(4)
    a("v_lshrrev_b32 v9, 3, v1\nv_and_b32 v12, 7, v1\nv_lshrrev_b32 v4, 1, v12")
    a(f"v_mul_u32_u24 v15, {RG}, v4\nv_lshl_add_u32 v15, v9, 4, v15\nv_lshl_add_u32 v15, v5, 3, v15\ns_lshl_b32 s7, s3, 7\ns_add_u32 s7, s7, {L_RD}\nv_add_u32 v15, s7, v15")
    a("v_lshlrev_b32 v5, 2, v12\nv_lshl_add_u32 v6, v9, 10, v5")
    a("s_or_b32 s96, s96, 15")
    VPF = opt.get("vpf", 0); VPP = opt.get("vpp", 0)
    def vpf():
        for k in range(VPF): a(f"buffer_load_dwordx4 v[116:119], v107, {sV}, s50 offen offset:{512 - 512*k}")
    if VPF:
        a("s_lshr_b32 s7, s58, 5\ns_lshl_b32 s50, s7, 25\ns_lshl_b32 s7, s4, 20\ns_add_u32 s50, s50, s7\ns_and_b32 s7, s58, 30\ns_lshl_b32 s7, s7, 12\ns_add_u32 s50, s50, s7")
        a(f"s_lshl_b32 s7, s3, 8\ns_add_u32 s50, s50, s7\ns_add_u32 s50, s50, {(3<<23) + (2<<16) + 786432 + 4096}\nv_lshlrev_b32 v107, 4, v10\nv_lshl_add_u32 v107, v11, 10, v107")
    if VPP == 0: vpf()
    a("s_barrier")
    if M1: a("s_barrier")
    if VPP == 1: vpf()
    stamp(8)
    def qld():
        for s in range(4): a(f"buffer_load_dwordx4 v[{16+4*s}:{19+4*s}], v106, {sWS}, {'s49' if s < 2 else 's62'} offen offset:{(s%2)*2048} sc1")
    qld()
    if PAIR: a("s_barrier")
    stamp(11)
    a("s_branch L_q_ld")
    a("L_q_poll:")
    spin(); a("s_and_b32 s7, s96, 7\ns_cselect_b32 s49, s60, s61\ns_cbranch_scc1 L_q_ld2")
    for j in range(4): a(f"buffer_store_dword v{96+j}, v3, {sWS}, s{51+j} offen sc1")
    a("L_q_ld2:")
    a("s_add_u32 s62, s49, 4096")
    qld()
    a("L_q_ld:")
    a("s_waitcnt vmcnt(0)")
    if debug:
        a("s_and_b32 s7, s96, 15\ns_cmp_lg_u32 s7, 15\ns_cbranch_scc1 L_dbg1"); stamp(10); a("L_dbg1:")
    for i in range(16): a(f"v_xor_b32 v{16+i}, s{98+(i&3)}, v{16+i}")
    a("v_or_b32 v32, v16, v17\nv_or_b32 v33, v18, v19")
    for i in range(4, 16, 4): a(f"v_or3_b32 v32, v32, v{16+i}, v{17+i}\nv_or3_b32 v33, v33, v{18+i}, v{19+i}")
    a("v_and_b32 v32, 3, v32\nv_and_b32 v33, 3, v33\nv_cmp_ne_u32 vcc, 0, v32\nv_cmp_ne_u32 s[0:1], 0, v33")
    for i in range(0, 16, 4): a(f"v_and_b32 v{18+i}, -4, v{18+i}\nv_and_b32 v{19+i}, -4, v{19+i}")
    a("s_cbranch_vccnz L_q_poll")
    pk("add", 16, 16, 20); pk("add", 18, 18, 22); pk("add", 24, 24, 28); pk("add", 26, 26, 30); pk("add", 16, 16, 24); pk("add", 18, 18, 26)
    a(f"s_or_b32 s97, s0, s1\nv_mov_b32 v20, s97\nv_mov_b32 v21, {L_MD}")
    a("v_cvt_pk_bf16_f32 v16, v16, v17\nv_cvt_pk_bf16_f32 v17, v18, v19")
    a("ds_write_b64 v13, v[16:17]\nds_write_b32 v21, v20")
    stamp(5)
    a("s_cmp_eq_u32 s97, 0\ns_cbranch_scc1 L_a_fast")
    for j in range(4): a(f"buffer_store_dword v{96+j}, v3, {sWS}, s{51+j} offen sc1")
    for i in range(4): a(f"v_mov_b32 v{100+i}, -1")
    a(f"s_cmp_ge_u32 s58, 43\ns_cbranch_scc1 L_a_s1\ns_add_u32 s7, s59, {BX}")
    a(f"buffer_store_dwordx4 v[100:103], v7, {sWS}, s7 offen sc1")
    a("L_a_s1:")
    a(f"s_add_u32 s49, s6, {O_SY}\ns_lshl_b32 s7, s58, 2\ns_add_u32 s7, s7, s49\nv_mov_b32 v20, s48\nv_lshlrev_b32 v21, 2, v1\ns_waitcnt vmcnt(0)")
    a(f"buffer_store_dword v20, off, {sWS}, s7 sc1")
    a("L_a_s2:")
    spin()
    a(f"buffer_load_dword v22, v21, {sWS}, s49 offen sc1\ns_waitcnt vmcnt(0)\nv_cmp_ne_u32 vcc, s48, v22\ns_cbranch_vccnz L_a_s2")
    a("L_a_fast:")
    a("s_waitcnt lgkmcnt(0)\ns_barrier")
    if TOUCH:
        a("s_cmp_ge_u32 s58, 43\ns_cbranch_scc1 L_a_nt")
        a(f"buffer_load_dwordx4 v[100:103], v7, {sWS}, s59 offen sc1")
        a("L_a_nt:")
    PFL = opt.get("pfl", "")
    if WALL:
        a("s_lshl_b32 s7, s4, 6\ns_add_u32 s7, s7, s58\ns_lshl_b32 s7, s7, 13")
        for i in range(8):
            a(f"buffer_load_dwordx4 v[108:111], v7, {sWO}, s7 offen offset:{(i&3)*1024} {PFL}")
            if i == 3: a("s_add_u32 s7, s7, 4096")
    if WSL:
        a("s_lshl_b32 s7, s4, 6\ns_add_u32 s7, s7, s58\ns_lshl_b32 s7, s7, 13\nv_lshlrev_b32 v107, 4, v12\nv_lshl_add_u32 v107, v9, 10, v107")
        a(f"buffer_load_dwordx4 v[108:111], v107, {sWO}, s7 offen offset:384 {PFL}")
    if GPF:
        a("s_mul_i32 s7, s4, 7\ns_lshr_b32 s7, s7, 1\ns_or_b32 s49, s7, 3\ns_bfe_u32 s7, s49, 0x10002\ns_lshl_b32 s49, s49, 7\ns_lshl_b32 s62, s5, 4\ns_add_u32 s7, s7, s62\ns_mul_i32 s7, s7, 3584\ns_add_u32 s7, s7, s49")
        a("v_mul_u32_u24 v107, 7168, v9\nv_lshl_add_u32 v107, v12, 4, v107\ns_cmp_eq_u32 s3, 0\ns_cbranch_scc1 L_a_pg")
        a(f"buffer_load_dwordx4 v[112:115], v107, {sU}, s7 offen {PFL}\ns_branch L_a_px")
        a("L_a_pg:")
        a(f"buffer_load_dwordx4 v[112:115], v107, {sG}, s7 offen {PFL}")
        a("L_a_px:")
    a("s_barrier")
    a("s_barrier")
    if WG_ == 1: flag_set(256)
    a("s_barrier")
    if WG_ == 2 or opt.get("ggate") == 1: flag_set(256)
    a("s_cmp_ge_u32 s5, 16\ns_cbranch_scc1 L_a_gd")
    a(f"s_lshl_b32 s53, s4, 15\n{KH8}\ns_lshl_b32 s7, s7, 11\ns_add_u32 s53, s53, s7\n{CW}\ns_lshl_b32 s7, s7, 8\ns_add_u32 s53, s53, s7\ns_lshl_b32 s7, s3, 7\ns_add_u32 s53, s53, s7\ns_add_u32 s53, s53, {WP}")
    a("v_lshlrev_b32 v6, 4, v12\nv_lshl_add_u32 v6, v9, 11, v6")
    a(f"v_and_b32 v4, 3, v1\nv_mul_u32_u24 v15, {RG}, v4\nv_lshl_add_u32 v15, v9, 4, v15\nv_bfe_u32 v4, v1, 2, 1\nv_mul_i32_i24 v4, {L_OP+32-L_RD}, v4\ns_lshl_b32 s7, s3, 7\ns_add_u32 s7, s7, {L_RD}\nv_add3_u32 v15, v15, v4, s7")
    a("s_barrier")
    stamp(6)
    if RG_ == 1: flag_set(0)
    for w in range(8): a(f"ds_read_b128 v[{24+4*w}:{27+4*w}], v15 offset:{w*RW}")
    for w in range(0, 8, 2):
        a(f"s_waitcnt lgkmcnt({6-w})" if (not debug or LITE) else "s_waitcnt lgkmcnt(0)")
        pk("add", 24+4*w, 24+4*w, 28+4*w); pk("add", 26+4*w, 26+4*w, 30+4*w)
        if w == 2: pk("add", 24, 24, 32); pk("add", 26, 26, 34)
    pk("add", 40, 40, 48); pk("add", 42, 42, 50); pk("add", 24, 24, 40); pk("add", 26, 26, 42)
    for q in range(4): a(f"v_bfi_b32 v{24+q}, v104, s48, v{24+q}")
    a(f"buffer_store_dwordx4 v[24:27], v6, {sWS}, s53 offen sc1")
    if RG_ == 2: flag_set(0)
    stamp(7)
    a("s_cmp_lg_u32 s3, 0\ns_cbranch_scc1 L_a_end")
    a("s_and_b32 s50, s5, 1\ns_lshr_b32 s61, s5, 1\ns_lshl_b32 s7, s4, 3\ns_add_u32 s7, s7, s61")
    a(f"s_lshl_b32 s52, s7, 7\ns_lshl_b32 s62, s7, 4\ns_lshl_b32 s7, s50, 13\ns_add_u32 s52, s52, s7\ns_add_u32 s52, s52, {PO}\ns_lshl_b32 s7, s50, 12\ns_add_u32 s62, s62, s7")
    a("v_lshlrev_b32 v5, 4, v12\nv_lshl_add_u32 v5, v9, 14, v5")
    a("v_and_b32 v2, 3, v1\nv_bfe_u32 v3, v1, 2, 1\nv_lshrrev_b32 v4, 5, v1\nv_lshlrev_b32 v4, 2, v4\nv_lshl_add_u32 v4, v3, 3, v4\nv_lshl_add_u32 v6, v2, 10, v4\nv_lshl_add_u32 v4, v2, 7, v4")
    a(f"s_lshl_b32 s61, s61, 4\ns_lshl_b32 s7, s50, 9\ns_add_u32 s61, s61, s7\ns_add_u32 s61, s61, s6\ns_add_u32 s61, s61, {O_H}\ns_xor_b32 s53, s61, {BX}\ns_cmp_eq_u32 s97, 0\ns_cselect_b32 s51, s61, s53")
    a("s_and_b32 s49, s48, 0xff\ns_cmp_ge_u32 s5, 8\ns_cbranch_scc1 L_h_poll\ns_barrier")
    a("L_h_poll:")
    spin()
    a(f"buffer_load_dword v22, v4, {sWS}, s51 offen sc1")
    a("s_waitcnt vmcnt(0)")
    a("v_cmp_eq_u32 vcc, -1, v22\ns_cbranch_vccnz L_h_poll")
    unpack(20, 21, 22)
    stamp(9); cnt(2)
    if FG_: flag_wait("L_fg", O_FLG+128+64, 14, 122)
    if debug and opt.get("fs"): a(f"s_sleep {opt['fs']}")
    gather("L_f_poll", 7, 24, 56, 0x20000, "s49", FD, opt.get("fpm", 0))
    a("s_cbranch_scc1 L_f_poll" if opt.get("fpm", 0) else "s_cbranch_vccnz L_f_poll")
    stamp(12); cnt(3)
    a("v_mov_b32 v98, v96\nv_mov_b32 v99, v97\nv_permlane16_swap_b32 v96, v98\nv_permlane16_swap_b32 v97, v99")
    pk("add", 96, 96, 98)
    a("v_add_f32_dpp v96, v96, v96 row_ror:8 row_mask:0xf bank_mask:0xf\nv_add_f32_dpp v97, v97, v97 row_ror:8 row_mask:0xf bank_mask:0xf")
    a("v_cvt_pk_bf16_f32 v98, v96, v97")
    unpack(22, 23, 98)
    pk("add", 22, 22, 20); a("v_cvt_pk_bf16_f32 v22, v22, v23")
    a("s_mov_b32 exec_lo, 0xff\ns_mov_b32 exec_hi, 0xff")
    a(f"buffer_store_dword v22, v6, {sOUT}, s62 offen")
    stamp(13)
    a("s_cmp_lg_u32 s62, 0\ns_cbranch_scc1 L_a_end")
    a("v_mov_b32 v22, s48\ns_mov_b64 exec, 1")
    a(f"buffer_store_dword v22, off, {sWS}, 0")
    a("s_branch L_a_end")
    a("L_a_gd:")
    a("s_cmp_ge_u32 s5, 30\ns_cbranch_scc1 L_a_end")
    a(f"v_lshrrev_b32 v4, 5, v1\nv_bfe_u32 v13, v1, 2, 1\nv_lshl_add_u32 v13, v4, 1, v13\nv_mul_u32_u24 v15, {RG}, v13\nv_and_b32 v13, 3, v9\nv_lshl_add_u32 v15, v13, 4, v15\nv_and_b32 v13, 3, v1\nv_lshl_add_u32 v15, v13, 2, v15")
    a(f"s_lshl_b32 s7, s3, 7\ns_add_u32 s7, s7, {L_RD}\nv_add_u32 v15, s7, v15")
    a(f"v_lshlrev_b32 v14, 1, v12\nv_lshl_add_u32 v14, v4, 4, v14\nv_and_b32 v13, 3, v9\nv_lshl_add_u32 v14, v13, 6, v14\ns_lshl_b32 s7, s3, 5\ns_add_u32 s7, s7, {L_PB}\nv_add_u32 v14, s7, v14\nv_add_u32 v4, 64, v15")
    a(f"s_mov_b32 s57, {hex(LOG2E ^ 0x80000000)}")
    for _ in range(bin(GUB).count("1")): a("s_barrier")
    a("s_barrier")
    stamp(6)
    if FG_ == 1: flag_set(128)
    for w in range(4): a(f"ds_read2st64_b32 v[{24+2*w}:{25+2*w}], v15 offset0:{10*w} offset1:{10*w+5}")
    for w in range(4): a(f"ds_read2st64_b32 v[{32+2*w}:{33+2*w}], v4 offset0:{10*w} offset1:{10*w+5}")
    a("s_waitcnt lgkmcnt(4)" if (not debug or LITE) else "s_waitcnt lgkmcnt(0)")
    pk("add", 24, 24, 26); pk("add", 28, 28, 30); pk("add", 24, 24, 28); a("v_add_f32 v24, v24, v25")
    a("v_cvt_pk_bf16_f32 v24, v24, v24\nv_and_b32 v26, s56, v24")
    a("v_mul_f32 v26, s57, v26\nv_exp_f32 v26, v26")
    a("s_waitcnt lgkmcnt(0)")
    pk("add", 32, 32, 34); pk("add", 36, 36, 38)
    a("v_add_f32 v26, 1.0, v26\nv_rcp_f32 v26, v26")
    pk("add", 32, 32, 36); a("v_add_f32 v25, v32, v33")
    a("v_cvt_pk_bf16_f32 v26, v26, v25")
    unpack(25, 26, 26)
    a("v_mul_f32 v26, v26, v25")
    a("v_cvt_pk_bf16_f32 v26, v26, v26\nds_write_b16 v14, v26\ns_waitcnt lgkmcnt(0)\ns_barrier")
    if FG_ == 2: flag_set(128)
    stamp(7)
    a("L_a_end:")
    if debug:
        a("s_mov_b64 exec, -1\ns_cmp_lg_u32 s3, 0\ns_cbranch_scc1 L_end")
        a(f"s_lshl_b32 s7, s2, 8\ns_add_u32 s7, s7, {hex(STAMP+128)}\ns_branch L_stamps")
    a("L_end:\ns_endpgm")
    lines = hz.fix(a.l)
    hdr = open("header.txt").read()
    return wrap("\n".join(lines) + "\n", 256, 640, L_END, 128, sgpr=102, header=hdr)

if __name__ == "__main__":
    specs = sys.argv[1:] or ["k8"]
    for sp in specs:
        nm, _, o = sp.partition(":")
        opt = {}
        for kv in filter(None, o.split(",")):
            k, v = kv.split("=")
            try: v = int(v)
            except ValueError: pass
            opt[k] = v
        open(nm + ".s", "w").write(gen(False, **opt))
        open(nm + "d.s", "w").write(gen(True, **opt))
```

```python
import sys
from asmlib import *
import hz

GB=0x40000; GSH=17
O_OB=0; O_XN=0x8000; O_H=0xA000; O_LSE=0xA400; O_FLG=0xA800; O_SY=0xB000; BX=0x10000
WP=0x140000; PO=0x300000; L_DN=65536
QB=0x200000; QX=0x80000
STAMP=128<<20
L_W=0
L_QL=114688
L_MX=L_QL+1024
L_LS=L_MX+128
L_OP=L_LS+128
L_RD=L_OP+16384
L_PB=L_RD+10240
L_MD=L_PB+1152
L_END=L_MD+64
RW=1280; RG=320
sX,sK,sV,sWQ,sWO,sG,sU,sOUT,sWS,sD = [f"s[{i}:{i+3}]" for i in range(8,48,4)]
LOG2E=0x3fb8aa3b; SCALE=0x3db504f3; EPS=0x3727c5ac

def gen(debug=False, **opt):
    NT = opt.get("nt", "nt")
    K0 = opt.get("k0", 3); K1 = opt.get("k1", 2); BQ = opt.get("bq", 1); GS = opt.get("gsleep", 0); B0 = opt.get("b0", 1); TOUCH = opt.get("touch", 1); SLOW = opt.get("slow", 0); DW = opt.get("dw", 0); PAIR = opt.get("pair", 1); DIAG = opt.get("diag", 0)
    W1 = opt.get("w1", 1); W2 = opt.get("w2", 1); CGX = opt.get("cgx", 4); WCX = opt.get("wcx", 4)
    G1 = opt.get("g1", 3)
    RD = opt.get("rd", 1); FD = opt.get("fd", 1); PRO = opt.get("pro", 0); AB0 = opt.get("ab0", 1); QSL = opt.get("qsl", 0); WSL = opt.get("wsl", 1); WALL = opt.get("wall", 0); GPF = opt.get("gpf", 1); WG_ = opt.get("wg", 0); RG_ = opt.get("rg", 1); FG_ = opt.get("fg", 2); G2 = opt.get("g2", 3); GSL = opt.get("gsl", 0); GSP = opt.get("gsp", 2); GUB = opt.get("gub", 0); GD = opt.get("gd", 2); XG = opt.get("xg", 0)
    NTW = opt.get("ntw", "nt")
    if NTW == "df": NTW = ""
    M1 = opt.get("m1", 2)
    PREOWN = opt.get("preown", 1)
    MASKP = opt.get("maskp", 1)
    DHINT = opt.get("dhint", 0)
    if WALL: WSL = 0; W1 = W2 = 3
    MAP = opt.get("map", 1)
    if MAP:
        QS = lambda r: f"s_lshr_b32 {r}, s5, 3\ns_and_b32 {r}, {r}, 2\ns_bitcmp1_b32 s5, 0\ns_addc_u32 {r}, {r}, 0"
        CG = CW = "s_bfe_u32 s7, s5, 0x30001\ns_xor_b32 s7, s7, 4"
        KH8 = "s_and_b32 s7, s5, 1\ns_lshl_b32 s7, s7, 3"
    else:
        QS = lambda r: f"s_and_b32 {r}, s5, 3"
        CG = f"s_lshr_b32 s7, s5, 2\ns_xor_b32 s7, s7, {CGX}"; CW = f"s_xor_b32 s7, s5, {WCX}\ns_and_b32 s7, s7, 7"; KH8 = "s_and_b32 s7, s5, 8"
    a = Asm()
    LITE = opt.get("lite", 1)
    def stamp(i):
        if debug and (not LITE or i in (0, 13)): a(f"s_memrealtime s[{64+2*i}:{65+2*i}]")
    def cnt(i):
        if debug and not LITE: a(f"s_waitcnt lgkmcnt(0)\ns_sub_u32 s7, 300000, s96\ns_mul_i32 s7, s7, 100\ns_add_u32 s{64+2*i}, s64, s7\ns_addc_u32 s{65+2*i}, s65, 0")
    def spin(): a("s_sub_u32 s96, s96, 1\ns_cbranch_scc1 L_end")
    def spin_ab(dst, sa, sb):
        spin(); a(f"s_and_b32 s7, s96, 15")
        for d, x, y in zip(dst, sa, sb): a(f"s_cselect_b32 {d}, {x}, {y}")
    def unpack(dlo, dhi, src): a(f"v_lshlrev_b32 v{dlo}, 16, v{src}\nv_and_b32 v{dhi}, s56, v{src}")
    def pk(op, d, x, y, mods=""): a(f"v_pk_{op}_f32 v[{d}:{d+1}], v[{x}:{x+1}], v[{y}:{y+1}] {mods}")
    def dma(voff, srd, soff, lds):
        a(f"s_mov_b32 m0, {lds}\nbuffer_load_dwordx4 v{voff}, {srd}, {soff} offen {NTW} lds")
    gu = [0]
    def dma2(voff, srd, soff, lds, stride):
        fl = "" if (opt.get("ntg", 5) >> (2 * (srd == sU) + (soff == "s52"))) & 1 else "nt"
        a(f"s_mov_b32 m0, {lds}\nbuffer_load_dwordx4 v{voff}, {srd}, {soff} offen {fl} lds")
        a(f"s_add_u32 m0, {lds}, 1024\ns_add_u32 s7, {soff}, {4*stride}")
        a(f"buffer_load_dwordx4 v{voff}, {srd}, s7 offen {fl} lds")
    def trfrag(dst, vaddr, off, d2=1024):
        a(f"ds_read_b64_tr_b16 v[{dst}:{dst+1}], v{vaddr} offset:{off}")
        a(f"ds_read_b64_tr_b16 v[{dst+2}:{dst+3}], v{vaddr} offset:{off+d2}")
    def mfma(d, A, B, C=None):
        c = "0" if C is None else f"v[{C}:{C+3}]"
        a(f"v_mfma_f32_16x16x32_bf16 v[{d}:{d+3}], v[{A}:{A+3}], v[{B}:{B+3}], {c}")
    def check_sent(regs, t):
        r = list(regs)
        a(f"v_max3_u32 v{t}, v{r[0]}, v{r[1]}, v{r[2]}"); r = r[3:]
        while len(r) >= 2:
            a(f"v_max3_u32 v{t}, v{t}, v{r[0]}, v{r[1]}"); r = r[2:]
        if r: a(f"v_max_u32 v{t}, v{t}, v{r[0]}")
        a(f"v_cmp_eq_u32 vcc, -1, v{t}")
    def stats(s1, s2, t, vc=None):
        if vc is None: a(f"v_mul_f32 v{t+1}, 0x3b000000, {s1}\nv_mul_f32 v{t+2}, 0x3b000000, {s2}")
        else: a(f"v_mul_f32 v{t+1}, {s1}, v{vc}\nv_mul_f32 v{t+2}, {s2}, v{vc}")
        a(f"v_fma_f32 v{t+2}, -v{t+1}, v{t+1}, v{t+2}\nv_max_f32 v{t+2}, 0, v{t+2}")
        a(f"v_cvt_pk_bf16_f32 v{t+1}, v{t+1}, v{t+2}")
        a(f"v_and_b32 v{t+2}, s56, v{t+1}\nv_lshlrev_b32 v{t+1}, 16, v{t+1}")
        a(f"v_add_f32 v{t+2}, {hex(EPS)}, v{t+2}\nv_cvt_pk_bf16_f32 v{t+2}, v{t+2}, v{t+2}\nv_and_b32 v{t+2}, s56, v{t+2}")
        a(f"v_sqrt_f32 v{t+2}, v{t+2}")
    def stats2(t): a(f"v_cvt_pk_bf16_f32 v{t+2}, v{t+2}, v{t+2}\nv_and_b32 v{t+2}, s56, v{t+2}\nv_rcp_f32 v{t+2}, v{t+2}")
    def wred2(x, y):
        for m in ["quad_perm:[1,0,3,2] row_mask:0xf", "quad_perm:[2,3,0,1] row_mask:0xf", "row_half_mirror row_mask:0xf", "row_mirror row_mask:0xf",
                  "row_bcast:15 row_mask:0xa", "row_bcast:31 row_mask:0xc"]:
            a(f"v_add_f32_dpp v{x}, v{x}, v{x} {m} bank_mask:0xf\nv_add_f32_dpp v{y}, v{y}, v{y} {m} bank_mask:0xf")
    def red8(addr, n=8):
        for w in range(n): a(f"ds_read_b64 v[{24+2*w}:{25+2*w}], v{addr} offset:{w*RW}")
        a("s_waitcnt lgkmcnt(0)")
        pk("add", 24, 24, 26); pk("add", 28, 28, 30); pk("add", 32, 32, 34)
        if n == 8: pk("add", 36, 36, 38)
        pk("add", 24, 24, 28); pk("add", 32, 32, 36); pk("add", 24, 24, 32)
    def gather(lab, n, raw, cp, stride, tag, depth, pm):
        def rnd(m):
            a("s_mov_b32 s51, s52")
            for r in range(n):
                if m and pm: a(f"s_wqm_b64 exec, s[{8+2*r}:{9+2*r}]")
                a(f"buffer_load_dwordx4 v[{raw+4*r}:{raw+3+4*r}], v5, {sWS}, s51 offen sc1")
                if r < n-1: a(f"s_add_u32 s51, s51, {stride}")
        for _ in range(depth): rnd(0)
        a(f"s_branch {lab}_c")
        a(f"{lab}:")
        for _ in range(opt.get("bk" + lab[2], 0)): a(f"buffer_load_dword v123, off, {sWS}, s6 sc1\ns_waitcnt vmcnt(0)")
        if not pm and not opt.get("nm" + lab[2], 0): a("s_wqm_b64 exec, vcc")
        spin()
        rnd(1)
        a("s_mov_b64 exec, -1")
        a(f"{lab}_c:")
        for r in range(n):
            c = cp+4*r
            a(f"s_waitcnt vmcnt({n*depth-1-r})")
            for q in range(4): a(f"v_xor_b32 v{c+q}, {tag}, v{raw+4*r+q}")
            if pm:
                a(f"v_or3_b32 v102, v{c}, v{c+1}, v{c+2}\nv_or_b32 v102, v102, v{c+3}\nv_and_b32 v102, 0xff, v102\nv_cmp_ne_u32 s[{8+2*r}:{9+2*r}], 0, v102")
            elif r == 0: a(f"v_or3_b32 v102, v{c}, v{c+1}, v{c+2}\nv_or_b32 v102, v102, v{c+3}")
            else: a(f"v_or3_b32 v102, v102, v{c}, v{c+1}\nv_or3_b32 v102, v102, v{c+2}, v{c+3}")
            if r: pk("add", 96, cp if r == 1 else 96, c); pk("add", 98, cp+2 if r == 1 else 98, c+2)
            if pm and r >= 2: a(f"s_or_b64 vcc, {'s[8:9]' if r == 2 else 'vcc'}, s[{6+2*r}:{7+2*r}]")
        a("v_permlane32_swap_b32 v96, v98\nv_permlane32_swap_b32 v97, v99")
        if pm: a(f"s_or_b64 vcc, vcc, s[{6+2*n}:{7+2*n}]")
        else: a("v_and_b32 v102, 0xff, v102\nv_cmp_ne_u32 vcc, 0, v102")
        pk("add", 96, 96, 98)
    def flag_set(off):
        a(f"s_lshl_b32 s7, s5, 2\ns_add_u32 s7, s7, s6\ns_add_u32 s7, s7, {O_FLG}\ns_cmp_eq_u32 s3, 0\ns_cselect_b64 exec, 1, 0")
        a(f"buffer_store_dword v1, off, {sWS}, s7 offset:{off}\ns_mov_b64 exec, -1")
    def flag_wait(lab, off, n, vt):
        a(f"s_cmp_lg_u32 s97, 0\ns_cbranch_scc1 {lab}_x\ns_add_u32 s51, s6, {off}\nv_min_u32 v{vt}, {n-1}, v1\nv_lshlrev_b32 v{vt}, 2, v{vt}")
        a(f"{lab}:")
        spin()
        a(f"buffer_load_dword v{vt+1}, v{vt}, {sWS}, s51 offen sc1\ns_waitcnt vmcnt(0)\nv_cmp_eq_u32 vcc, -1, v{vt+1}\ns_cbranch_vccnz {lab}")
        a(f"{lab}_x:")
    def rot(frm, to):
        k = 4 * ((to - frm) & 3)
        return f"row_ror:{k}" if k else "quad_perm:[0,1,2,3]"

    P2 = opt.get("p2", 1)
    if P2:
        a("L_top:")
        stamp(0)
        a("s_load_dwordx8 s[68:75], s[0:1], 0\ns_load_dwordx16 s[76:91], s[0:1], 32")
        a("s_getpc_b64 s[60:61]")
        a("L_pc:")
        a("v_lshrrev_b32 v9, 6, v0\ns_lshr_b32 s5, s2, 3\nv_lshl_add_u32 v2, v9, 5, s5\nv_min_u32 v2, (L_end-L_pc)>>7, v2\nv_lshlrev_b32 v2, 7, v2")
        a("global_load_dword v127, v2, s[60:61]")
        a("s_cmp_ge_u32 s5, 32\ns_cbranch_scc1 L_end")
        a("v_readfirstlane_b32 s3, v9\nv_and_b32 v1, 63, v0\ns_and_b32 s4, s2, 7")
    else:
        a("s_cmp_ge_u32 s2, 256\ns_cbranch_scc1 L_end")
        stamp(0)
        for d, o in [(8,0),(20,24),(12,8),(40,88),(16,16),(24,32),(28,48),(32,56),(44,64),(36,72)]:
            a(f"s_load_dwordx2 s[{d}:{d+1}], s[0:1], {o}")
        a("v_lshrrev_b32 v9, 6, v0\nv_and_b32 v1, 63, v0")
        a("s_getpc_b64 s[60:61]")
        a("L_pc:")
        a("v_readfirstlane_b32 s3, v9")
        a("s_and_b32 s4, s2, 7\ns_lshr_b32 s5, s2, 3")
        a(f"s_lshl_b32 s7, s3, 5\ns_add_u32 s7, s7, s5\ns_lshl_b32 s7, s7, 7\ns_min_u32 s7, s7, L_end-L_pc\nv_mov_b32 v2, s7")
        a("global_load_dword v127, v2, s[60:61]")
    P3 = opt.get("p3", 1)
    SRDS = {8: 8192, 40: 256<<20, 20: 4<<20, 12: 64<<20, 16: 64<<20, 24: 4<<20, 28: 512*3584, 32: 512*3584, 36: 8192, 44: 1792*1024}
    def srd(l):
        for d in l: a(f"s_mov_b32 s{d+2}, {hex(SRDS[d])}\ns_mov_b32 s{d+3}, 0x20000")
    def com1(): a("v_lshrrev_b32 v11, 4, v1\nv_and_b32 v12, 3, v1\nv_bfe_u32 v9, v1, 2, 2")
    def com2():
        a(f"s_lshl_b32 s6, s4, {GSH}\ns_add_u32 s6, s6, {GB}")
        a("s_mov_b32 s56, 0xffff0000\ns_mov_b32 s96, 300000\nv_lshlrev_b32 v8, 3, v1\nv_and_b32 v10, 15, v1\nv_and_b32 v13, 1, v11")
    a("v_lshlrev_b32 v7, 4, v1")
    if not P3: srd(SRDS); com1(); com2()
    if AB0: a("s_cmp_lt_u32 s3, 2\ns_cbranch_scc0 L_kv\ns_barrier\ns_branch L_aux\nL_kv:")
    else: a("s_cmp_lt_u32 s3, 2\ns_cbranch_scc1 L_aux")
    a("s_sub_u32 s3, s3, 2")
    a("v_lshrrev_b32 v4, 3, v1\nv_and_b32 v5, 7, v1\nv_and_b32 v6, 2, v4\nv_xor_b32 v5, v5, v6\nv_lshlrev_b32 v5, 4, v5\nv_lshl_add_u32 v4, v4, 13, v5\nv_xor_b32 v5, 64, v4")
    def kaddr():
        a("v_lshlrev_b32 v2, 4, v12\nv_lshl_add_u32 v2, v11, 6, v2\nv_lshl_add_u32 v2, v9, 10, v2")
        a("s_lshr_b32 s7, s5, 2\ns_lshl_b32 s48, s7, 23\ns_lshl_b32 s7, s4, 20\ns_add_u32 s48, s48, s7")
        a("s_and_b32 s7, s5, 3\ns_lshl_b32 s7, s7, 16\ns_add_u32 s48, s48, s7\ns_lshl_b32 s7, s3, 13\ns_add_u32 s48, s48, s7\ns_add_u32 s48, s48, 786432")
        a("s_add_u32 s49, s48, 4096")
    if P3: srd([8, 20])
    else: kaddr()
    a(f"{QS('s7')}\ns_lshl_b32 s7, s7, 3\ns_add_u32 s7, s7, s3\ns_lshl_b32 s51, s7, 17\ns_lshl_b32 s7, s4, 10\ns_add_u32 s51, s51, s7\n{CG}\ns_lshl_b32 s7, s7, 7\ns_add_u32 s51, s51, s7\ns_add_u32 s52, s51, 65536")
    a("s_lshl_b32 s54, s3, 11\ns_lshl_b32 s55, s3, 10\ns_mov_b32 m0, s54")
    if QSL: a("s_bfe_u32 s61, s51, 0x30007\ns_cmp_eq_u32 s61, 3")
    def kload(t):
        i = 2*t if t < 4 else 2*(t-4)+1
        a(f"buffer_load_dwordx4 v[{16+4*t}:{19+4*t}], v2, {sK}, s{48+i//4} offen offset:{(i%4)*256} {NT}")
    def vload(i): a(f"buffer_load_dwordx4 v[{48+4*i}:{51+4*i}], v3, {sV}, s{48+i//4} offen offset:{(i%4)*256} {NT}")
    if PRO: stamp(14)
    a("s_waitcnt lgkmcnt(0)")
    if P2: a("s_mov_b64 s[8:9], s[68:69]\ns_mov_b64 s[20:21], s[74:75]")
    if PRO: stamp(15)
    a(f"buffer_load_dwordx4 v[96:99], v7, {sX}, s55 offen")
    if QSL: a("s_cbranch_scc1 L_q_late")
    a(f"buffer_load_dwordx4 v4, {sWQ}, s51 offen {NT} lds\ns_add_u32 m0, s54, 1024")
    a(f"buffer_load_dwordx4 v5, {sWQ}, s52 offen {NT} lds")
    a("L_q_late:")
    if P3: srd([12]); com1(); kaddr()
    if P2: a("s_mov_b64 s[12:13], s[70:71]\ns_mov_b64 s[40:41], s[90:91]")
    if B0: a("s_barrier")
    for t in range(K0): kload(t)
    a("s_load_dword s100, s[40:41], 0")
    if P2: a("s_mov_b64 s[16:17], s[72:73]\ns_mov_b64 s[24:25], s[76:77]\ns_mov_b64 s[28:29], s[80:81]\ns_mov_b64 s[32:33], s[82:83]\ns_mov_b64 s[44:45], s[84:85]\ns_mov_b64 s[36:37], s[86:87]")
    if P3: srd([40, 16, 24, 28, 32, 44]); com2()
    stamp(1)
    a("v_lshrrev_b32 v14, 2, v1\nv_lshlrev_b32 v14, 6, v14\nv_lshl_add_u32 v14, v12, 3, v14\nv_lshl_add_u32 v14, v13, 5, v14")
    a("v_lshl_add_u32 v9, v11, 3, v9")
    a("v_lshlrev_b32 v13, 1, v13\nv_xor_b32 v12, v12, v13\nv_lshlrev_b32 v12, 4, v12")
    a("v_lshl_add_u32 v5, v9, 10, v12")
    a("v_mul_u32_u24 v6, 3584, v9\nv_add_u32 v6, v6, v12")
    a("v_lshlrev_b32 v3, 4, v10\nv_lshl_add_u32 v3, v11, 10, v3")
    a("s_and_b32 s50, s5, 1")
    a("s_lshl_b32 s53, s3, 1\ns_add_u32 s53, s53, s50")
    a("s_lshl_b32 s54, s53, 11\ns_xor_b32 s55, s54, 2048")
    a(f"s_mul_i32 s7, s3, 1040\ns_add_u32 s7, s7, {L_OP}\nv_add_u32 v13, s7, v7")
    a("s_mov_b32 s57, 0x3f803f80\nv_mov_b32 v100, 0\nv_mov_b32 v101, 0\nv_mov_b32 v102, 0x3b000000")
    a(f"s_waitcnt vmcnt({K0+2})")
    if QSL:
        a(f"s_cmp_eq_u32 s61, 3\ns_cbranch_scc0 L_q_l2\nv_xor_b32 v103, 64, v4\ns_waitcnt vmcnt({K0})")
        a(f"buffer_load_dwordx4 v4, {sWQ}, s51 offen {NT} lds\ns_add_u32 m0, m0, 1024")
        a(f"buffer_load_dwordx4 v103, {sWQ}, s52 offen {NT} lds")
        a("L_q_l2:")
    stamp(2)
    for i in range(4): a(f"v_dot2c_f32_bf16 v100, s57, v{96+i}\nv_dot2c_f32_bf16 v101, v{96+i}, v{96+i}")
    for i in range(4): unpack(112+2*i, 113+2*i, 96+i)
    wred2(100, 101)
    a("v_readlane_b32 s58, v100, 63\nv_readlane_b32 s59, v101, 63")
    stats("s58", "s59", 109, 102)
    for j in range(4): a(f"v_pk_add_f32 v[{112+2*j}:{113+2*j}], v[{112+2*j}:{113+2*j}], v[110:111] op_sel_hi:[1,0] neg_lo:[0,1] neg_hi:[0,1]")
    stats2(109)
    for j in range(4): a(f"v_cvt_pk_bf16_f32 v{96+j}, v{112+2*j}, v{113+2*j}")
    for j in range(4): unpack(112+2*j, 113+2*j, 96+j)
    for j in range(4): a(f"v_pk_mul_f32 v[{112+2*j}:{113+2*j}], v[{112+2*j}:{113+2*j}], v[110:111] op_sel:[0,1] op_sel_hi:[1,1]")
    for j in range(4): a(f"v_cvt_pk_bf16_f32 v{96+j}, v{112+2*j}, v{113+2*j}")
    a("ds_write_b128 v13, v[96:99]")
    for t in range(K0, K0+K1): kload(t)
    for i in range(16): a(f"v_mov_b32 v{80+i}, 0")
    a(f"v_add_u32 v13, {L_QL}, v7")
    a(f"v_and_b32 v12, 3, v10\nv_lshlrev_b32 v12, 5, v12\nv_add_u32 v12, {L_MX}, v12")
    a(f"s_lshl_b32 s7, s3, 2\nv_add_u32 v9, s7, v12")
    a(f"s_mov_b32 s57, {hex(SCALE)}\ns_mov_b32 s58, {hex(LOG2E)}\ns_mov_b32 s59, 0x05040100\ns_mov_b32 s60, 0x07060302")
    a(f"s_mul_i32 s7, s3, {RW}\ns_add_u32 s7, s7, {L_RD}\nv_mul_u32_u24 v15, {RG}, v11\nv_lshl_add_u32 v15, v10, 4, v15\nv_add_u32 v15, s7, v15")
    a("s_lshr_b32 s7, s5, 2\ns_and_b32 s61, s5, 2\ns_lshl_b32 s61, s61, 2\ns_add_u32 s61, s61, s7")
    a("s_lshl_b32 s98, s3, 13\ns_lshl_b32 s7, s50, 11\ns_add_u32 s98, s98, s7\ns_lshl_b32 s7, s61, 4\ns_add_u32 s98, s98, s7\ns_add_u32 s98, s98, s6")
    a(f"s_lshl_b32 s99, s3, 4\ns_add_u32 s99, s99, s61\ns_lshl_b32 s99, s99, 1\ns_add_u32 s99, s99, s50\ns_lshl_b32 s99, s99, 2\ns_add_u32 s99, s99, s6\ns_add_u32 s99, s99, {O_LSE}")
    if QSL: a(f"s_bfe_u32 s7, s51, 0x30007\ns_cmp_eq_u32 s7, 3\ns_cbranch_scc0 L_q_l3\ns_waitcnt vmcnt({K1})\nL_q_l3:")
    a(f"s_waitcnt vmcnt({K0+K1}) lgkmcnt(0)\ns_barrier")
    if BQ: a("s_barrier")
    stamp(3)
    for t in range(K0+K1, 8): kload(t)
    a("s_barrier")
    for i in range(M1): vload(i)
    if M1: a("s_barrier")
    if PAIR: a("s_barrier")
    for i in range(M1, 8): vload(i)
    a("s_cmp_ge_u32 s5, 30\ns_cbranch_scc1 L_D\ns_cmp_ge_u32 s5, 16\ns_cbranch_scc1 L_G")

    def attn(role, hook):
        n = hook(0)
        stamp(4)
        if debug and role != "W" and not PRO and not LITE: a(f"s_waitcnt vmcnt({8+n})"); stamp(14); a(f"s_waitcnt vmcnt({n if DIAG else 8+n-M1})"); stamp(15)
        a("s_barrier")
        stamp(5)
        a(f"ds_read_b128 v[104:107], v13\nv_mov_b32 v110, {L_MD}\nds_read_b32 v108, v110")
        a(f"s_waitcnt vmcnt({8 + n}) lgkmcnt(0)")
        D = [96] + [16+4*(t-1) for t in range(1, 8)]
        for t in range(8): mfma(D[t], 16+4*t, 104)
        def op(k, t):
            tt = t & 3; j = (tt + k) & 3
            if k < 3: a(f"v_add_f32_dpp v{D[t]+tt}, v{D[t]+j}, v{D[t]+tt} {rot(j, tt)} row_mask:0xf bank_mask:0xf")
            else: a(f"v_add_f32_dpp v{100+(t>>2)}, v{D[t]+j}, v{D[t]+tt} {rot(j, tt)} row_mask:0xf bank_mask:{hex(1<<tt)}")
        for t in range(8): op(1, t)
        a("v_readfirstlane_b32 s97, v108")
        od = [0, 4, 1, 5, 2, 6, 3, 7]
        for i in range(11):
            if i < 8: op(2, od[i])
            if i >= 3: op(3, od[i-3])
        a("v_cvt_pk_bf16_f32 v102, v100, v101"); unpack(100, 101, 102)
        a("v_mul_f32 v100, s57, v100\nv_mul_f32 v101, s57, v101")
        a("v_cvt_pk_bf16_f32 v102, v100, v101"); unpack(100, 101, 102)
        def allred(opn):
            a(f"v_{opn}_f32 v102, v100, v101")
            a(f"v_{opn}_f32_dpp v102, v102, v102 row_ror:4 row_mask:0xf bank_mask:0xf\nv_{opn}_f32_dpp v102, v102, v102 row_ror:8 row_mask:0xf bank_mask:0xf")
            a(f"v_mov_b32 v103, v102\nv_permlane16_swap_b32 v102, v103\nv_{opn}_f32 v102, v102, v103")
            a(f"v_mov_b32 v103, v102\nv_permlane32_swap_b32 v102, v103\nv_{opn}_f32 v102, v102, v103")
        allred("max")
        a("ds_write_b32 v9, v102")
        a("s_waitcnt lgkmcnt(0)\ns_barrier")
        a("ds_read_b128 v[104:107], v12\nds_read_b128 v[108:111], v12 offset:16")
        a("s_waitcnt lgkmcnt(0)")
        a("v_max3_f32 v102, v104, v105, v106\nv_max3_f32 v103, v107, v108, v109\nv_max3_f32 v102, v102, v110, v111\nv_max_f32 v104, v102, v103")
        a("v_sub_f32 v100, v100, v104\nv_sub_f32 v101, v101, v104\nv_mul_f32 v100, s58, v100\nv_mul_f32 v101, s58, v101\nv_exp_f32 v100, v100\nv_exp_f32 v101, v101")
        a("v_readlane_b32 s101, v104, s3")
        a("v_cvt_pk_bf16_f32 v105, v100, v101")
        allred("add")
        a(f"ds_write_b32 v9, v102 offset:{L_LS-L_MX}")
        for x in range(4):
            for c in range(4): a(f"v_mov_b32_dpp v{80+4*x+c}, v105 {rot(c, x)} row_mask:0xf bank_mask:{hex(1<<x)}")
        stamp(6)
        n += hook(1)
        a(f"s_lshl_b32 s7, s3, 11\ns_add_u32 s7, s7, {L_OP}\nv_add_u32 v12, s7, v8\nv_add_u32 v13, 1024, v12")
        a(f"s_lshl_b32 s7, s3, 9\ns_add_u32 s7, s7, {L_OP}\nv_and_b32 v106, 3, v1\nv_lshrrev_b32 v107, 2, v1\nv_lshlrev_b32 v104, 3, v107\nv_lshl_add_u32 v104, v106, 7, v104\nv_add_u32 v104, s7, v104")
        a(f"s_lshl_b32 s7, s3, 5\ns_add_u32 s7, s7, {L_LS}\nv_mov_b32 v105, s7")
        a("v_and_b32 v9, 7, v107\nv_lshlrev_b32 v9, 8, v9\nv_lshl_add_u32 v9, v106, 2, v9\nv_lshrrev_b32 v107, 5, v1\nv_lshl_add_u32 v9, v107, 12, v9")
        for c in range(4):
            a(f"s_waitcnt vmcnt({n + 6 - 2*c})")
            for x in range(4):
                a(f"v_perm_b32 v{16+8*x+c}, v{48+4*(2*c+1)+x}, v{48+4*(2*c)+x}, s59")
                a(f"v_perm_b32 v{20+8*x+c}, v{48+4*(2*c+1)+x}, v{48+4*(2*c)+x}, s60")
        stamp(7)
        for x in range(4):
            mfma(96, 80+4*x, 16+8*x, None if x == 0 else 96)
            mfma(100, 80+4*x, 20+8*x, None if x == 0 else 100)
        hook(2)
        a("ds_write2_b32 v12, v96, v100 offset0:0 offset1:1\nds_write2_b32 v12, v97, v101 offset0:128 offset1:129")
        a("ds_write2_b32 v13, v98, v102 offset0:0 offset1:1\nds_write2_b32 v13, v99, v103 offset0:128 offset1:129")
        a("s_waitcnt lgkmcnt(0)\ns_barrier")
        stamp(8)
        a(f"s_cmp_ge_u32 s3, 4\ns_cbranch_scc1 L_pub_done{role}")
        a("ds_read_b128 v[96:99], v105\nds_read_b128 v[100:103], v105 offset:16")
        for w in range(8): a(f"ds_read_b64 v[{16+2*w}:{17+2*w}], v104 offset:{w*2048}")
        a("s_waitcnt lgkmcnt(8)" if (not debug or LITE) else "s_waitcnt lgkmcnt(0)")
        pk("add", 96, 96, 98); pk("add", 100, 100, 102); pk("add", 96, 96, 100); a("v_add_f32 v96, v96, v97")
        a("v_rcp_f32 v97, v96\nv_log_f32 v98, v96")
        a("s_waitcnt lgkmcnt(0)")
        pk("add", 16, 16, 18); pk("add", 20, 20, 22); pk("add", 24, 24, 26); pk("add", 28, 28, 30)
        pk("add", 16, 16, 20); pk("add", 24, 24, 28); pk("add", 16, 16, 24)
        a("v_mul_f32 v16, v16, v97\nv_mul_f32 v17, v17, v97\nv_cvt_pk_bf16_f32 v16, v16, v17")
        a("v_mov_b32 v99, s101\nv_fmac_f32 v98, s58, v99")
        a("v_min_u32 v16, -2, v16\nv_min_u32 v98, -2, v98")
        a(f"buffer_store_dword v16, v9, {sWS}, s98 offen")
        a("s_mov_b64 exec, 1")
        a(f"buffer_store_dword v98, off, {sWS}, s99")
        a(f"s_mov_b64 exec, -1\ns_cmp_eq_u32 s97, 0\ns_cbranch_scc1 L_pub_done{role}")
        a(f"s_lshl_b32 s7, s5, 10\ns_add_u32 s7, s7, s6\ns_lshl_b32 s49, s3, 8\ns_add_u32 s7, s7, s49\ns_add_u32 s7, s7, {BX}\ns_add_u32 s49, s99, {BX}\nv_lshlrev_b32 v4, 2, v1")
        a(f"buffer_store_dword v98, off, {sWS}, s49 sc1\nbuffer_store_dword v16, v4, {sWS}, s7 offen sc1")
        a(f"L_pub_done{role}:")
        a("s_barrier")
        stamp(9)
        if debug and GS and role == "G": a(f"s_cmp_ge_u32 s4, 4\ns_cbranch_scc1 L_gs\ns_sleep {GS}\nL_gs:")
        if opt.get("ggate") and role == "G":
            a("s_cmp_ge_u32 s4, 4\ns_cbranch_scc1 L_gg_x\ns_mov_b32 s49, s51")
            flag_wait("L_gg", O_FLG + (256 if opt["ggate"] == 1 else 0), 32 if opt["ggate"] == 1 else 16, 122)
            a("s_cmp_ge_u32 s4, 4\ns_cselect_b32 s51, s51, s49")
        hook(3)

    def hookW(p):
        n = 0
        if p == 0:
            a(f"s_lshl_b32 s51, s4, 19\n{KH8}\ns_add_u32 s7, s7, s3\ns_lshl_b32 s7, s7, 15\ns_add_u32 s51, s51, s7\n{CW}\ns_lshl_b32 s7, s7, 7\ns_add_u32 s51, s51, s7\ns_add_u32 s52, s51, 16384")
            a("s_lshl_b32 s54, s3, 12\ns_add_u32 s55, s54, 2048")
            a("s_and_b32 s7, s5, 7\ns_lshl_b32 s62, s7, 10\ns_and_b32 s7, s3, 3\ns_lshl_b32 s7, s7, 8\ns_add_u32 s62, s62, s7")
            a("v_and_b32 v6, 31, v1\nv_lshlrev_b32 v6, 3, v6\nv_lshrrev_b32 v113, 5, v1\nv_lshl_add_u32 v6, v113, 2, v6")
            a("v_lshrrev_b32 v113, 3, v1\nv_and_b32 v114, 7, v1\nv_and_b32 v115, 2, v113\nv_xor_b32 v114, v114, v115\nv_lshlrev_b32 v114, 4, v114\nv_lshl_add_u32 v113, v113, 10, v114\nv_xor_b32 v114, 64, v113")
        if p == 1: a(f"buffer_load_dword v112, v6, {sX}, s62 offen"); n += 1
        if p == 0: a("s_bfe_u32 s7, s51, 0x30007\ns_cmp_eq_u32 s7, 3\ns_cselect_b64 s[0:1], -1, 0")
        for pos, so, ld in ((W1, "s51", "s54"), (W2, "s52", "s55")):
            if WSL and pos != 3 and p in (pos, 3): a("s_mov_b64 exec, s[0:1]" if p == 3 else "s_not_b64 exec, s[0:1]")
            if p == pos or (WSL and p == 3):
                dma(113, sWO, so, ld)
                a(f"s_add_u32 m0, {ld}, 1024\ns_add_u32 s7, {so}, 8192\nbuffer_load_dwordx4 v114, {sWO}, s7 offen {NTW} lds"); n += 2
                if WSL: a("s_mov_b64 exec, -1")
        if p == 1:
            a("v_bfe_u32 v116, v1, 2, 2\nv_and_b32 v117, 3, v1\nv_lshlrev_b32 v14, 10, v11\nv_lshl_add_u32 v14, v116, 7, v14\nv_lshl_add_u32 v14, v117, 3, v14\nv_lshrrev_b32 v116, 1, v116\nv_lshl_add_u32 v14, v116, 5, v14\nv_and_b32 v116, 1, v11\nv_lshl_add_u32 v14, v116, 6, v14")
            a("v_add_u32 v14, s54, v14\nv_xor_b32 v3, 32, v14\nv_xor_b32 v116, 64, v14\nv_xor_b32 v117, 64, v3")
            a(f"{KH8}\ns_add_u32 s7, s7, s3\ns_lshr_b32 s63, s7, 2\ns_lshl_b32 s63, s63, 7\ns_add_u32 s63, s63, s6\ns_add_u32 s63, s63, {O_LSE}")
            a("s_lshl_b32 s61, s7, 6\ns_lshr_b32 s7, s7, 1\ns_lshl_b32 s48, s7, 12\ns_add_u32 s48, s48, s6\ns_and_b32 s7, s3, 1\ns_lshl_b32 s7, s7, 10\ns_add_u32 s48, s48, s7")
            a(f"v_lshlrev_b32 v2, 3, v10\nv_add_u32 v115, {L_OP+32-L_RD}, v15")
        return n
    attn("W", hookW)
    def w_loads():
        a(f"buffer_load_dwordx2 v[32:33], v2, {sWS}, s63 offen sc1")
        for u in range(2): a(f"buffer_load_dwordx4 v[{16+4*u}:{19+4*u}], v7, {sWS}, s48 offen offset:{u*2048} sc1")
    if WG_:
        a("s_waitcnt vmcnt(0)")
        trfrag(48, 14, 0, 512); trfrag(52, 3, 0, 512); trfrag(56, 116, 0, 512); trfrag(60, 117, 0, 512)
        flag_wait("L_wg", O_FLG+256, 32, 122)
    w_loads()
    a("v_and_b32 v9, 7, v10\nv_lshrrev_b32 v13, 3, v10\nv_lshl_add_u32 v13, v9, 1, v13")
    a("v_lshlrev_b32 v12, 11, v13\nv_lshl_add_u32 v12, v11, 4, v12")
    a(f"s_add_u32 s49, s6, s61\ns_add_u32 s49, s49, {BX}\ns_add_u32 s55, s63, {BX}")
    a("s_waitcnt vmcnt(3)")
    stamp(10)
    if not WG_: trfrag(48, 14, 0, 512); trfrag(52, 3, 0, 512); trfrag(56, 116, 0, 512); trfrag(60, 117, 0, 512)
    WD = opt.get("wd", 1)
    if WD > 1 or opt.get("wnew", 1):
        a("s_cmp_eq_u32 s97, 0\ns_cselect_b32 s49, s48, s49\ns_cselect_b32 s7, 2, 1\ns_cselect_b32 s63, s63, s55\ns_cselect_b64 vcc, -1, 0\nv_cndmask_b32 v12, v12, v7, vcc\ns_lshl_b32 s7, s7, 10\ns_add_u32 s48, s49, s7")
        def w_round():
            a(f"buffer_load_dwordx2 v[32:33], v2, {sWS}, s63 offen sc1")
            a(f"buffer_load_dwordx4 v[16:19], v12, {sWS}, s49 offen sc1\nbuffer_load_dwordx4 v[20:23], v12, {sWS}, s48 offen sc1")
        a("s_cmp_eq_u32 s97, 0\ns_cbranch_scc1 L_w_f")
        a("s_waitcnt vmcnt(0)\nv_mov_b32 v32, -1\ns_mov_b64 vcc, -1")
        w_round()
        a("L_w_f:")
        for _ in range(WD-2): w_round()
        if WD == 1: a("s_branch L_w_c")
        a("L_w_poll:\ns_mov_b64 exec, vcc")
        spin(); w_round()
        a(f"s_mov_b64 exec, -1\nL_w_c:\ns_waitcnt vmcnt({3*WD-3})")
        check_sent(list(range(16, 24)) + [32, 33], 37)
        a("s_cbranch_vccnz L_w_poll\ns_waitcnt lgkmcnt(0)")
        for c in range(4): mfma(64+8*c, 48+4*c, 16)
        a("v_max_f32 v36, v32, v33")
        for c in range(2): mfma(68+8*c, 48+4*c, 20)
        a("v_max_f32_dpp v36, v36, v36 row_ror:8 row_mask:0xf bank_mask:0xf")
        a("v_sub_f32 v34, v32, v36\nv_sub_f32 v35, v33, v36\nv_exp_f32 v34, v34\nv_exp_f32 v35, v35")
        for c in range(2, 4): mfma(68+8*c, 48+4*c, 20)
        a("v_add_f32 v36, v34, v35")
        a("v_add_f32_dpp v36, v36, v36 row_ror:8 row_mask:0xf bank_mask:0xf\nv_rcp_f32 v36, v36")
        a("v_mul_f32 v34, v34, v36\nv_mul_f32 v38, v35, v36")
    else:
        a("s_cmp_eq_u32 s97, 0\ns_cbranch_scc1 L_w_go\ns_waitcnt vmcnt(0)")
        a("L_w_b:")
        a(f"buffer_load_dwordx2 v[32:33], v2, {sWS}, s55 offen sc1")
        for jp in range(2): a(f"buffer_load_dwordx4 v[{16+4*jp}:{19+4*jp}], v12, {sWS}, s49 offen offset:{jp*1024} sc1")
        a("s_branch L_w_x")
        a("L_w_poll:")
        if MASKP: a("s_mov_b64 exec, vcc")
        spin(); a("s_cmp_eq_u32 s97, 0\ns_cbranch_scc0 L_w_b")
        w_loads()
        a("L_w_x:")
        if MASKP: a("s_mov_b64 exec, -1")
        a("L_w_go:")
        a("s_waitcnt vmcnt(1) lgkmcnt(0)")
        for c in range(4): mfma(64+8*c, 48+4*c, 16)
        a("v_max_f32 v36, v32, v33")
        a("v_max_f32_dpp v36, v36, v36 row_ror:8 row_mask:0xf bank_mask:0xf")
        a("v_sub_f32 v34, v32, v36\nv_sub_f32 v35, v33, v36\nv_exp_f32 v34, v34\nv_exp_f32 v35, v35")
        a("s_waitcnt vmcnt(0)")
        for c in range(4): mfma(68+8*c, 48+4*c, 20)
        a("v_add_f32 v36, v34, v35")
        a("v_add_f32_dpp v36, v36, v36 row_ror:8 row_mask:0xf bank_mask:0xf\nv_rcp_f32 v36, v36")
        check_sent(list(range(16, 24)) + [32, 33], 37)
        a("v_mul_f32 v34, v34, v36\nv_mul_f32 v38, v35, v36")
        if debug: a("s_cmp_lg_u32 s96, 300000\ns_cbranch_scc1 L_dw1"); stamp(2); a("L_dw1:")
        a("s_cbranch_vccnz L_w_poll")
    stamp(11)
    for st in range(2):
        rs = (64+8*st, 66+8*st, 80+8*st, 82+8*st)
        for r in rs: pk("mul", r, r, 34, "op_sel_hi:[1,0]")
        for r in rs: a(f"v_pk_fma_f32 v[{r}:{r+1}], v[{r+4}:{r+5}], v[38:39], v[{r}:{r+1}] op_sel_hi:[1,0,1]")
        for r in range(4): a(f"v_add_f32_dpp v{64+8*st+r}, v{64+8*st+r}, v{64+8*st+r} row_ror:8 row_mask:0xf bank_mask:0x3")
        for r in range(4): a(f"v_add_f32_dpp v{64+8*st+r}, v{80+8*st+r}, v{80+8*st+r} row_ror:8 row_mask:0xf bank_mask:0xc")
        a(f"ds_write_b128 v{15 if st == 0 else 115}, v[{64+8*st}:{67+8*st}]")
    a("s_waitcnt lgkmcnt(0)\ns_barrier")
    stamp(12); cnt(1)
    a("s_cmp_ge_u32 s5, 8\ns_cbranch_scc1 L_kv_end\ns_cmp_ge_u32 s3, 4\ns_cbranch_scc1 L_kv_end")
    a(f"s_lshl_b32 s52, s62, 1\ns_add_u32 s52, s52, {WP}\ns_add_u32 s100, s100, 1\ns_and_b32 s100, s100, 0xff")
    unpack(120, 121, 112)
    a(f"s_and_b32 s7, s5, 4\ns_add_u32 s7, s7, s3\ns_lshl_b32 s48, s7, 10\ns_and_b32 s7, s5, 3\ns_lshl_b32 s7, s7, 4\ns_add_u32 s48, s48, s7\ns_add_u32 s48, s48, s6\ns_add_u32 s48, s48, {O_XN}")
    a("v_lshrrev_b32 v9, 4, v6\nv_lshlrev_b32 v9, 6, v9\nv_and_b32 v5, 12, v6\nv_add_u32 v9, v5, v9")
    a("v_and_b32 v5, 31, v1\nv_lshlrev_b32 v5, 4, v5\nv_lshrrev_b32 v4, 5, v1\nv_lshl_add_u32 v5, v4, 14, v5")
    a(f"s_add_u32 s49, s62, s6\ns_add_u32 s49, s49, {O_XN+BX}")
    a(f"s_lshl_b32 s7, s5, 7\ns_add_u32 s54, s6, s7\ns_add_u32 s54, s54, {O_H}\ns_and_b32 s7, s4, 1\ns_lshl_b32 s7, s7, 7\ns_sub_u32 s54, s54, s7\ns_xor_b32 s55, s54, {BX}")
    a("s_bitcmp1_b32 s4, 0\ns_cselect_b32 s58, s56, 0xffff\ns_mov_b32 s59, s58")
    a(f"s_lshl_b32 s7, s3, 3\ns_add_u32 s7, s7, {L_MX}\nv_mov_b32 v12, s7\nv_mov_b32 v13, {L_MX}")
    if RG_: flag_wait("L_rg", O_FLG, 16, 122)
    if XG == 2: flag_set(384)
    if debug and opt.get("rs"): a(f"s_sleep {opt['rs']}")
    gather("L_r_poll", 8, 16, 48, 32768, "s100", RD, opt.get("rpm", 0))
    a("v_cvt_pk_bf16_f32 v100, v96, v97")
    unpack(96, 97, 100)
    a("s_cbranch_scc1 L_r_poll" if opt.get("rpm", 0) else "s_cbranch_vccnz L_r_poll")
    stamp(13); cnt(3)
    if XG == 1: flag_set(384)
    pk("add", 96, 96, 120)
    a("v_cvt_pk_bf16_f32 v100, v96, v97")
    unpack(96, 97, 100)
    a("v_add_f32 v108, v96, v97\nv_mul_f32 v109, v96, v96\nv_fmac_f32 v109, v97, v97")
    wred2(108, 109)
    a("s_mov_b32 exec_lo, 0\ns_mov_b32 exec_hi, 0x80000000")
    a("ds_write_b64 v12, v[108:109]")
    a("s_mov_b64 exec, -1\nv_min_u32 v100, -2, v100")
    a("s_waitcnt lgkmcnt(0)\ns_barrier")
    stamp(15)
    a("ds_read_b128 v[104:107], v13\nds_read_b128 v[108:111], v13 offset:16")
    a("s_waitcnt lgkmcnt(0)")
    pk("add", 104, 104, 106); pk("add", 108, 108, 110); pk("add", 104, 104, 108)
    stats("v104", "v105", 109)
    a(f"v_pk_add_f32 v[96:97], v[96:97], v[110:111] op_sel_hi:[1,0] neg_lo:[0,1] neg_hi:[0,1]")
    stats2(109)
    a("v_cvt_pk_bf16_f32 v101, v96, v97")
    unpack(96, 97, 101)
    a("v_mul_f32 v96, v96, v111\nv_mul_f32 v97, v97, v111\nv_cvt_pk_bf16_f32 v101, v96, v97\nv_min_u32 v101, -2, v101")
    a(f"buffer_store_dword v101, v9, {sWS}, s48 offen")
    stamp(14)
    a("s_lshr_b32 s7, s4, 1\ns_cmp_lg_u32 s7, s3\ns_cbranch_scc1 L_r_noh")
    a("s_mov_b64 exec, s[58:59]")
    a(f"buffer_store_dword v100, v6, {sWS}, s54 offen")
    a("s_cmp_eq_u32 s97, 0\ns_cbranch_scc1 L_r_noh")
    a(f"buffer_store_dword v100, v6, {sWS}, s55 offen sc1")
    a("L_r_noh:")
    a("s_mov_b64 exec, -1\ns_cmp_eq_u32 s97, 0\ns_cbranch_scc1 L_kv_end")
    a(f"buffer_store_dword v101, v6, {sWS}, s49 offen sc1")
    a("s_branch L_kv_end")
    a("L_G:")
    DSL = opt.get("dsl", 1); DN = opt.get("dn", 4)
    def dn_dma():
        a(f"s_lshl_b32 s7, s3, 12\ns_add_u32 m0, s7, {L_DN}\ns_mov_b32 s7, s63")
        for i in range(4):
            a(f"buffer_load_dwordx4 v{113+(i&1)}, {sD}, s7 offen {'' if opt.get('ntd', 0) else 'nt'} lds")
            if i < 3: a("s_add_u32 m0, m0, 1024\ns_add_u32 s7, s7, 8192")
    def hookG(p):
        n = 0
        if DSL and p == GSP:
            if DSL == 1: a("s_mov_b64 exec, s[0:1]")
            dn_dma(); n += 4
            a("s_mov_b64 exec, -1")
        if p == 0:
            a("s_sub_u32 s61, s5, 16")
            a("s_mul_i32 s7, s4, 7\ns_lshr_b32 s62, s61, 1\ns_add_u32 s62, s62, s7")
            a(f"s_mul_i32 s51, s53, {32*3584}\ns_lshl_b32 s7, s62, 6\ns_add_u32 s51, s51, s7")
            a(f"s_xor_b32 s7, s53, 1\ns_mul_i32 s52, s7, {32*3584}\ns_lshl_b32 s7, s62, 6\ns_add_u32 s52, s52, s7")
            a("s_lshl_b32 s54, s3, 13\ns_lshl_b32 s7, s50, 11\ns_add_u32 s54, s54, s7")
            a("s_lshl_b32 s63, s62, 15\ns_lshl_b32 s7, s3, 7\ns_add_u32 s63, s63, s7")
            a("s_bitcmp1_b32 s62, 0\ns_cbranch_scc0 L_t_nosw")
            a("s_mov_b64 s[0:1], s[28:29]\ns_mov_b64 s[28:29], s[32:33]\ns_mov_b64 s[32:33], s[0:1]\ns_xor_b32 s54, s54, 4096")
            a("L_t_nosw:")
            a("s_xor_b32 s55, s54, 2048")
            a("v_lshrrev_b32 v113, 3, v1\nv_and_b32 v114, 7, v1\nv_and_b32 v115, 2, v113\nv_xor_b32 v114, v114, v115\nv_lshlrev_b32 v114, 4, v114\nv_lshl_add_u32 v113, v113, 10, v114\nv_xor_b32 v114, 64, v113")
        if p == 0: a("s_and_b32 s7, s62, 6\ns_cmp_eq_u32 s7, 6\ns_cselect_b64 s[0:1], -1, 0")
        for u, (so, ld) in enumerate((("s51", "s54"), ("s52", "s55"))):
            if u < GSL and p in (GSP, 3):
                a("s_mov_b64 exec, s[0:1]" if p != 3 else "s_not_b64 exec, s[0:1]")
                dma2(6, sG, so, ld, 3584); n += 2
                a("s_mov_b64 exec, -1")
            elif u >= GSL and p == (G1, G2)[u]: dma2(6, sG, so, ld, 3584); n += 2
            if p == 3 and (GUB >> u) & 1: a("s_barrier")
        return n
    attn("G", hookG)
    a("s_xor_b32 s54, s54, 4096\ns_xor_b32 s55, s55, 4096")
    dma2(6, sU, "s51", "s54", 3584)
    if GUB & 4: a("s_barrier")
    dma2(6, sU, "s52", "s55", 3584)
    if GUB & 8: a("s_barrier")
    a(f"s_lshl_b32 s54, s3, 12\ns_add_u32 s54, s54, {L_DN}")
    if DSL == 1: a("s_not_b64 exec, s[0:1]")
    if DSL < 2: dn_dma()
    a("s_mov_b64 exec, -1")
    a("v_bfe_u32 v116, v1, 2, 2\nv_and_b32 v117, 3, v1\nv_lshlrev_b32 v118, 10, v11\nv_lshl_add_u32 v118, v116, 7, v118\nv_lshl_add_u32 v118, v117, 3, v118\nv_lshrrev_b32 v119, 1, v116\nv_lshl_add_u32 v118, v119, 5, v118\nv_and_b32 v119, 1, v11\nv_lshl_add_u32 v118, v119, 6, v118")
    a("v_add_u32 v118, s54, v118\nv_xor_b32 v119, 32, v118\nv_xor_b32 v120, 64, v118\nv_xor_b32 v121, 64, v119")
    a(f"v_lshlrev_b32 v122, 4, v11\nv_lshl_add_u32 v122, v117, 6, v122\nv_add_u32 v122, {L_PB}, v122")
    a("v_lshlrev_b32 v123, 8, v116\nv_lshl_add_u32 v123, v11, 6, v123\nv_lshl_add_u32 v123, v117, 4, v123\nv_mov_b32 v124, 0xff")
    a(f"s_lshl_b32 s7, s62, 1\ns_add_u32 s7, s7, s50\ns_lshl_b32 s7, s7, 3\ns_add_u32 s7, s7, s3\ns_lshl_b32 s63, s7, 10\ns_add_u32 s63, s63, {PO}\ns_add_u32 s100, s100, 1")
    a(f"s_lshl_b32 s7, s3, 13\nv_add_u32 v14, s7, v14\nv_xor_b32 v9, 32, v14")
    a(f"v_and_b32 v12, 3, v10\nv_lshlrev_b32 v13, 10, v12\nv_lshl_add_u32 v13, v11, 4, v13\nv_lshlrev_b32 v12, 4, v12\nv_lshl_add_u32 v12, v11, 6, v12")
    a(f"s_lshl_b32 s48, s50, 12\ns_add_u32 s48, s48, s6\ns_add_u32 s48, s48, {O_XN}\ns_lshl_b32 s7, s3, 7\ns_add_u32 s49, s48, s7\ns_add_u32 s49, s49, {BX}\ns_lshl_b32 s7, s3, 9\ns_add_u32 s48, s48, s7")
    a("s_waitcnt vmcnt(0)")
    stamp(10)
    for t in range(2):
        for m in range(2):
            for ks in range(2): trfrag(48 + 16*t + 8*m + 4*ks, 14 if t == 0 else 9, m*4096 + ks*2048)
    for c in range(4): trfrag(80+4*c, 118+c, 0, 512)
    if GD > 1 or opt.get("gnew"):
        a("s_cmp_eq_u32 s97, 0\ns_cselect_b32 s49, s48, s49\ns_cselect_b32 s7, 256, 64\ns_cselect_b64 vcc, -1, 0\nv_cndmask_b32 v12, v13, v12, vcc\ns_add_u32 s48, s49, s7")
        def g_round(): a(f"buffer_load_dwordx4 v[16:19], v12, {sWS}, s49 offen sc1\nbuffer_load_dwordx4 v[20:23], v12, {sWS}, s48 offen sc1")
        if XG: a("s_barrier")
        for _ in range(GD-1): g_round()
        a("L_g_poll:")
        spin(); g_round()
        a(f"s_waitcnt vmcnt({2*GD-2})")
        check_sent(range(16, 24), 24)
        a("s_cbranch_vccnz L_g_poll\ns_waitcnt lgkmcnt(0)")
        for c in range(4): mfma(96+4*c, 48+8*c, 16)
        for c in range(4): mfma(96+4*c, 52+8*c, 20, 96+4*c)
    else:
        a("s_branch L_g_poll")
        a("L_g_b:")
        a(f"buffer_load_dwordx4 v[16:19], v13, {sWS}, s49 offen sc1\nbuffer_load_dwordx4 v[20:23], v13, {sWS}, s49 offen offset:64 sc1")
        a("s_branch L_g_go")
        a("L_g_poll:")
        spin(); a("s_cmp_eq_u32 s97, 0\ns_cbranch_scc0 L_g_b")
        a(f"buffer_load_dwordx4 v[16:19], v12, {sWS}, s48 offen sc1\nbuffer_load_dwordx4 v[20:23], v12, {sWS}, s48 offen offset:256 sc1")
        a("L_g_go:")
        a("s_waitcnt vmcnt(1) lgkmcnt(0)")
        for c in range(4): mfma(96+4*c, 48+8*c, 16)
        a("s_waitcnt vmcnt(0)")
        for c in range(4): mfma(96+4*c, 52+8*c, 20, 96+4*c)
        check_sent(range(16, 24), 24)
        a("s_cbranch_vccnz L_g_poll")
    stamp(11)
    for c in range(1, 4):
        for r in range(4): a(f"v_mov_b32_dpp v{96+r}, v{96+4*c+r} quad_perm:[0,1,2,3] row_mask:0xf bank_mask:{hex(1<<c)}")
    a("ds_write_b128 v15, v[96:99]")
    a("s_waitcnt lgkmcnt(0)\ns_barrier")
    stamp(12)
    a("s_barrier")
    a("ds_read_b128 v[28:31], v122\ns_waitcnt lgkmcnt(0)")
    for c in range(4): mfma(96+4*c, 80+4*c, 28)
    for c in range(1, 4):
        for r in range(4): a(f"v_mov_b32_dpp v{96+r}, v{96+4*c+r} quad_perm:[0,1,2,3] row_mask:0xf bank_mask:{hex(1<<c)}")
    for r in range(4): a(f"v_bfi_b32 v{96+r}, v124, s100, v{96+r}")
    a(f"buffer_store_dwordx4 v[96:99], v123, {sWS}, s63 offen sc1")
    stamp(13)
    a("s_branch L_kv_end")
    a("L_D:")
    TCH = opt.get("tch", 0); TP = opt.get("tp", 3)
    def hookD(p):
        n = 0
        if TCH and p == TP:
            fl = {1: "sc1", 2: "nt", 3: "", 4: "sc0 sc1"}[TCH]
            a(f"s_lshl_b32 s7, s4, 1\ns_add_u32 s7, s7, s50\ns_lshl_b32 s7, s7, 3\ns_add_u32 s7, s7, s3\ns_lshl_b32 s51, s7, 11\ns_add_u32 s51, s51, {WP}\ns_mul_i32 s52, s7, 7168\ns_add_u32 s52, s52, {PO}")
            for i in range(2): a(f"buffer_load_dwordx4 v[112:115], v7, {sWS}, s51 offen offset:{i*1024} {fl}")
            for i in range(7):
                a(f"buffer_load_dwordx4 v[112:115], v7, {sWS}, s52 offen offset:{(i&3)*1024} {fl}")
                if i == 3: a("s_add_u32 s52, s52, 4096")
            n = 9
        return n
    attn("D", hookD)
    WB = opt.get("wb", 0)
    if WB:
        a("s_cmp_lg_u32 s53, 0\ns_cbranch_scc1 L_kv_end")
        if WB == 1: flag_wait("L_wbg", O_FLG, 16, 122)
        if WB == 3: flag_wait("L_wbg", O_FLG+192, 14, 122)
        stamp(10)
        a("buffer_wbl2 sc1")
        a("s_waitcnt vmcnt(0)")
        stamp(11)
    a("L_kv_end:")
    if debug:
        a(f"s_cmp_lg_u32 s3, {DW}\ns_cbranch_scc1 L_end")
        a(f"s_lshl_b32 s7, s2, 8\ns_add_u32 s7, s7, {hex(STAMP)}")
        a("L_stamps:")
        a("s_waitcnt lgkmcnt(0)\nv_mov_b32 v0, 0")
        for i in range(16):
            a(f"v_mov_b32 v2, s{64+2*i}\nv_mov_b32 v3, s{65+2*i}")
            a(f"buffer_store_dwordx2 v[2:3], v0, {sWS}, s7 offen offset:{8*i}")
            a("s_nop 1")
    a("s_endpgm")

    a("L_aux:")
    a("s_setprio 3")
    if P3: srd([40, 24, 28, 32, 36] + ([16] if opt.get("vpf") else [])); com1(); com2()
    for i in range(4): a(f"v_mov_b32 v{100+i}, -1")
    a("s_lshl_b32 s58, s5, 1\ns_add_u32 s58, s58, s3\ns_lshl_b32 s7, s58, 10\ns_add_u32 s59, s7, s6")
    a("s_getreg_b32 s63, hwreg(HW_REG_XCC_ID, 0, 4)")
    if SLOW: a("s_and_b32 s63, s5, 1")
    if QSL: a("s_lshl_b32 s7, s58, 6\ns_add_u32 s7, s7, s4\ns_lshl_b32 s7, s7, 10\nv_lshrrev_b32 v4, 3, v1\nv_and_b32 v5, 7, v1\nv_lshlrev_b32 v5, 4, v5\nv_lshl_add_u32 v4, v4, 13, v5")
    a("s_waitcnt lgkmcnt(0)")
    if P2: a("s_mov_b64 s[40:41], s[90:91]"); a("s_mov_b64 s[16:17], s[72:73]\ns_mov_b64 s[24:25], s[76:77]\ns_mov_b64 s[28:29], s[80:81]\ns_mov_b64 s[32:33], s[82:83]\ns_mov_b64 s[44:45], s[84:85]\ns_mov_b64 s[36:37], s[86:87]")
    a("s_load_dword s48, s[40:41], 0")
    if PRO: stamp(12)
    if B0 and not AB0: a("s_barrier")
    a("s_cmp_ge_u32 s58, 43\ns_cbranch_scc1 L_a_c3")
    a(f"buffer_store_dwordx4 v[100:103], v7, {sWS}, s59 offen")
    a("L_a_c3:")
    stamp(1)
    a("v_lshlrev_b32 v14, 10, v11\nv_lshl_add_u32 v14, v9, 7, v14\nv_lshl_add_u32 v14, v12, 3, v14\nv_lshrrev_b32 v4, 1, v9\nv_lshl_add_u32 v14, v4, 5, v14\nv_lshl_add_u32 v14, v13, 6, v14")
    a("s_lshl_b32 s7, s3, 6\nv_xor_b32 v14, s7, v14\nv_xor_b32 v15, 32, v14")
    a(f"v_lshrrev_b32 v4, 3, v10\nv_lshl_add_u32 v4, v4, 2, v12\nv_mul_u32_u24 v4, 1040, v4\nv_lshl_add_u32 v4, v11, 4, v4\n{QS('s57')}\ns_lshl_b32 s7, s57, 8\ns_add_u32 s7, s7, {L_OP}\nv_add_u32 v4, s7, v4")
    a("v_and_b32 v5, 31, v1\nv_lshrrev_b32 v6, 5, v1\nv_lshlrev_b32 v2, 2, v5\nv_lshl_add_u32 v2, v6, 15, v2")
    a(f"s_lshl_b32 s55, s4, 16\ns_add_u32 s55, s55, {QB}")
    a(f"s_lshl_b32 s51, s57, 11\n{CG}\ns_lshl_b32 s7, s7, 8\ns_add_u32 s51, s51, s7\ns_lshl_b32 s7, s3, 7\ns_add_u32 s51, s51, s7\ns_add_u32 s51, s51, s55")
    a(f"s_add_u32 s52, s51, 8192\ns_add_u32 s53, s51, 16384\ns_add_u32 s54, s51, 24576\nv_add_u32 v3, {QX}, v2\nv_mov_b32 v104, 0xff")
    a(f"s_lshr_b32 s7, s5, 2\ns_lshl_b32 s60, s7, 13\ns_add_u32 s60, s60, s55\ns_lshl_b32 s7, s3, 7\ns_add_u32 s60, s60, s7\ns_add_u32 s61, s60, {QX}\ns_add_u32 s62, s60, 4096\ns_mov_b32 s49, s60")
    a("v_lshrrev_b32 v106, 3, v1\nv_and_b32 v5, 7, v1\nv_and_b32 v13, 1, v106\nv_lshlrev_b32 v106, 8, v106\nv_lshl_add_u32 v106, v5, 4, v106")
    a(f"v_lshlrev_b32 v13, 9, v13\nv_lshrrev_b32 v5, 1, v5\nv_lshl_add_u32 v13, v5, 6, v13\nv_lshl_add_u32 v13, v11, 4, v13\nv_and_b32 v5, 1, v1\nv_lshl_add_u32 v13, v5, 3, v13\ns_lshl_b32 s7, s3, 8\ns_add_u32 s7, s7, {L_QL}\nv_add_u32 v13, s7, v13")
    a("v_lshlrev_b32 v105, 1, v12")
    a("s_waitcnt lgkmcnt(0)\ns_add_u32 s48, s48, 1\ns_lshl_b32 s63, s63, 4\ns_and_b32 s7, s48, 15\ns_or_b32 s63, s63, s7\nv_lshrrev_b32 v105, v105, s63")
    a("s_bfe_u32 s98, s63, 0x20000\ns_bfe_u32 s99, s63, 0x20002\ns_bfe_u32 s100, s63, 0x20004\ns_bfe_u32 s101, s63, 0x20006")
    a("s_waitcnt vmcnt(0)")
    stamp(2)
    a("s_barrier")
    stamp(3)
    if debug and not LITE: a("s_waitcnt lgkmcnt(0)")
    for ks in range(4):
        a(f"ds_read_b128 v[{16+4*ks}:{19+4*ks}], v4 offset:{ks*64}")
        trfrag(32+8*ks, 14, ks*4096, 512); trfrag(36+8*ks, 15, ks*4096, 512)
        if ks == 2: a("s_waitcnt lgkmcnt(10)"); mfma(96, 16, 32); mfma(100, 16, 36)
    for ks in range(1, 4):
        a(f"s_waitcnt lgkmcnt({5*(3-ks)})")
        mfma(96, 16+4*ks, 32+8*ks, 96); mfma(100, 16+4*ks, 36+8*ks, 100)
    for j in range(4): a(f"v_mov_b32_dpp v{96+j}, v{100+j} quad_perm:[0,1,2,3] row_mask:0xa bank_mask:0xf")
    for j in range(4): a(f"v_bfi_b32 v{96+j}, 3, v105, v{96+j}")
    for j in range(4): a(f"buffer_store_dword v{96+j}, v2, {sWS}, s{51+j} offen")
    if BQ: a("s_barrier")
    stamp(4)
    a("v_lshrrev_b32 v9, 3, v1\nv_and_b32 v12, 7, v1\nv_lshrrev_b32 v4, 1, v12")
    a(f"v_mul_u32_u24 v15, {RG}, v4\nv_lshl_add_u32 v15, v9, 4, v15\nv_lshl_add_u32 v15, v5, 3, v15\ns_lshl_b32 s7, s3, 7\ns_add_u32 s7, s7, {L_RD}\nv_add_u32 v15, s7, v15")
    a("v_lshlrev_b32 v5, 2, v12\nv_lshl_add_u32 v6, v9, 10, v5")
    a("s_or_b32 s96, s96, 15")
    VPF = opt.get("vpf", 0); VPP = opt.get("vpp", 0)
    def vpf():
        for k in range(VPF): a(f"buffer_load_dwordx4 v[116:119], v107, {sV}, s50 offen offset:{512 - 512*k}")
    if VPF:
        a("s_lshr_b32 s7, s58, 5\ns_lshl_b32 s50, s7, 25\ns_lshl_b32 s7, s4, 20\ns_add_u32 s50, s50, s7\ns_and_b32 s7, s58, 30\ns_lshl_b32 s7, s7, 12\ns_add_u32 s50, s50, s7")
        a(f"s_lshl_b32 s7, s3, 8\ns_add_u32 s50, s50, s7\ns_add_u32 s50, s50, {(3<<23) + (2<<16) + 786432 + 4096}\nv_lshlrev_b32 v107, 4, v10\nv_lshl_add_u32 v107, v11, 10, v107")
    if VPP == 0: vpf()
    a("s_barrier")
    if M1: a("s_barrier")
    if VPP == 1: vpf()
    stamp(8)
    def qld():
        for s in range(4): a(f"buffer_load_dwordx4 v[{16+4*s}:{19+4*s}], v106, {sWS}, {'s49' if s < 2 else 's62'} offen offset:{(s%2)*2048} sc1")
    qld()
    if PAIR: a("s_barrier")
    stamp(11)
    a("s_branch L_q_ld")
    a("L_q_poll:")
    spin(); a("s_and_b32 s7, s96, 7\ns_cselect_b32 s49, s60, s61\ns_cbranch_scc1 L_q_ld2")
    for j in range(4): a(f"buffer_store_dword v{96+j}, v3, {sWS}, s{51+j} offen sc1")
    a("L_q_ld2:")
    a("s_add_u32 s62, s49, 4096")
    qld()
    a("L_q_ld:")
    a("s_waitcnt vmcnt(0)")
    if debug:
        a("s_and_b32 s7, s96, 15\ns_cmp_lg_u32 s7, 15\ns_cbranch_scc1 L_dbg1"); stamp(10); a("L_dbg1:")
    for i in range(16): a(f"v_xor_b32 v{16+i}, s{98+(i&3)}, v{16+i}")
    a("v_or_b32 v32, v16, v17\nv_or_b32 v33, v18, v19")
    for i in range(4, 16, 4): a(f"v_or3_b32 v32, v32, v{16+i}, v{17+i}\nv_or3_b32 v33, v33, v{18+i}, v{19+i}")
    a("v_and_b32 v32, 3, v32\nv_and_b32 v33, 3, v33\nv_cmp_ne_u32 vcc, 0, v32\nv_cmp_ne_u32 s[0:1], 0, v33")
    for i in range(0, 16, 4): a(f"v_and_b32 v{18+i}, -4, v{18+i}\nv_and_b32 v{19+i}, -4, v{19+i}")
    a("s_cbranch_vccnz L_q_poll")
    pk("add", 16, 16, 20); pk("add", 18, 18, 22); pk("add", 24, 24, 28); pk("add", 26, 26, 30); pk("add", 16, 16, 24); pk("add", 18, 18, 26)
    a(f"s_or_b32 s97, s0, s1\nv_mov_b32 v20, s97\nv_mov_b32 v21, {L_MD}")
    a("v_cvt_pk_bf16_f32 v16, v16, v17\nv_cvt_pk_bf16_f32 v17, v18, v19")
    a("ds_write_b64 v13, v[16:17]\nds_write_b32 v21, v20")
    stamp(5)
    a("s_cmp_eq_u32 s97, 0\ns_cbranch_scc1 L_a_fast")
    for j in range(4): a(f"buffer_store_dword v{96+j}, v3, {sWS}, s{51+j} offen sc1")
    for i in range(4): a(f"v_mov_b32 v{100+i}, -1")
    a(f"s_cmp_ge_u32 s58, 43\ns_cbranch_scc1 L_a_s1\ns_add_u32 s7, s59, {BX}")
    a(f"buffer_store_dwordx4 v[100:103], v7, {sWS}, s7 offen sc1")
    a("L_a_s1:")
    a(f"s_add_u32 s49, s6, {O_SY}\ns_lshl_b32 s7, s58, 2\ns_add_u32 s7, s7, s49\nv_mov_b32 v20, s48\nv_lshlrev_b32 v21, 2, v1\ns_waitcnt vmcnt(0)")
    a(f"buffer_store_dword v20, off, {sWS}, s7 sc1")
    a("L_a_s2:")
    spin()
    a(f"buffer_load_dword v22, v21, {sWS}, s49 offen sc1\ns_waitcnt vmcnt(0)\nv_cmp_ne_u32 vcc, s48, v22\ns_cbranch_vccnz L_a_s2")
    a("L_a_fast:")
    a("s_waitcnt lgkmcnt(0)\ns_barrier")
    if TOUCH:
        a("s_cmp_ge_u32 s58, 43\ns_cbranch_scc1 L_a_nt")
        a(f"buffer_load_dwordx4 v[100:103], v7, {sWS}, s59 offen sc1")
        a("L_a_nt:")
    PFL = opt.get("pfl", "")
    if WALL:
        a("s_lshl_b32 s7, s4, 6\ns_add_u32 s7, s7, s58\ns_lshl_b32 s7, s7, 13")
        for i in range(8):
            a(f"buffer_load_dwordx4 v[108:111], v7, {sWO}, s7 offen offset:{(i&3)*1024} {PFL}")
            if i == 3: a("s_add_u32 s7, s7, 4096")
    if WSL:
        a("s_lshl_b32 s7, s4, 6\ns_add_u32 s7, s7, s58\ns_lshl_b32 s7, s7, 13\nv_lshlrev_b32 v107, 4, v12\nv_lshl_add_u32 v107, v9, 10, v107")
        a(f"buffer_load_dwordx4 v[108:111], v107, {sWO}, s7 offen offset:384 {PFL}")
    if GPF:
        a("s_mul_i32 s7, s4, 7\ns_lshr_b32 s7, s7, 1\ns_or_b32 s49, s7, 3\ns_bfe_u32 s7, s49, 0x10002\ns_lshl_b32 s49, s49, 7\ns_lshl_b32 s62, s5, 4\ns_add_u32 s7, s7, s62\ns_mul_i32 s7, s7, 3584\ns_add_u32 s7, s7, s49")
        a("v_mul_u32_u24 v107, 7168, v9\nv_lshl_add_u32 v107, v12, 4, v107\ns_cmp_eq_u32 s3, 0\ns_cbranch_scc1 L_a_pg")
        a(f"buffer_load_dwordx4 v[112:115], v107, {sU}, s7 offen {PFL}\ns_branch L_a_px")
        a("L_a_pg:")
        a(f"buffer_load_dwordx4 v[112:115], v107, {sG}, s7 offen {PFL}")
        a("L_a_px:")
    a("s_barrier")
    a("s_barrier")
    if WG_ == 1: flag_set(256)
    a("s_barrier")
    if WG_ == 2 or opt.get("ggate") == 1: flag_set(256)
    a("s_cmp_ge_u32 s5, 16\ns_cbranch_scc1 L_a_gd")
    a(f"s_lshl_b32 s53, s4, 15\n{KH8}\ns_lshl_b32 s7, s7, 11\ns_add_u32 s53, s53, s7\n{CW}\ns_lshl_b32 s7, s7, 8\ns_add_u32 s53, s53, s7\ns_lshl_b32 s7, s3, 7\ns_add_u32 s53, s53, s7\ns_add_u32 s53, s53, {WP}")
    a("v_lshlrev_b32 v6, 4, v12\nv_lshl_add_u32 v6, v9, 11, v6")
    a(f"v_and_b32 v4, 3, v1\nv_mul_u32_u24 v15, {RG}, v4\nv_lshl_add_u32 v15, v9, 4, v15\nv_bfe_u32 v4, v1, 2, 1\nv_mul_i32_i24 v4, {L_OP+32-L_RD}, v4\ns_lshl_b32 s7, s3, 7\ns_add_u32 s7, s7, {L_RD}\nv_add3_u32 v15, v15, v4, s7")
    a("s_barrier")
    stamp(6)
    if RG_ == 1: flag_set(0)
    for w in range(8): a(f"ds_read_b128 v[{24+4*w}:{27+4*w}], v15 offset:{w*RW}")
    for w in range(0, 8, 2):
        a(f"s_waitcnt lgkmcnt({6-w})" if (not debug or LITE) else "s_waitcnt lgkmcnt(0)")
        pk("add", 24+4*w, 24+4*w, 28+4*w); pk("add", 26+4*w, 26+4*w, 30+4*w)
        if w == 2: pk("add", 24, 24, 32); pk("add", 26, 26, 34)
    pk("add", 40, 40, 48); pk("add", 42, 42, 50); pk("add", 24, 24, 40); pk("add", 26, 26, 42)
    for q in range(4): a(f"v_bfi_b32 v{24+q}, v104, s48, v{24+q}")
    a(f"buffer_store_dwordx4 v[24:27], v6, {sWS}, s53 offen sc1")
    if RG_ == 2: flag_set(0)
    stamp(7)
    a("s_cmp_lg_u32 s3, 0\ns_cbranch_scc1 L_a_end")
    a("s_and_b32 s50, s5, 1\ns_lshr_b32 s61, s5, 1\ns_lshl_b32 s7, s4, 3\ns_add_u32 s7, s7, s61")
    a(f"s_lshl_b32 s52, s7, 7\ns_lshl_b32 s62, s7, 4\ns_lshl_b32 s7, s50, 13\ns_add_u32 s52, s52, s7\ns_add_u32 s52, s52, {PO}\ns_lshl_b32 s7, s50, 12\ns_add_u32 s62, s62, s7")
    a("v_lshlrev_b32 v5, 4, v12\nv_lshl_add_u32 v5, v9, 14, v5")
    a("v_and_b32 v2, 3, v1\nv_bfe_u32 v3, v1, 2, 1\nv_lshrrev_b32 v4, 5, v1\nv_lshlrev_b32 v4, 2, v4\nv_lshl_add_u32 v4, v3, 3, v4\nv_lshl_add_u32 v6, v2, 10, v4\nv_lshl_add_u32 v4, v2, 7, v4")
    a(f"s_lshl_b32 s61, s61, 4\ns_lshl_b32 s7, s50, 9\ns_add_u32 s61, s61, s7\ns_add_u32 s61, s61, s6\ns_add_u32 s61, s61, {O_H}\ns_xor_b32 s53, s61, {BX}\ns_cmp_eq_u32 s97, 0\ns_cselect_b32 s51, s61, s53")
    a("s_and_b32 s49, s48, 0xff\ns_cmp_ge_u32 s5, 8\ns_cbranch_scc1 L_h_poll\ns_barrier")
    a("L_h_poll:")
    spin()
    a(f"buffer_load_dword v22, v4, {sWS}, s51 offen sc1")
    a("s_waitcnt vmcnt(0)")
    a("v_cmp_eq_u32 vcc, -1, v22\ns_cbranch_vccnz L_h_poll")
    unpack(20, 21, 22)
    stamp(9); cnt(2)
    if FG_: flag_wait("L_fg", O_FLG+128+64, 14, 122)
    if debug and opt.get("fs"): a(f"s_sleep {opt['fs']}")
    gather("L_f_poll", 7, 24, 56, 0x20000, "s49", FD, opt.get("fpm", 0))
    a("s_cbranch_scc1 L_f_poll" if opt.get("fpm", 0) else "s_cbranch_vccnz L_f_poll")
    stamp(12); cnt(3)
    a("v_mov_b32 v98, v96\nv_mov_b32 v99, v97\nv_permlane16_swap_b32 v96, v98\nv_permlane16_swap_b32 v97, v99")
    pk("add", 96, 96, 98)
    a("v_add_f32_dpp v96, v96, v96 row_ror:8 row_mask:0xf bank_mask:0xf\nv_add_f32_dpp v97, v97, v97 row_ror:8 row_mask:0xf bank_mask:0xf")
    a("v_cvt_pk_bf16_f32 v98, v96, v97")
    unpack(22, 23, 98)
    pk("add", 22, 22, 20); a("v_cvt_pk_bf16_f32 v22, v22, v23")
    a("s_mov_b32 exec_lo, 0xff\ns_mov_b32 exec_hi, 0xff")
    a(f"buffer_store_dword v22, v6, {sOUT}, s62 offen")
    stamp(13)
    a("s_cmp_lg_u32 s62, 0\ns_cbranch_scc1 L_a_end")
    a("v_mov_b32 v22, s48\ns_mov_b64 exec, 1")
    a(f"buffer_store_dword v22, off, {sWS}, 0")
    a("s_branch L_a_end")
    a("L_a_gd:")
    a("s_cmp_ge_u32 s5, 30\ns_cbranch_scc1 L_a_end")
    a(f"v_lshrrev_b32 v4, 5, v1\nv_bfe_u32 v13, v1, 2, 1\nv_lshl_add_u32 v13, v4, 1, v13\nv_mul_u32_u24 v15, {RG}, v13\nv_and_b32 v13, 3, v9\nv_lshl_add_u32 v15, v13, 4, v15\nv_and_b32 v13, 3, v1\nv_lshl_add_u32 v15, v13, 2, v15")
    a(f"s_lshl_b32 s7, s3, 7\ns_add_u32 s7, s7, {L_RD}\nv_add_u32 v15, s7, v15")
    a(f"v_lshlrev_b32 v14, 1, v12\nv_lshl_add_u32 v14, v4, 4, v14\nv_and_b32 v13, 3, v9\nv_lshl_add_u32 v14, v13, 6, v14\ns_lshl_b32 s7, s3, 5\ns_add_u32 s7, s7, {L_PB}\nv_add_u32 v14, s7, v14\nv_add_u32 v4, 64, v15")
    a(f"s_mov_b32 s57, {hex(LOG2E ^ 0x80000000)}")
    for _ in range(bin(GUB).count("1")): a("s_barrier")
    if XG: flag_wait("L_xg", O_FLG+384, 8, 122); a("s_barrier")
    a("s_barrier")
    stamp(6)
    if FG_ == 1: flag_set(128)
    for w in range(4): a(f"ds_read2st64_b32 v[{24+2*w}:{25+2*w}], v15 offset0:{10*w} offset1:{10*w+5}")
    for w in range(4): a(f"ds_read2st64_b32 v[{32+2*w}:{33+2*w}], v4 offset0:{10*w} offset1:{10*w+5}")
    a("s_waitcnt lgkmcnt(4)" if (not debug or LITE) else "s_waitcnt lgkmcnt(0)")
    pk("add", 24, 24, 26); pk("add", 28, 28, 30); pk("add", 24, 24, 28); a("v_add_f32 v24, v24, v25")
    a("v_cvt_pk_bf16_f32 v24, v24, v24\nv_and_b32 v26, s56, v24")
    a("v_mul_f32 v26, s57, v26\nv_exp_f32 v26, v26")
    a("s_waitcnt lgkmcnt(0)")
    pk("add", 32, 32, 34); pk("add", 36, 36, 38)
    a("v_add_f32 v26, 1.0, v26\nv_rcp_f32 v26, v26")
    pk("add", 32, 32, 36); a("v_add_f32 v25, v32, v33")
    a("v_cvt_pk_bf16_f32 v26, v26, v25")
    unpack(25, 26, 26)
    a("v_mul_f32 v26, v26, v25")
    a("v_cvt_pk_bf16_f32 v26, v26, v26\nds_write_b16 v14, v26\ns_waitcnt lgkmcnt(0)\ns_barrier")
    if FG_ == 2: flag_set(128)
    stamp(7)
    a("L_a_end:")
    if debug:
        a("s_mov_b64 exec, -1\ns_cmp_lg_u32 s3, 0\ns_cbranch_scc1 L_end")
        a(f"s_lshl_b32 s7, s2, 8\ns_add_u32 s7, s7, {hex(STAMP+128)}\ns_branch L_stamps")
    a("L_end:\ns_endpgm")
    lines = hz.fix(a.l)
    hdr = open("header.txt").read()
    return wrap("\n".join(lines) + "\n", 256, 640, L_END, 128, sgpr=102, header=hdr)

if __name__ == "__main__":
    specs = sys.argv[1:] or ["k8"]
    for sp in specs:
        nm, _, o = sp.partition(":")
        opt = {}
        for kv in filter(None, o.split(",")):
            k, v = kv.split("=")
            try: v = int(v)
            except ValueError: pass
            opt[k] = v
        open(nm + ".s", "w").write(gen(False, **opt))
        open(nm + "d.s", "w").write(gen(True, **opt))
```

```python
import sys
from asmlib import *
import hz

GB=0x40000; GSH=17
O_OB=0; O_XN=0x8000; O_H=0xA000; O_LSE=0xA400; O_FLG=0xA800; O_SY=0xB000; BX=0x10000
WP=0x140000; PO=0x300000; L_DN=65536
QB=0x200000; QX=0x80000
STAMP=128<<20
L_W=0
L_QL=114688
L_MX=L_QL+1024
L_LS=L_MX+128
L_OP=L_LS+128
L_RD=L_OP+16384
L_PB=L_RD+10240
L_MD=L_PB+1152
L_END=L_MD+64
RW=1280; RG=320
sX,sK,sV,sWQ,sWO,sG,sU,sOUT,sWS,sD = [f"s[{i}:{i+3}]" for i in range(8,48,4)]
LOG2E=0x3fb8aa3b; SCALE=0x3db504f3; EPS=0x3727c5ac

def gen(debug=False, **opt):
    NT = opt.get("nt", "nt")
    K0 = opt.get("k0", 3); K1 = opt.get("k1", 2); BQ = opt.get("bq", 1); GS = opt.get("gsleep", 0); B0 = opt.get("b0", 1); TOUCH = opt.get("touch", 1); SLOW = opt.get("slow", 0); DW = opt.get("dw", 0); PAIR = opt.get("pair", 1); DIAG = opt.get("diag", 0)
    W1 = opt.get("w1", 1); W2 = opt.get("w2", 1); CGX = opt.get("cgx", 4); WCX = opt.get("wcx", 4)
    G1 = opt.get("g1", 3)
    RD = opt.get("rd", 1); FD = opt.get("fd", 1); PRO = opt.get("pro", 0); AB0 = opt.get("ab0", 1); QSL = opt.get("qsl", 0); WSL = opt.get("wsl", 1); WALL = opt.get("wall", 0); GPF = opt.get("gpf", 1); WG_ = opt.get("wg", 0); RG_ = opt.get("rg", 1); FG_ = opt.get("fg", 2); G2 = opt.get("g2", 3); GSL = opt.get("gsl", 0); GSP = opt.get("gsp", 2); GUB = opt.get("gub", 0); GD = opt.get("gd", 2); XG = opt.get("xg", 0); XL = opt.get("xl", 1)
    NTW = opt.get("ntw", "nt")
    if NTW == "df": NTW = ""
    M1 = opt.get("m1", 2)
    PREOWN = opt.get("preown", 1)
    MASKP = opt.get("maskp", 1)
    DHINT = opt.get("dhint", 0)
    if WALL: WSL = 0; W1 = W2 = 3
    MAP = opt.get("map", 1)
    if MAP:
        QS = lambda r: f"s_lshr_b32 {r}, s5, 3\ns_and_b32 {r}, {r}, 2\ns_bitcmp1_b32 s5, 0\ns_addc_u32 {r}, {r}, 0"
        CG = CW = "s_bfe_u32 s7, s5, 0x30001\ns_xor_b32 s7, s7, 4"
        KH8 = "s_and_b32 s7, s5, 1\ns_lshl_b32 s7, s7, 3"
    else:
        QS = lambda r: f"s_and_b32 {r}, s5, 3"
        CG = f"s_lshr_b32 s7, s5, 2\ns_xor_b32 s7, s7, {CGX}"; CW = f"s_xor_b32 s7, s5, {WCX}\ns_and_b32 s7, s7, 7"; KH8 = "s_and_b32 s7, s5, 8"
    a = Asm()
    LITE = opt.get("lite", 1)
    def stamp(i):
        if debug and (not LITE or i in (0, 13)): a(f"s_memrealtime s[{64+2*i}:{65+2*i}]")
    def cnt(i):
        if debug and not LITE: a(f"s_waitcnt lgkmcnt(0)\ns_sub_u32 s7, 300000, s96\ns_mul_i32 s7, s7, 100\ns_add_u32 s{64+2*i}, s64, s7\ns_addc_u32 s{65+2*i}, s65, 0")
    def spin(): a("s_sub_u32 s96, s96, 1\ns_cbranch_scc1 L_end")
    def spin_ab(dst, sa, sb):
        spin(); a(f"s_and_b32 s7, s96, 15")
        for d, x, y in zip(dst, sa, sb): a(f"s_cselect_b32 {d}, {x}, {y}")
    def unpack(dlo, dhi, src): a(f"v_lshlrev_b32 v{dlo}, 16, v{src}\nv_and_b32 v{dhi}, s56, v{src}")
    def pk(op, d, x, y, mods=""): a(f"v_pk_{op}_f32 v[{d}:{d+1}], v[{x}:{x+1}], v[{y}:{y+1}] {mods}")
    def dma(voff, srd, soff, lds):
        a(f"s_mov_b32 m0, {lds}\nbuffer_load_dwordx4 v{voff}, {srd}, {soff} offen {NTW} lds")
    gu = [0]
    def dma2(voff, srd, soff, lds, stride):
        fl = "" if (opt.get("ntg", 5) >> (2 * (srd == sU) + (soff == "s52"))) & 1 else "nt"
        a(f"s_mov_b32 m0, {lds}\nbuffer_load_dwordx4 v{voff}, {srd}, {soff} offen {fl} lds")
        a(f"s_add_u32 m0, {lds}, 1024\ns_add_u32 s7, {soff}, {4*stride}")
        a(f"buffer_load_dwordx4 v{voff}, {srd}, s7 offen {fl} lds")
    def trfrag(dst, vaddr, off, d2=1024):
        a(f"ds_read_b64_tr_b16 v[{dst}:{dst+1}], v{vaddr} offset:{off}")
        a(f"ds_read_b64_tr_b16 v[{dst+2}:{dst+3}], v{vaddr} offset:{off+d2}")
    def mfma(d, A, B, C=None):
        c = "0" if C is None else f"v[{C}:{C+3}]"
        a(f"v_mfma_f32_16x16x32_bf16 v[{d}:{d+3}], v[{A}:{A+3}], v[{B}:{B+3}], {c}")
    def check_sent(regs, t):
        r = list(regs)
        a(f"v_max3_u32 v{t}, v{r[0]}, v{r[1]}, v{r[2]}"); r = r[3:]
        while len(r) >= 2:
            a(f"v_max3_u32 v{t}, v{t}, v{r[0]}, v{r[1]}"); r = r[2:]
        if r: a(f"v_max_u32 v{t}, v{t}, v{r[0]}")
        a(f"v_cmp_eq_u32 vcc, -1, v{t}")
    def stats(s1, s2, t, vc=None):
        if vc is None: a(f"v_mul_f32 v{t+1}, 0x3b000000, {s1}\nv_mul_f32 v{t+2}, 0x3b000000, {s2}")
        else: a(f"v_mul_f32 v{t+1}, {s1}, v{vc}\nv_mul_f32 v{t+2}, {s2}, v{vc}")
        a(f"v_fma_f32 v{t+2}, -v{t+1}, v{t+1}, v{t+2}\nv_max_f32 v{t+2}, 0, v{t+2}")
        a(f"v_cvt_pk_bf16_f32 v{t+1}, v{t+1}, v{t+2}")
        a(f"v_and_b32 v{t+2}, s56, v{t+1}\nv_lshlrev_b32 v{t+1}, 16, v{t+1}")
        a(f"v_add_f32 v{t+2}, {hex(EPS)}, v{t+2}\nv_cvt_pk_bf16_f32 v{t+2}, v{t+2}, v{t+2}\nv_and_b32 v{t+2}, s56, v{t+2}")
        a(f"v_sqrt_f32 v{t+2}, v{t+2}")
    def stats2(t): a(f"v_cvt_pk_bf16_f32 v{t+2}, v{t+2}, v{t+2}\nv_and_b32 v{t+2}, s56, v{t+2}\nv_rcp_f32 v{t+2}, v{t+2}")
    def wred2(x, y):
        for m in ["quad_perm:[1,0,3,2] row_mask:0xf", "quad_perm:[2,3,0,1] row_mask:0xf", "row_half_mirror row_mask:0xf", "row_mirror row_mask:0xf",
                  "row_bcast:15 row_mask:0xa", "row_bcast:31 row_mask:0xc"]:
            a(f"v_add_f32_dpp v{x}, v{x}, v{x} {m} bank_mask:0xf\nv_add_f32_dpp v{y}, v{y}, v{y} {m} bank_mask:0xf")
    def red8(addr, n=8):
        for w in range(n): a(f"ds_read_b64 v[{24+2*w}:{25+2*w}], v{addr} offset:{w*RW}")
        a("s_waitcnt lgkmcnt(0)")
        pk("add", 24, 24, 26); pk("add", 28, 28, 30); pk("add", 32, 32, 34)
        if n == 8: pk("add", 36, 36, 38)
        pk("add", 24, 24, 28); pk("add", 32, 32, 36); pk("add", 24, 24, 32)
    def gather(lab, n, raw, cp, stride, tag, depth, pm):
        def rnd(m):
            a("s_mov_b32 s51, s52")
            for r in range(n):
                if m and pm: a(f"s_wqm_b64 exec, s[{8+2*r}:{9+2*r}]")
                a(f"buffer_load_dwordx4 v[{raw+4*r}:{raw+3+4*r}], v5, {sWS}, s51 offen sc1")
                if r < n-1: a(f"s_add_u32 s51, s51, {stride}")
        for _ in range(depth): rnd(0)
        a(f"s_branch {lab}_c")
        a(f"{lab}:")
        for _ in range(opt.get("bk" + lab[2], 0)): a(f"buffer_load_dword v123, off, {sWS}, s6 sc1\ns_waitcnt vmcnt(0)")
        if not pm and not opt.get("nm" + lab[2], 0): a("s_wqm_b64 exec, vcc")
        spin()
        rnd(1)
        a("s_mov_b64 exec, -1")
        a(f"{lab}_c:")
        for r in range(n):
            c = cp+4*r
            a(f"s_waitcnt vmcnt({n*depth-1-r})")
            for q in range(4): a(f"v_xor_b32 v{c+q}, {tag}, v{raw+4*r+q}")
            if pm:
                a(f"v_or3_b32 v102, v{c}, v{c+1}, v{c+2}\nv_or_b32 v102, v102, v{c+3}\nv_and_b32 v102, 0xff, v102\nv_cmp_ne_u32 s[{8+2*r}:{9+2*r}], 0, v102")
            elif r == 0: a(f"v_or3_b32 v102, v{c}, v{c+1}, v{c+2}\nv_or_b32 v102, v102, v{c+3}")
            else: a(f"v_or3_b32 v102, v102, v{c}, v{c+1}\nv_or3_b32 v102, v102, v{c+2}, v{c+3}")
            if r: pk("add", 96, cp if r == 1 else 96, c); pk("add", 98, cp+2 if r == 1 else 98, c+2)
            if pm and r >= 2: a(f"s_or_b64 vcc, {'s[8:9]' if r == 2 else 'vcc'}, s[{6+2*r}:{7+2*r}]")
        a("v_permlane32_swap_b32 v96, v98\nv_permlane32_swap_b32 v97, v99")
        if pm: a(f"s_or_b64 vcc, vcc, s[{6+2*n}:{7+2*n}]")
        else: a("v_and_b32 v102, 0xff, v102\nv_cmp_ne_u32 vcc, 0, v102")
        pk("add", 96, 96, 98)
    def flag_set(off):
        a(f"s_lshl_b32 s7, s5, 2\ns_add_u32 s7, s7, s6\ns_add_u32 s7, s7, {O_FLG}\ns_cmp_eq_u32 s3, 0\ns_cselect_b64 exec, 1, 0")
        a(f"buffer_store_dword v1, off, {sWS}, s7 offset:{off}\ns_mov_b64 exec, -1")
    def flag_wait(lab, off, n, vt):
        a(f"s_cmp_lg_u32 s97, 0\ns_cbranch_scc1 {lab}_x\ns_add_u32 s51, s6, {off}\nv_min_u32 v{vt}, {n-1}, v1\nv_lshlrev_b32 v{vt}, 2, v{vt}")
        a(f"{lab}:")
        spin()
        a(f"buffer_load_dword v{vt+1}, v{vt}, {sWS}, s51 offen sc1\ns_waitcnt vmcnt(0)\nv_cmp_eq_u32 vcc, -1, v{vt+1}\ns_cbranch_vccnz {lab}")
        a(f"{lab}_x:")
    def rot(frm, to):
        k = 4 * ((to - frm) & 3)
        return f"row_ror:{k}" if k else "quad_perm:[0,1,2,3]"

    P2 = opt.get("p2", 1)
    if P2:
        a("L_top:")
        stamp(0)
        a("s_load_dwordx8 s[68:75], s[0:1], 0\ns_load_dwordx16 s[76:91], s[0:1], 32")
        a("s_getpc_b64 s[60:61]")
        a("L_pc:")
        a("v_lshrrev_b32 v9, 6, v0\ns_lshr_b32 s5, s2, 3\nv_lshl_add_u32 v2, v9, 5, s5\nv_min_u32 v2, (L_end-L_pc)>>7, v2\nv_lshlrev_b32 v2, 7, v2")
        a("global_load_dword v127, v2, s[60:61]")
        a("s_cmp_ge_u32 s5, 32\ns_cbranch_scc1 L_end")
        a("v_readfirstlane_b32 s3, v9\nv_and_b32 v1, 63, v0\ns_and_b32 s4, s2, 7")
    else:
        a("s_cmp_ge_u32 s2, 256\ns_cbranch_scc1 L_end")
        stamp(0)
        for d, o in [(8,0),(20,24),(12,8),(40,88),(16,16),(24,32),(28,48),(32,56),(44,64),(36,72)]:
            a(f"s_load_dwordx2 s[{d}:{d+1}], s[0:1], {o}")
        a("v_lshrrev_b32 v9, 6, v0\nv_and_b32 v1, 63, v0")
        a("s_getpc_b64 s[60:61]")
        a("L_pc:")
        a("v_readfirstlane_b32 s3, v9")
        a("s_and_b32 s4, s2, 7\ns_lshr_b32 s5, s2, 3")
        a(f"s_lshl_b32 s7, s3, 5\ns_add_u32 s7, s7, s5\ns_lshl_b32 s7, s7, 7\ns_min_u32 s7, s7, L_end-L_pc\nv_mov_b32 v2, s7")
        a("global_load_dword v127, v2, s[60:61]")
    P3 = opt.get("p3", 1)
    SRDS = {8: 8192, 40: 256<<20, 20: 4<<20, 12: 64<<20, 16: 64<<20, 24: 4<<20, 28: 512*3584, 32: 512*3584, 36: 8192, 44: 1792*1024}
    def srd(l):
        for d in l: a(f"s_mov_b32 s{d+2}, {hex(SRDS[d])}\ns_mov_b32 s{d+3}, 0x20000")
    def com1(): a("v_lshrrev_b32 v11, 4, v1\nv_and_b32 v12, 3, v1\nv_bfe_u32 v9, v1, 2, 2")
    def com2():
        a(f"s_lshl_b32 s6, s4, {GSH}\ns_add_u32 s6, s6, {GB}")
        a("s_mov_b32 s56, 0xffff0000\ns_mov_b32 s96, 300000\nv_lshlrev_b32 v8, 3, v1\nv_and_b32 v10, 15, v1\nv_and_b32 v13, 1, v11")
    a("v_lshlrev_b32 v7, 4, v1")
    if not P3: srd(SRDS); com1(); com2()
    if AB0: a("s_cmp_lt_u32 s3, 2\ns_cbranch_scc0 L_kv\ns_barrier\ns_branch L_aux\nL_kv:")
    else: a("s_cmp_lt_u32 s3, 2\ns_cbranch_scc1 L_aux")
    a("s_sub_u32 s3, s3, 2")
    a("v_lshrrev_b32 v4, 3, v1\nv_and_b32 v5, 7, v1\nv_and_b32 v6, 2, v4\nv_xor_b32 v5, v5, v6\nv_lshlrev_b32 v5, 4, v5\nv_lshl_add_u32 v4, v4, 13, v5\nv_xor_b32 v5, 64, v4")
    def kaddr():
        a("v_lshlrev_b32 v2, 4, v12\nv_lshl_add_u32 v2, v11, 6, v2\nv_lshl_add_u32 v2, v9, 10, v2")
        a("s_lshr_b32 s7, s5, 2\ns_lshl_b32 s48, s7, 23\ns_lshl_b32 s7, s4, 20\ns_add_u32 s48, s48, s7")
        a("s_and_b32 s7, s5, 3\ns_lshl_b32 s7, s7, 16\ns_add_u32 s48, s48, s7\ns_lshl_b32 s7, s3, 13\ns_add_u32 s48, s48, s7\ns_add_u32 s48, s48, 786432")
        a("s_add_u32 s49, s48, 4096")
    if P3: srd([8, 20])
    else: kaddr()
    a(f"{QS('s7')}\ns_lshl_b32 s7, s7, 3\ns_add_u32 s7, s7, s3\ns_lshl_b32 s51, s7, 17\ns_lshl_b32 s7, s4, 10\ns_add_u32 s51, s51, s7\n{CG}\ns_lshl_b32 s7, s7, 7\ns_add_u32 s51, s51, s7\ns_add_u32 s52, s51, 65536")
    a("s_lshl_b32 s54, s3, 11\ns_lshl_b32 s55, s3, 10\ns_mov_b32 m0, s54")
    if QSL: a("s_bfe_u32 s61, s51, 0x30007\ns_cmp_eq_u32 s61, 3")
    def kload(t):
        i = 2*t if t < 4 else 2*(t-4)+1
        a(f"buffer_load_dwordx4 v[{16+4*t}:{19+4*t}], v2, {sK}, s{48+i//4} offen offset:{(i%4)*256} {NT}")
    def vload(i): a(f"buffer_load_dwordx4 v[{48+4*i}:{51+4*i}], v3, {sV}, s{48+i//4} offen offset:{(i%4)*256} {NT}")
    if PRO: stamp(14)
    a("s_waitcnt lgkmcnt(0)")
    if P2: a("s_mov_b64 s[8:9], s[68:69]\ns_mov_b64 s[20:21], s[74:75]")
    if PRO: stamp(15)
    a(f"buffer_load_dwordx4 v[96:99], v7, {sX}, s55 offen")
    if QSL: a("s_cbranch_scc1 L_q_late")
    a(f"buffer_load_dwordx4 v4, {sWQ}, s51 offen {NT} lds\ns_add_u32 m0, s54, 1024")
    a(f"buffer_load_dwordx4 v5, {sWQ}, s52 offen {NT} lds")
    a("L_q_late:")
    if P3: srd([12]); com1(); kaddr()
    if P2: a("s_mov_b64 s[12:13], s[70:71]\ns_mov_b64 s[40:41], s[90:91]")
    if B0: a("s_barrier")
    for t in range(K0): kload(t)
    a("s_load_dword s100, s[40:41], 0")
    if P2: a("s_mov_b64 s[16:17], s[72:73]\ns_mov_b64 s[24:25], s[76:77]\ns_mov_b64 s[28:29], s[80:81]\ns_mov_b64 s[32:33], s[82:83]\ns_mov_b64 s[44:45], s[84:85]\ns_mov_b64 s[36:37], s[86:87]")
    if P3: srd([40, 16, 24, 28, 32, 44]); com2()
    stamp(1)
    a("v_lshrrev_b32 v14, 2, v1\nv_lshlrev_b32 v14, 6, v14\nv_lshl_add_u32 v14, v12, 3, v14\nv_lshl_add_u32 v14, v13, 5, v14")
    a("v_lshl_add_u32 v9, v11, 3, v9")
    a("v_lshlrev_b32 v13, 1, v13\nv_xor_b32 v12, v12, v13\nv_lshlrev_b32 v12, 4, v12")
    a("v_lshl_add_u32 v5, v9, 10, v12")
    a("v_mul_u32_u24 v6, 3584, v9\nv_add_u32 v6, v6, v12")
    a("v_lshlrev_b32 v3, 4, v10\nv_lshl_add_u32 v3, v11, 10, v3")
    a("s_and_b32 s50, s5, 1")
    a("s_lshl_b32 s53, s3, 1\ns_add_u32 s53, s53, s50")
    a("s_lshl_b32 s54, s53, 11\ns_xor_b32 s55, s54, 2048")
    a(f"s_mul_i32 s7, s3, 1040\ns_add_u32 s7, s7, {L_OP}\nv_add_u32 v13, s7, v7")
    a("s_mov_b32 s57, 0x3f803f80\nv_mov_b32 v100, 0\nv_mov_b32 v101, 0\nv_mov_b32 v102, 0x3b000000")
    a(f"s_waitcnt vmcnt({K0+2})")
    if QSL:
        a(f"s_cmp_eq_u32 s61, 3\ns_cbranch_scc0 L_q_l2\nv_xor_b32 v103, 64, v4\ns_waitcnt vmcnt({K0})")
        a(f"buffer_load_dwordx4 v4, {sWQ}, s51 offen {NT} lds\ns_add_u32 m0, m0, 1024")
        a(f"buffer_load_dwordx4 v103, {sWQ}, s52 offen {NT} lds")
        a("L_q_l2:")
    stamp(2)
    for i in range(4): a(f"v_dot2c_f32_bf16 v100, s57, v{96+i}\nv_dot2c_f32_bf16 v101, v{96+i}, v{96+i}")
    for i in range(4): unpack(112+2*i, 113+2*i, 96+i)
    wred2(100, 101)
    a("v_readlane_b32 s58, v100, 63\nv_readlane_b32 s59, v101, 63")
    stats("s58", "s59", 109, 102)
    for j in range(4): a(f"v_pk_add_f32 v[{112+2*j}:{113+2*j}], v[{112+2*j}:{113+2*j}], v[110:111] op_sel_hi:[1,0] neg_lo:[0,1] neg_hi:[0,1]")
    stats2(109)
    for j in range(4): a(f"v_cvt_pk_bf16_f32 v{96+j}, v{112+2*j}, v{113+2*j}")
    for j in range(4): unpack(112+2*j, 113+2*j, 96+j)
    for j in range(4): a(f"v_pk_mul_f32 v[{112+2*j}:{113+2*j}], v[{112+2*j}:{113+2*j}], v[110:111] op_sel:[0,1] op_sel_hi:[1,1]")
    for j in range(4): a(f"v_cvt_pk_bf16_f32 v{96+j}, v{112+2*j}, v{113+2*j}")
    a("ds_write_b128 v13, v[96:99]")
    for t in range(K0, K0+K1): kload(t)
    for i in range(16): a(f"v_mov_b32 v{80+i}, 0")
    a(f"v_add_u32 v13, {L_QL}, v7")
    a(f"v_and_b32 v12, 3, v10\nv_lshlrev_b32 v12, 5, v12\nv_add_u32 v12, {L_MX}, v12")
    a(f"s_lshl_b32 s7, s3, 2\nv_add_u32 v9, s7, v12")
    a(f"s_mov_b32 s57, {hex(SCALE)}\ns_mov_b32 s58, {hex(LOG2E)}\ns_mov_b32 s59, 0x05040100\ns_mov_b32 s60, 0x07060302")
    a(f"s_mul_i32 s7, s3, {RW}\ns_add_u32 s7, s7, {L_RD}\nv_mul_u32_u24 v15, {RG}, v11\nv_lshl_add_u32 v15, v10, 4, v15\nv_add_u32 v15, s7, v15")
    a("s_lshr_b32 s7, s5, 2\ns_and_b32 s61, s5, 2\ns_lshl_b32 s61, s61, 2\ns_add_u32 s61, s61, s7")
    a("s_lshl_b32 s98, s3, 13\ns_lshl_b32 s7, s50, 11\ns_add_u32 s98, s98, s7\ns_lshl_b32 s7, s61, 4\ns_add_u32 s98, s98, s7\ns_add_u32 s98, s98, s6")
    a(f"s_lshl_b32 s99, s3, 4\ns_add_u32 s99, s99, s61\ns_lshl_b32 s99, s99, 1\ns_add_u32 s99, s99, s50\ns_lshl_b32 s99, s99, 2\ns_add_u32 s99, s99, s6\ns_add_u32 s99, s99, {O_LSE}")
    if QSL: a(f"s_bfe_u32 s7, s51, 0x30007\ns_cmp_eq_u32 s7, 3\ns_cbranch_scc0 L_q_l3\ns_waitcnt vmcnt({K1})\nL_q_l3:")
    a(f"s_waitcnt vmcnt({K0+K1}) lgkmcnt(0)\ns_barrier")
    if BQ: a("s_barrier")
    stamp(3)
    for t in range(K0+K1, 8): kload(t)
    a("s_barrier")
    for i in range(M1): vload(i)
    if M1: a("s_barrier")
    if PAIR: a("s_barrier")
    for i in range(M1, 8): vload(i)
    a("s_cmp_ge_u32 s5, 30\ns_cbranch_scc1 L_D\ns_cmp_ge_u32 s5, 16\ns_cbranch_scc1 L_G")

    def attn(role, hook):
        n = hook(0)
        a(f"@warm {role} 8")
        stamp(4)
        if debug and role != "W" and not PRO and not LITE: a(f"s_waitcnt vmcnt({8+n})"); stamp(14); a(f"s_waitcnt vmcnt({n if DIAG else 8+n-M1})"); stamp(15)
        a("s_barrier")
        a(f"@pb {role}")
        stamp(5)
        a(f"ds_read_b128 v[104:107], v13\nv_mov_b32 v110, {L_MD}\nds_read_b32 v108, v110")
        a(f"s_waitcnt vmcnt({8 + n}) lgkmcnt(0)")
        D = [96] + [16+4*(t-1) for t in range(1, 8)]
        for t in range(8): mfma(D[t], 16+4*t, 104)
        def op(k, t):
            tt = t & 3; j = (tt + k) & 3
            if k < 3: a(f"v_add_f32_dpp v{D[t]+tt}, v{D[t]+j}, v{D[t]+tt} {rot(j, tt)} row_mask:0xf bank_mask:0xf")
            else: a(f"v_add_f32_dpp v{100+(t>>2)}, v{D[t]+j}, v{D[t]+tt} {rot(j, tt)} row_mask:0xf bank_mask:{hex(1<<tt)}")
        for t in range(8): op(1, t)
        a("v_readfirstlane_b32 s97, v108")
        od = [0, 4, 1, 5, 2, 6, 3, 7]
        for i in range(11):
            if i < 8: op(2, od[i])
            if i >= 3: op(3, od[i-3])
        a("v_cvt_pk_bf16_f32 v102, v100, v101"); unpack(100, 101, 102)
        a("v_mul_f32 v100, s57, v100\nv_mul_f32 v101, s57, v101")
        a("v_cvt_pk_bf16_f32 v102, v100, v101"); unpack(100, 101, 102)
        def allred(opn):
            a(f"v_{opn}_f32 v102, v100, v101")
            a(f"v_{opn}_f32_dpp v102, v102, v102 row_ror:4 row_mask:0xf bank_mask:0xf\nv_{opn}_f32_dpp v102, v102, v102 row_ror:8 row_mask:0xf bank_mask:0xf")
            a(f"v_mov_b32 v103, v102\nv_permlane16_swap_b32 v102, v103\nv_{opn}_f32 v102, v102, v103")
            a(f"v_mov_b32 v103, v102\nv_permlane32_swap_b32 v102, v103\nv_{opn}_f32 v102, v102, v103")
        allred("max")
        a("ds_write_b32 v9, v102")
        a("s_waitcnt lgkmcnt(0)\ns_barrier")
        a("ds_read_b128 v[104:107], v12\nds_read_b128 v[108:111], v12 offset:16")
        a("s_waitcnt lgkmcnt(0)")
        a("v_max3_f32 v102, v104, v105, v106\nv_max3_f32 v103, v107, v108, v109\nv_max3_f32 v102, v102, v110, v111\nv_max_f32 v104, v102, v103")
        a("v_sub_f32 v100, v100, v104\nv_sub_f32 v101, v101, v104\nv_mul_f32 v100, s58, v100\nv_mul_f32 v101, s58, v101\nv_exp_f32 v100, v100\nv_exp_f32 v101, v101")
        a("v_readlane_b32 s101, v104, s3")
        a("v_cvt_pk_bf16_f32 v105, v100, v101")
        allred("add")
        a(f"ds_write_b32 v9, v102 offset:{L_LS-L_MX}")
        for x in range(4):
            for c in range(4): a(f"v_mov_b32_dpp v{80+4*x+c}, v105 {rot(c, x)} row_mask:0xf bank_mask:{hex(1<<x)}")
        stamp(6)
        n += hook(1)
        a(f"s_lshl_b32 s7, s3, 11\ns_add_u32 s7, s7, {L_OP}\nv_add_u32 v12, s7, v8\nv_add_u32 v13, 1024, v12")
        a(f"s_lshl_b32 s7, s3, 9\ns_add_u32 s7, s7, {L_OP}\nv_and_b32 v106, 3, v1\nv_lshrrev_b32 v107, 2, v1\nv_lshlrev_b32 v104, 3, v107\nv_lshl_add_u32 v104, v106, 7, v104\nv_add_u32 v104, s7, v104")
        a(f"s_lshl_b32 s7, s3, 5\ns_add_u32 s7, s7, {L_LS}\nv_mov_b32 v105, s7")
        a("v_and_b32 v9, 7, v107\nv_lshlrev_b32 v9, 8, v9\nv_lshl_add_u32 v9, v106, 2, v9\nv_lshrrev_b32 v107, 5, v1\nv_lshl_add_u32 v9, v107, 12, v9")
        for c in range(4):
            a(f"s_waitcnt vmcnt({n + 6 - 2*c})")
            for x in range(4):
                a(f"v_perm_b32 v{16+8*x+c}, v{48+4*(2*c+1)+x}, v{48+4*(2*c)+x}, s59")
                a(f"v_perm_b32 v{20+8*x+c}, v{48+4*(2*c+1)+x}, v{48+4*(2*c)+x}, s60")
        stamp(7)
        for x in range(4):
            mfma(96, 80+4*x, 16+8*x, None if x == 0 else 96)
            mfma(100, 80+4*x, 20+8*x, None if x == 0 else 100)
        hook(2)
        a("ds_write2_b32 v12, v96, v100 offset0:0 offset1:1\nds_write2_b32 v12, v97, v101 offset0:128 offset1:129")
        a("ds_write2_b32 v13, v98, v102 offset0:0 offset1:1\nds_write2_b32 v13, v99, v103 offset0:128 offset1:129")
        a("s_waitcnt lgkmcnt(0)\ns_barrier")
        stamp(8)
        a(f"s_cmp_ge_u32 s3, 4\ns_cbranch_scc1 L_pub_done{role}")
        a("ds_read_b128 v[96:99], v105\nds_read_b128 v[100:103], v105 offset:16")
        for w in range(8): a(f"ds_read_b64 v[{16+2*w}:{17+2*w}], v104 offset:{w*2048}")
        a("s_waitcnt lgkmcnt(8)" if (not debug or LITE) else "s_waitcnt lgkmcnt(0)")
        pk("add", 96, 96, 98); pk("add", 100, 100, 102); pk("add", 96, 96, 100); a("v_add_f32 v96, v96, v97")
        a("v_rcp_f32 v97, v96\nv_log_f32 v98, v96")
        a("s_waitcnt lgkmcnt(0)")
        pk("add", 16, 16, 18); pk("add", 20, 20, 22); pk("add", 24, 24, 26); pk("add", 28, 28, 30)
        pk("add", 16, 16, 20); pk("add", 24, 24, 28); pk("add", 16, 16, 24)
        a("v_mul_f32 v16, v16, v97\nv_mul_f32 v17, v17, v97\nv_cvt_pk_bf16_f32 v16, v16, v17")
        a("v_mov_b32 v99, s101\nv_fmac_f32 v98, s58, v99")
        a("v_min_u32 v16, -2, v16\nv_min_u32 v98, -2, v98")
        a(f"buffer_store_dword v16, v9, {sWS}, s98 offen")
        a("s_mov_b64 exec, 1")
        a(f"buffer_store_dword v98, off, {sWS}, s99")
        a(f"s_mov_b64 exec, -1\ns_cmp_eq_u32 s97, 0\ns_cbranch_scc1 L_pub_done{role}")
        a(f"s_lshl_b32 s7, s5, 10\ns_add_u32 s7, s7, s6\ns_lshl_b32 s49, s3, 8\ns_add_u32 s7, s7, s49\ns_add_u32 s7, s7, {BX}\ns_add_u32 s49, s99, {BX}\nv_lshlrev_b32 v4, 2, v1")
        a(f"buffer_store_dword v98, off, {sWS}, s49 sc1\nbuffer_store_dword v16, v4, {sWS}, s7 offen sc1")
        a(f"L_pub_done{role}:")
        a("s_barrier")
        stamp(9)
        if debug and GS and role == "G": a(f"s_cmp_ge_u32 s4, 4\ns_cbranch_scc1 L_gs\ns_sleep {GS}\nL_gs:")
        if opt.get("ggate") and role == "G":
            a("s_cmp_ge_u32 s4, 4\ns_cbranch_scc1 L_gg_x\ns_mov_b32 s49, s51")
            flag_wait("L_gg", O_FLG + (256 if opt["ggate"] == 1 else 0), 32 if opt["ggate"] == 1 else 16, 122)
            a("s_cmp_ge_u32 s4, 4\ns_cselect_b32 s51, s51, s49")
        hook(3)

    def hookW(p):
        n = 0
        if p == 0:
            a(f"s_lshl_b32 s51, s4, 19\n{KH8}\ns_add_u32 s7, s7, s3\ns_lshl_b32 s7, s7, 15\ns_add_u32 s51, s51, s7\n{CW}\ns_lshl_b32 s7, s7, 7\ns_add_u32 s51, s51, s7\ns_add_u32 s52, s51, 16384")
            a("s_lshl_b32 s54, s3, 12\ns_add_u32 s55, s54, 2048")
            a("s_and_b32 s7, s5, 7\ns_lshl_b32 s62, s7, 10\ns_and_b32 s7, s3, 3\ns_lshl_b32 s7, s7, 8\ns_add_u32 s62, s62, s7")
            a("v_and_b32 v6, 31, v1\nv_lshlrev_b32 v6, 3, v6\nv_lshrrev_b32 v113, 5, v1\nv_lshl_add_u32 v6, v113, 2, v6")
            a("v_lshrrev_b32 v113, 3, v1\nv_and_b32 v114, 7, v1\nv_and_b32 v115, 2, v113\nv_xor_b32 v114, v114, v115\nv_lshlrev_b32 v114, 4, v114\nv_lshl_add_u32 v113, v113, 10, v114\nv_xor_b32 v114, 64, v113")
        if p == 1 and not XL: a(f"buffer_load_dword v112, v6, {sX}, s62 offen"); n += 1
        if p == 0: a("s_bfe_u32 s7, s51, 0x30007\ns_cmp_eq_u32 s7, 3\ns_cselect_b64 s[0:1], -1, 0")
        for pos, so, ld in ((W1, "s51", "s54"), (W2, "s52", "s55")):
            if WSL and pos != 3 and p in (pos, 3): a("s_mov_b64 exec, s[0:1]" if p == 3 else "s_not_b64 exec, s[0:1]")
            if p == pos or (WSL and p == 3):
                dma(113, sWO, so, ld)
                a(f"s_add_u32 m0, {ld}, 1024\ns_add_u32 s7, {so}, 8192\nbuffer_load_dwordx4 v114, {sWO}, s7 offen {NTW} lds"); n += 2
                if WSL: a("s_mov_b64 exec, -1")
        if p == 1:
            a("v_bfe_u32 v116, v1, 2, 2\nv_and_b32 v117, 3, v1\nv_lshlrev_b32 v14, 10, v11\nv_lshl_add_u32 v14, v116, 7, v14\nv_lshl_add_u32 v14, v117, 3, v14\nv_lshrrev_b32 v116, 1, v116\nv_lshl_add_u32 v14, v116, 5, v14\nv_and_b32 v116, 1, v11\nv_lshl_add_u32 v14, v116, 6, v14")
            a("v_add_u32 v14, s54, v14\nv_xor_b32 v3, 32, v14\nv_xor_b32 v116, 64, v14\nv_xor_b32 v117, 64, v3")
            a(f"{KH8}\ns_add_u32 s7, s7, s3\ns_lshr_b32 s63, s7, 2\ns_lshl_b32 s63, s63, 7\ns_add_u32 s63, s63, s6\ns_add_u32 s63, s63, {O_LSE}")
            a("s_lshl_b32 s61, s7, 6\ns_lshr_b32 s7, s7, 1\ns_lshl_b32 s48, s7, 12\ns_add_u32 s48, s48, s6\ns_and_b32 s7, s3, 1\ns_lshl_b32 s7, s7, 10\ns_add_u32 s48, s48, s7")
            a(f"v_lshlrev_b32 v2, 3, v10\nv_add_u32 v115, {L_OP+32-L_RD}, v15")
        return n
    attn("W", hookW)
    def w_loads():
        a(f"buffer_load_dwordx2 v[32:33], v2, {sWS}, s63 offen sc1")
        for u in range(2): a(f"buffer_load_dwordx4 v[{16+4*u}:{19+4*u}], v7, {sWS}, s48 offen offset:{u*2048} sc1")
    if WG_:
        a("s_waitcnt vmcnt(0)")
        trfrag(48, 14, 0, 512); trfrag(52, 3, 0, 512); trfrag(56, 116, 0, 512); trfrag(60, 117, 0, 512)
        flag_wait("L_wg", O_FLG+256, 32, 122)
    w_loads()
    a("v_and_b32 v9, 7, v10\nv_lshrrev_b32 v13, 3, v10\nv_lshl_add_u32 v13, v9, 1, v13")
    a("v_lshlrev_b32 v12, 11, v13\nv_lshl_add_u32 v12, v11, 4, v12")
    a(f"s_add_u32 s49, s6, s61\ns_add_u32 s49, s49, {BX}\ns_add_u32 s55, s63, {BX}")
    a("s_waitcnt vmcnt(3)")
    stamp(10)
    if not WG_: trfrag(48, 14, 0, 512); trfrag(52, 3, 0, 512); trfrag(56, 116, 0, 512); trfrag(60, 117, 0, 512)
    WD = opt.get("wd", 1)
    if WD > 1 or opt.get("wnew", 1):
        a("s_cmp_eq_u32 s97, 0\ns_cselect_b32 s49, s48, s49\ns_cselect_b32 s7, 2, 1\ns_cselect_b32 s63, s63, s55\ns_cselect_b64 vcc, -1, 0\nv_cndmask_b32 v12, v12, v7, vcc\ns_lshl_b32 s7, s7, 10\ns_add_u32 s48, s49, s7")
        def w_round():
            a(f"buffer_load_dwordx2 v[32:33], v2, {sWS}, s63 offen sc1")
            a(f"buffer_load_dwordx4 v[16:19], v12, {sWS}, s49 offen sc1\nbuffer_load_dwordx4 v[20:23], v12, {sWS}, s48 offen sc1")
        a("s_cmp_eq_u32 s97, 0\ns_cbranch_scc1 L_w_f")
        a("s_waitcnt vmcnt(0)\nv_mov_b32 v32, -1\ns_mov_b64 vcc, -1")
        w_round()
        a("L_w_f:")
        for _ in range(WD-2): w_round()
        if WD == 1: a("s_branch L_w_c")
        a("L_w_poll:\ns_mov_b64 exec, vcc")
        spin(); w_round()
        a(f"s_mov_b64 exec, -1\nL_w_c:\ns_waitcnt vmcnt({3*WD-3})")
        check_sent(list(range(16, 24)) + [32, 33], 37)
        a("s_cbranch_vccnz L_w_poll\ns_waitcnt lgkmcnt(0)")
        for c in range(4): mfma(64+8*c, 48+4*c, 16)
        a("v_max_f32 v36, v32, v33")
        for c in range(2): mfma(68+8*c, 48+4*c, 20)
        a("v_max_f32_dpp v36, v36, v36 row_ror:8 row_mask:0xf bank_mask:0xf")
        a("v_sub_f32 v34, v32, v36\nv_sub_f32 v35, v33, v36\nv_exp_f32 v34, v34\nv_exp_f32 v35, v35")
        for c in range(2, 4): mfma(68+8*c, 48+4*c, 20)
        a("v_add_f32 v36, v34, v35")
        a("v_add_f32_dpp v36, v36, v36 row_ror:8 row_mask:0xf bank_mask:0xf\nv_rcp_f32 v36, v36")
        a("v_mul_f32 v34, v34, v36\nv_mul_f32 v38, v35, v36")
    else:
        a("s_cmp_eq_u32 s97, 0\ns_cbranch_scc1 L_w_go\ns_waitcnt vmcnt(0)")
        a("L_w_b:")
        a(f"buffer_load_dwordx2 v[32:33], v2, {sWS}, s55 offen sc1")
        for jp in range(2): a(f"buffer_load_dwordx4 v[{16+4*jp}:{19+4*jp}], v12, {sWS}, s49 offen offset:{jp*1024} sc1")
        a("s_branch L_w_x")
        a("L_w_poll:")
        if MASKP: a("s_mov_b64 exec, vcc")
        spin(); a("s_cmp_eq_u32 s97, 0\ns_cbranch_scc0 L_w_b")
        w_loads()
        a("L_w_x:")
        if MASKP: a("s_mov_b64 exec, -1")
        a("L_w_go:")
        a("s_waitcnt vmcnt(1) lgkmcnt(0)")
        for c in range(4): mfma(64+8*c, 48+4*c, 16)
        a("v_max_f32 v36, v32, v33")
        a("v_max_f32_dpp v36, v36, v36 row_ror:8 row_mask:0xf bank_mask:0xf")
        a("v_sub_f32 v34, v32, v36\nv_sub_f32 v35, v33, v36\nv_exp_f32 v34, v34\nv_exp_f32 v35, v35")
        a("s_waitcnt vmcnt(0)")
        for c in range(4): mfma(68+8*c, 48+4*c, 20)
        a("v_add_f32 v36, v34, v35")
        a("v_add_f32_dpp v36, v36, v36 row_ror:8 row_mask:0xf bank_mask:0xf\nv_rcp_f32 v36, v36")
        check_sent(list(range(16, 24)) + [32, 33], 37)
        a("v_mul_f32 v34, v34, v36\nv_mul_f32 v38, v35, v36")
        if debug: a("s_cmp_lg_u32 s96, 300000\ns_cbranch_scc1 L_dw1"); stamp(2); a("L_dw1:")
        a("s_cbranch_vccnz L_w_poll")
    stamp(11)
    for st in range(2):
        rs = (64+8*st, 66+8*st, 80+8*st, 82+8*st)
        for r in rs: pk("mul", r, r, 34, "op_sel_hi:[1,0]")
        for r in rs: a(f"v_pk_fma_f32 v[{r}:{r+1}], v[{r+4}:{r+5}], v[38:39], v[{r}:{r+1}] op_sel_hi:[1,0,1]")
        for r in range(4): a(f"v_add_f32_dpp v{64+8*st+r}, v{64+8*st+r}, v{64+8*st+r} row_ror:8 row_mask:0xf bank_mask:0x3")
        for r in range(4): a(f"v_add_f32_dpp v{64+8*st+r}, v{80+8*st+r}, v{80+8*st+r} row_ror:8 row_mask:0xf bank_mask:0xc")
        a(f"ds_write_b128 v{15 if st == 0 else 115}, v[{64+8*st}:{67+8*st}]")
    a("s_waitcnt lgkmcnt(0)\ns_barrier")
    stamp(12); cnt(1)
    a("s_cmp_ge_u32 s5, 8\ns_cbranch_scc1 L_kv_end\ns_cmp_ge_u32 s3, 4\ns_cbranch_scc1 L_kv_end")
    a(f"s_lshl_b32 s52, s62, 1\ns_add_u32 s52, s52, {WP}\ns_add_u32 s100, s100, 1\ns_and_b32 s100, s100, 0xff")
    if XL: a(f"buffer_load_dword v112, v6, {sX}, s62 offen")
    else: unpack(120, 121, 112)
    a(f"s_and_b32 s7, s5, 4\ns_add_u32 s7, s7, s3\ns_lshl_b32 s48, s7, 10\ns_and_b32 s7, s5, 3\ns_lshl_b32 s7, s7, 4\ns_add_u32 s48, s48, s7\ns_add_u32 s48, s48, s6\ns_add_u32 s48, s48, {O_XN}")
    a("v_lshrrev_b32 v9, 4, v6\nv_lshlrev_b32 v9, 6, v9\nv_and_b32 v5, 12, v6\nv_add_u32 v9, v5, v9")
    a("v_and_b32 v5, 31, v1\nv_lshlrev_b32 v5, 4, v5\nv_lshrrev_b32 v4, 5, v1\nv_lshl_add_u32 v5, v4, 14, v5")
    a(f"s_add_u32 s49, s62, s6\ns_add_u32 s49, s49, {O_XN+BX}")
    a(f"s_lshl_b32 s7, s5, 7\ns_add_u32 s54, s6, s7\ns_add_u32 s54, s54, {O_H}\ns_and_b32 s7, s4, 1\ns_lshl_b32 s7, s7, 7\ns_sub_u32 s54, s54, s7\ns_xor_b32 s55, s54, {BX}")
    a("s_bitcmp1_b32 s4, 0\ns_cselect_b32 s58, s56, 0xffff\ns_mov_b32 s59, s58")
    a(f"s_lshl_b32 s7, s3, 3\ns_add_u32 s7, s7, {L_MX}\nv_mov_b32 v12, s7\nv_mov_b32 v13, {L_MX}")
    if RG_: flag_wait("L_rg", O_FLG, 16, 122)
    if XL: a("s_waitcnt vmcnt(0)"); unpack(120, 121, 112)
    if XG == 2: flag_set(384)
    if debug and opt.get("rs"): a(f"s_sleep {opt['rs']}")
    gather("L_r_poll", 8, 16, 48, 32768, "s100", RD, opt.get("rpm", 0))
    a("v_cvt_pk_bf16_f32 v100, v96, v97")
    unpack(96, 97, 100)
    a("s_cbranch_scc1 L_r_poll" if opt.get("rpm", 0) else "s_cbranch_vccnz L_r_poll")
    stamp(13); cnt(3)
    if XG == 1: flag_set(384)
    pk("add", 96, 96, 120)
    a("v_cvt_pk_bf16_f32 v100, v96, v97")
    unpack(96, 97, 100)
    a("v_add_f32 v108, v96, v97\nv_mul_f32 v109, v96, v96\nv_fmac_f32 v109, v97, v97")
    wred2(108, 109)
    a("s_mov_b32 exec_lo, 0\ns_mov_b32 exec_hi, 0x80000000")
    a("ds_write_b64 v12, v[108:109]")
    a("s_mov_b64 exec, -1\nv_min_u32 v100, -2, v100")
    a("s_waitcnt lgkmcnt(0)\ns_barrier")
    stamp(15)
    a("ds_read_b128 v[104:107], v13\nds_read_b128 v[108:111], v13 offset:16")
    a("s_waitcnt lgkmcnt(0)")
    pk("add", 104, 104, 106); pk("add", 108, 108, 110); pk("add", 104, 104, 108)
    stats("v104", "v105", 109)
    a(f"v_pk_add_f32 v[96:97], v[96:97], v[110:111] op_sel_hi:[1,0] neg_lo:[0,1] neg_hi:[0,1]")
    stats2(109)
    a("v_cvt_pk_bf16_f32 v101, v96, v97")
    unpack(96, 97, 101)
    a("v_mul_f32 v96, v96, v111\nv_mul_f32 v97, v97, v111\nv_cvt_pk_bf16_f32 v101, v96, v97")
    if opt.get("x2", 1):
        a("v_min_u32 v102, -2, v101\nv_min_u32 v103, -2, v101\nv_min_u32 v101, -2, v101\nv_permlane32_swap_b32 v102, v103\ns_mov_b32 exec_hi, 0")
        a(f"buffer_store_dwordx2 v[102:103], v9, {sWS}, s48 offen\ns_mov_b64 exec, -1")
    else: a(f"v_min_u32 v101, -2, v101\nbuffer_store_dword v101, v9, {sWS}, s48 offen")
    stamp(14)
    a("s_lshr_b32 s7, s4, 1\ns_cmp_lg_u32 s7, s3\ns_cbranch_scc1 L_r_noh")
    a("s_mov_b64 exec, s[58:59]")
    a(f"buffer_store_dword v100, v6, {sWS}, s54 offen")
    a("s_cmp_eq_u32 s97, 0\ns_cbranch_scc1 L_r_noh")
    a(f"buffer_store_dword v100, v6, {sWS}, s55 offen sc1")
    a("L_r_noh:")
    a("s_mov_b64 exec, -1\ns_cmp_eq_u32 s97, 0\ns_cbranch_scc1 L_kv_end")
    a(f"buffer_store_dword v101, v6, {sWS}, s49 offen sc1")
    a("s_branch L_kv_end")
    a("@pe W")
    a("L_G:")
    DSL = opt.get("dsl", 1); DN = opt.get("dn", 4)
    def dn_dma():
        a(f"s_lshl_b32 s7, s3, 12\ns_add_u32 m0, s7, {L_DN}\ns_mov_b32 s7, s63")
        for i in range(4):
            a(f"buffer_load_dwordx4 v{113+(i&1)}, {sD}, s7 offen {'' if opt.get('ntd', 0) else 'nt'} lds")
            if i < 3: a("s_add_u32 m0, m0, 1024\ns_add_u32 s7, s7, 8192")
    def hookG(p):
        n = 0
        if DSL and p == GSP:
            if DSL == 1: a("s_mov_b64 exec, s[0:1]")
            dn_dma(); n += 4
            a("s_mov_b64 exec, -1")
        if p == 0:
            a("s_sub_u32 s61, s5, 16")
            a("s_mul_i32 s7, s4, 7\ns_lshr_b32 s62, s61, 1\ns_add_u32 s62, s62, s7")
            a(f"s_mul_i32 s51, s53, {32*3584}\ns_lshl_b32 s7, s62, 6\ns_add_u32 s51, s51, s7")
            a(f"s_xor_b32 s7, s53, 1\ns_mul_i32 s52, s7, {32*3584}\ns_lshl_b32 s7, s62, 6\ns_add_u32 s52, s52, s7")
            a("s_lshl_b32 s54, s3, 13\ns_lshl_b32 s7, s50, 11\ns_add_u32 s54, s54, s7")
            a("s_lshl_b32 s63, s62, 15\ns_lshl_b32 s7, s3, 7\ns_add_u32 s63, s63, s7")
            a("s_bitcmp1_b32 s62, 0\ns_cbranch_scc0 L_t_nosw")
            a("s_mov_b64 s[0:1], s[28:29]\ns_mov_b64 s[28:29], s[32:33]\ns_mov_b64 s[32:33], s[0:1]\ns_xor_b32 s54, s54, 4096")
            a("L_t_nosw:")
            a("s_xor_b32 s55, s54, 2048")
            a("v_lshrrev_b32 v113, 3, v1\nv_and_b32 v114, 7, v1\nv_and_b32 v115, 2, v113\nv_xor_b32 v114, v114, v115\nv_lshlrev_b32 v114, 4, v114\nv_lshl_add_u32 v113, v113, 10, v114\nv_xor_b32 v114, 64, v113")
        if p == 0: a("s_and_b32 s7, s62, 6\ns_cmp_eq_u32 s7, 6\ns_cselect_b64 s[0:1], -1, 0")
        for u, (so, ld) in enumerate((("s51", "s54"), ("s52", "s55"))):
            if u < GSL and p in (GSP, 3):
                a("s_mov_b64 exec, s[0:1]" if p != 3 else "s_not_b64 exec, s[0:1]")
                dma2(6, sG, so, ld, 3584); n += 2
                a("s_mov_b64 exec, -1")
            elif u >= GSL and p == (G1, G2)[u]: dma2(6, sG, so, ld, 3584); n += 2
            if p == 3 and (GUB >> u) & 1: a("s_barrier")
        return n
    attn("G", hookG)
    a("s_xor_b32 s54, s54, 4096\ns_xor_b32 s55, s55, 4096")
    dma2(6, sU, "s51", "s54", 3584)
    if GUB & 4: a("s_barrier")
    dma2(6, sU, "s52", "s55", 3584)
    if GUB & 8: a("s_barrier")
    a(f"s_lshl_b32 s54, s3, 12\ns_add_u32 s54, s54, {L_DN}")
    if DSL == 1: a("s_not_b64 exec, s[0:1]")
    if DSL < 2: dn_dma()
    a("s_mov_b64 exec, -1")
    a("v_bfe_u32 v116, v1, 2, 2\nv_and_b32 v117, 3, v1\nv_lshlrev_b32 v118, 10, v11\nv_lshl_add_u32 v118, v116, 7, v118\nv_lshl_add_u32 v118, v117, 3, v118\nv_lshrrev_b32 v119, 1, v116\nv_lshl_add_u32 v118, v119, 5, v118\nv_and_b32 v119, 1, v11\nv_lshl_add_u32 v118, v119, 6, v118")
    a("v_add_u32 v118, s54, v118\nv_xor_b32 v119, 32, v118\nv_xor_b32 v120, 64, v118\nv_xor_b32 v121, 64, v119")
    a(f"v_lshlrev_b32 v122, 4, v11\nv_lshl_add_u32 v122, v117, 6, v122\nv_add_u32 v122, {L_PB}, v122")
    a("v_lshlrev_b32 v123, 8, v116\nv_lshl_add_u32 v123, v11, 6, v123\nv_lshl_add_u32 v123, v117, 4, v123\nv_mov_b32 v124, 0xff")
    a(f"s_lshl_b32 s7, s62, 1\ns_add_u32 s7, s7, s50\ns_lshl_b32 s7, s7, 3\ns_add_u32 s7, s7, s3\ns_lshl_b32 s63, s7, 10\ns_add_u32 s63, s63, {PO}\ns_add_u32 s100, s100, 1")
    a(f"s_lshl_b32 s7, s3, 13\nv_add_u32 v14, s7, v14\nv_xor_b32 v9, 32, v14")
    a(f"v_and_b32 v12, 3, v10\nv_lshlrev_b32 v13, 10, v12\nv_lshl_add_u32 v13, v11, 4, v13\nv_lshlrev_b32 v12, 4, v12\nv_lshl_add_u32 v12, v11, 6, v12")
    a(f"s_lshl_b32 s48, s50, 12\ns_add_u32 s48, s48, s6\ns_add_u32 s48, s48, {O_XN}\ns_lshl_b32 s7, s3, 7\ns_add_u32 s49, s48, s7\ns_add_u32 s49, s49, {BX}\ns_lshl_b32 s7, s3, 9\ns_add_u32 s48, s48, s7")
    a("s_waitcnt vmcnt(0)")
    stamp(10)
    for t in range(2):
        for m in range(2):
            for ks in range(2): trfrag(48 + 16*t + 8*m + 4*ks, 14 if t == 0 else 9, m*4096 + ks*2048)
    for c in range(4): trfrag(80+4*c, 118+c, 0, 512)
    if GD > 1 or opt.get("gnew"):
        a("s_cmp_eq_u32 s97, 0\ns_cselect_b32 s49, s48, s49\ns_cselect_b32 s7, 256, 64\ns_cselect_b64 vcc, -1, 0\nv_cndmask_b32 v12, v13, v12, vcc\ns_add_u32 s48, s49, s7")
        def g_round(): a(f"buffer_load_dwordx4 v[16:19], v12, {sWS}, s49 offen sc1\nbuffer_load_dwordx4 v[20:23], v12, {sWS}, s48 offen sc1")
        if XG: a("s_barrier")
        a("L_g_re:")
        for _ in range(GD-1): g_round()
        a("L_g_poll:")
        spin(); g_round()
        a(f"s_waitcnt vmcnt({2*GD-2})")
        check_sent(range(16, 24), 24)
        a("s_cmp_eq_u32 s97, 0\ns_cbranch_vccnz L_g_poll\ns_cbranch_scc0 L_g_sl\nL_g_ok:\ns_waitcnt lgkmcnt(0)")
        for c in range(4): mfma(96+4*c, 48+8*c, 16)
        for c in range(4): mfma(96+4*c, 52+8*c, 20, 96+4*c)
    else:
        a("s_branch L_g_poll")
        a("L_g_b:")
        a(f"buffer_load_dwordx4 v[16:19], v13, {sWS}, s49 offen sc1\nbuffer_load_dwordx4 v[20:23], v13, {sWS}, s49 offen offset:64 sc1")
        a("s_branch L_g_go")
        a("L_g_poll:")
        spin(); a("s_cmp_eq_u32 s97, 0\ns_cbranch_scc0 L_g_b")
        a(f"buffer_load_dwordx4 v[16:19], v12, {sWS}, s48 offen sc1\nbuffer_load_dwordx4 v[20:23], v12, {sWS}, s48 offen offset:256 sc1")
        a("L_g_go:")
        a("s_waitcnt vmcnt(1) lgkmcnt(0)")
        for c in range(4): mfma(96+4*c, 48+8*c, 16)
        a("s_waitcnt vmcnt(0)")
        for c in range(4): mfma(96+4*c, 52+8*c, 20, 96+4*c)
        check_sent(range(16, 24), 24)
        a("s_cbranch_vccnz L_g_poll")
    stamp(11)
    for c in range(1, 4):
        for r in range(4): a(f"v_mov_b32_dpp v{96+r}, v{96+4*c+r} quad_perm:[0,1,2,3] row_mask:0xf bank_mask:{hex(1<<c)}")
    a("ds_write_b128 v15, v[96:99]")
    a("s_waitcnt lgkmcnt(0)\ns_barrier")
    stamp(12)
    a("s_barrier")
    a("ds_read_b128 v[28:31], v122\ns_waitcnt lgkmcnt(0)")
    for c in range(4): mfma(96+4*c, 80+4*c, 28)
    for c in range(1, 4):
        for r in range(4): a(f"v_mov_b32_dpp v{96+r}, v{96+4*c+r} quad_perm:[0,1,2,3] row_mask:0xf bank_mask:{hex(1<<c)}")
    for r in range(4): a(f"v_bfi_b32 v{96+r}, v124, s100, v{96+r}")
    a(f"buffer_store_dwordx4 v[96:99], v123, {sWS}, s63 offen sc1")
    stamp(13)
    a("s_branch L_kv_end")
    a("@pe G")
    if GD > 1 or opt.get("gnew"):
        a("L_g_sl:\ns_waitcnt vmcnt(0)"); check_sent(range(16, 24), 24); a("s_cbranch_vccnz L_g_re\ns_branch L_g_ok")
    a("L_D:")
    TCH = opt.get("tch", 0); TP = opt.get("tp", 3)
    def hookD(p):
        n = 0
        if TCH and p == TP:
            fl = {1: "sc1", 2: "nt", 3: "", 4: "sc0 sc1"}[TCH]
            a(f"s_lshl_b32 s7, s4, 1\ns_add_u32 s7, s7, s50\ns_lshl_b32 s7, s7, 3\ns_add_u32 s7, s7, s3\ns_lshl_b32 s51, s7, 11\ns_add_u32 s51, s51, {WP}\ns_mul_i32 s52, s7, 7168\ns_add_u32 s52, s52, {PO}")
            for i in range(2): a(f"buffer_load_dwordx4 v[112:115], v7, {sWS}, s51 offen offset:{i*1024} {fl}")
            for i in range(7):
                a(f"buffer_load_dwordx4 v[112:115], v7, {sWS}, s52 offen offset:{(i&3)*1024} {fl}")
                if i == 3: a("s_add_u32 s52, s52, 4096")
            n = 9
        return n
    attn("D", hookD)
    a("@pe D")
    WB = opt.get("wb", 0)
    if WB:
        a("s_cmp_lg_u32 s53, 0\ns_cbranch_scc1 L_kv_end")
        if WB == 1: flag_wait("L_wbg", O_FLG, 16, 122)
        if WB == 3: flag_wait("L_wbg", O_FLG+192, 14, 122)
        stamp(10)
        a("buffer_wbl2 sc1")
        a("s_waitcnt vmcnt(0)")
        stamp(11)
    a("L_kv_end:")
    if debug:
        a(f"s_cmp_lg_u32 s3, {DW}\ns_cbranch_scc1 L_end")
        a(f"s_lshl_b32 s7, s2, 8\ns_add_u32 s7, s7, {hex(STAMP)}")
        a("L_stamps:")
        a("s_waitcnt lgkmcnt(0)\nv_mov_b32 v0, 0")
        for i in range(16):
            a(f"v_mov_b32 v2, s{64+2*i}\nv_mov_b32 v3, s{65+2*i}")
            a(f"buffer_store_dwordx2 v[2:3], v0, {sWS}, s7 offen offset:{8*i}")
            a("s_nop 1")
    a("s_endpgm")

    a("L_aux:")
    a("s_setprio 3")
    if P3: srd([40, 24, 28, 32, 36] + ([16] if opt.get("vpf") else [])); com1(); com2()
    for i in range(4): a(f"v_mov_b32 v{100+i}, -1")
    a("s_lshl_b32 s58, s5, 1\ns_add_u32 s58, s58, s3\ns_lshl_b32 s7, s58, 10\ns_add_u32 s59, s7, s6")
    a("s_getreg_b32 s63, hwreg(HW_REG_XCC_ID, 0, 4)")
    if SLOW: a("s_and_b32 s63, s5, 1")
    if QSL: a("s_lshl_b32 s7, s58, 6\ns_add_u32 s7, s7, s4\ns_lshl_b32 s7, s7, 10\nv_lshrrev_b32 v4, 3, v1\nv_and_b32 v5, 7, v1\nv_lshlrev_b32 v5, 4, v5\nv_lshl_add_u32 v4, v4, 13, v5")
    a("s_waitcnt lgkmcnt(0)")
    if P2: a("s_mov_b64 s[40:41], s[90:91]"); a("s_mov_b64 s[16:17], s[72:73]\ns_mov_b64 s[24:25], s[76:77]\ns_mov_b64 s[28:29], s[80:81]\ns_mov_b64 s[32:33], s[82:83]\ns_mov_b64 s[44:45], s[84:85]\ns_mov_b64 s[36:37], s[86:87]")
    a("s_load_dword s48, s[40:41], 0")
    if PRO: stamp(12)
    if B0 and not AB0: a("s_barrier")
    a("s_cmp_ge_u32 s58, 43\ns_cbranch_scc1 L_a_c3")
    a(f"buffer_store_dwordx4 v[100:103], v7, {sWS}, s59 offen")
    a("L_a_c3:")
    stamp(1)
    a("v_lshlrev_b32 v14, 10, v11\nv_lshl_add_u32 v14, v9, 7, v14\nv_lshl_add_u32 v14, v12, 3, v14\nv_lshrrev_b32 v4, 1, v9\nv_lshl_add_u32 v14, v4, 5, v14\nv_lshl_add_u32 v14, v13, 6, v14")
    a("s_lshl_b32 s7, s3, 6\nv_xor_b32 v14, s7, v14\nv_xor_b32 v15, 32, v14")
    a(f"v_lshrrev_b32 v4, 3, v10\nv_lshl_add_u32 v4, v4, 2, v12\nv_mul_u32_u24 v4, 1040, v4\nv_lshl_add_u32 v4, v11, 4, v4\n{QS('s57')}\ns_lshl_b32 s7, s57, 8\ns_add_u32 s7, s7, {L_OP}\nv_add_u32 v4, s7, v4")
    a("v_and_b32 v5, 31, v1\nv_lshrrev_b32 v6, 5, v1\nv_lshlrev_b32 v2, 2, v5\nv_lshl_add_u32 v2, v6, 15, v2")
    a(f"s_lshl_b32 s55, s4, 16\ns_add_u32 s55, s55, {QB}")
    a(f"s_lshl_b32 s51, s57, 11\n{CG}\ns_lshl_b32 s7, s7, 8\ns_add_u32 s51, s51, s7\ns_lshl_b32 s7, s3, 7\ns_add_u32 s51, s51, s7\ns_add_u32 s51, s51, s55")
    a(f"s_add_u32 s52, s51, 8192\ns_add_u32 s53, s51, 16384\ns_add_u32 s54, s51, 24576\nv_add_u32 v3, {QX}, v2\nv_mov_b32 v104, 0xff")
    a(f"s_lshr_b32 s7, s5, 2\ns_lshl_b32 s60, s7, 13\ns_add_u32 s60, s60, s55\ns_lshl_b32 s7, s3, 7\ns_add_u32 s60, s60, s7\ns_add_u32 s61, s60, {QX}\ns_add_u32 s62, s60, 4096\ns_mov_b32 s49, s60")
    a("v_lshrrev_b32 v106, 3, v1\nv_and_b32 v5, 7, v1\nv_and_b32 v13, 1, v106\nv_lshlrev_b32 v106, 8, v106\nv_lshl_add_u32 v106, v5, 4, v106")
    a(f"v_lshlrev_b32 v13, 9, v13\nv_lshrrev_b32 v5, 1, v5\nv_lshl_add_u32 v13, v5, 6, v13\nv_lshl_add_u32 v13, v11, 4, v13\nv_and_b32 v5, 1, v1\nv_lshl_add_u32 v13, v5, 3, v13\ns_lshl_b32 s7, s3, 8\ns_add_u32 s7, s7, {L_QL}\nv_add_u32 v13, s7, v13")
    a("v_lshlrev_b32 v105, 1, v12")
    a("s_waitcnt lgkmcnt(0)\ns_add_u32 s48, s48, 1\ns_lshl_b32 s63, s63, 4\ns_and_b32 s7, s48, 15\ns_or_b32 s63, s63, s7\nv_lshrrev_b32 v105, v105, s63")
    a("s_bfe_u32 s98, s63, 0x20000\ns_bfe_u32 s99, s63, 0x20002\ns_bfe_u32 s100, s63, 0x20004\ns_bfe_u32 s101, s63, 0x20006")
    a("s_waitcnt vmcnt(0)")
    stamp(2)
    a("s_barrier")
    stamp(3)
    if debug and not LITE: a("s_waitcnt lgkmcnt(0)")
    for ks in range(4):
        a(f"ds_read_b128 v[{16+4*ks}:{19+4*ks}], v4 offset:{ks*64}")
        trfrag(32+8*ks, 14, ks*4096, 512); trfrag(36+8*ks, 15, ks*4096, 512)
        if ks == 2: a("s_waitcnt lgkmcnt(10)"); mfma(96, 16, 32); mfma(100, 16, 36)
    for ks in range(1, 4):
        a(f"s_waitcnt lgkmcnt({5*(3-ks)})")
        mfma(96, 16+4*ks, 32+8*ks, 96); mfma(100, 16+4*ks, 36+8*ks, 100)
    for j in range(4): a(f"v_mov_b32_dpp v{96+j}, v{100+j} quad_perm:[0,1,2,3] row_mask:0xa bank_mask:0xf")
    for j in range(4): a(f"v_bfi_b32 v{96+j}, 3, v105, v{96+j}")
    for j in range(4): a(f"buffer_store_dword v{96+j}, v2, {sWS}, s{51+j} offen")
    if BQ: a("s_barrier")
    stamp(4)
    a("v_lshrrev_b32 v9, 3, v1\nv_and_b32 v12, 7, v1\nv_lshrrev_b32 v4, 1, v12")
    a(f"v_mul_u32_u24 v15, {RG}, v4\nv_lshl_add_u32 v15, v9, 4, v15\nv_lshl_add_u32 v15, v5, 3, v15\ns_lshl_b32 s7, s3, 7\ns_add_u32 s7, s7, {L_RD}\nv_add_u32 v15, s7, v15")
    a("v_lshlrev_b32 v5, 2, v12\nv_lshl_add_u32 v6, v9, 10, v5")
    a("s_or_b32 s96, s96, 15")
    VPF = opt.get("vpf", 0); VPP = opt.get("vpp", 0)
    def vpf():
        for k in range(VPF): a(f"buffer_load_dwordx4 v[116:119], v107, {sV}, s50 offen offset:{512 - 512*k}")
    if VPF:
        a("s_lshr_b32 s7, s58, 5\ns_lshl_b32 s50, s7, 25\ns_lshl_b32 s7, s4, 20\ns_add_u32 s50, s50, s7\ns_and_b32 s7, s58, 30\ns_lshl_b32 s7, s7, 12\ns_add_u32 s50, s50, s7")
        a(f"s_lshl_b32 s7, s3, 8\ns_add_u32 s50, s50, s7\ns_add_u32 s50, s50, {(3<<23) + (2<<16) + 786432 + 4096}\nv_lshlrev_b32 v107, 4, v10\nv_lshl_add_u32 v107, v11, 10, v107")
    if VPP == 0: vpf()
    a("s_barrier")
    if M1: a("s_barrier")
    if VPP == 1: vpf()
    stamp(8)
    def qld():
        for s in range(4): a(f"buffer_load_dwordx4 v[{16+4*s}:{19+4*s}], v106, {sWS}, {'s49' if s < 2 else 's62'} offen offset:{(s%2)*2048} sc1")
    qld()
    if PAIR: a("s_barrier")
    stamp(11)
    a("s_branch L_q_ld")
    a("L_q_poll:")
    spin(); a("s_and_b32 s7, s96, 7\ns_cselect_b32 s49, s60, s61\ns_cbranch_scc1 L_q_ld2")
    for j in range(4): a(f"buffer_store_dword v{96+j}, v3, {sWS}, s{51+j} offen sc1")
    a("L_q_ld2:")
    a("s_add_u32 s62, s49, 4096")
    qld()
    a("L_q_ld:")
    a("s_waitcnt vmcnt(0)")
    if debug:
        a("s_and_b32 s7, s96, 15\ns_cmp_lg_u32 s7, 15\ns_cbranch_scc1 L_dbg1"); stamp(10); a("L_dbg1:")
    for i in range(16): a(f"v_xor_b32 v{16+i}, s{98+(i&3)}, v{16+i}")
    a("v_or_b32 v32, v16, v17\nv_or_b32 v33, v18, v19")
    for i in range(4, 16, 4): a(f"v_or3_b32 v32, v32, v{16+i}, v{17+i}\nv_or3_b32 v33, v33, v{18+i}, v{19+i}")
    a("v_and_b32 v32, 3, v32\nv_and_b32 v33, 3, v33\nv_cmp_ne_u32 vcc, 0, v32\nv_cmp_ne_u32 s[0:1], 0, v33")
    for i in range(0, 16, 4): a(f"v_and_b32 v{18+i}, -4, v{18+i}\nv_and_b32 v{19+i}, -4, v{19+i}")
    a("s_cbranch_vccnz L_q_poll")
    pk("add", 16, 16, 20); pk("add", 18, 18, 22); pk("add", 24, 24, 28); pk("add", 26, 26, 30); pk("add", 16, 16, 24); pk("add", 18, 18, 26)
    a(f"s_or_b32 s97, s0, s1\nv_mov_b32 v20, s97\nv_mov_b32 v21, {L_MD}")
    a("v_cvt_pk_bf16_f32 v16, v16, v17\nv_cvt_pk_bf16_f32 v17, v18, v19")
    a("ds_write_b64 v13, v[16:17]\nds_write_b32 v21, v20")
    stamp(5)
    a("s_cmp_eq_u32 s97, 0\ns_cbranch_scc1 L_a_fast")
    for j in range(4): a(f"buffer_store_dword v{96+j}, v3, {sWS}, s{51+j} offen sc1")
    for i in range(4): a(f"v_mov_b32 v{100+i}, -1")
    a(f"s_cmp_ge_u32 s58, 43\ns_cbranch_scc1 L_a_s1\ns_add_u32 s7, s59, {BX}")
    a(f"buffer_store_dwordx4 v[100:103], v7, {sWS}, s7 offen sc1")
    a("L_a_s1:")
    a(f"s_add_u32 s49, s6, {O_SY}\ns_lshl_b32 s7, s58, 2\ns_add_u32 s7, s7, s49\nv_mov_b32 v20, s48\nv_lshlrev_b32 v21, 2, v1\ns_waitcnt vmcnt(0)")
    a(f"buffer_store_dword v20, off, {sWS}, s7 sc1")
    a("L_a_s2:")
    spin()
    a(f"buffer_load_dword v22, v21, {sWS}, s49 offen sc1\ns_waitcnt vmcnt(0)\nv_cmp_ne_u32 vcc, s48, v22\ns_cbranch_vccnz L_a_s2")
    a("L_a_fast:")
    a("s_waitcnt lgkmcnt(0)\ns_barrier")
    if TOUCH:
        a("s_cmp_ge_u32 s58, 43\ns_cbranch_scc1 L_a_nt")
        a(f"buffer_load_dwordx4 v[100:103], v7, {sWS}, s59 offen sc1")
        a("L_a_nt:")
    PFL = opt.get("pfl", "")
    if WALL:
        a("s_lshl_b32 s7, s4, 6\ns_add_u32 s7, s7, s58\ns_lshl_b32 s7, s7, 13")
        for i in range(8):
            a(f"buffer_load_dwordx4 v[108:111], v7, {sWO}, s7 offen offset:{(i&3)*1024} {PFL}")
            if i == 3: a("s_add_u32 s7, s7, 4096")
    if WSL:
        a("s_lshl_b32 s7, s4, 6\ns_add_u32 s7, s7, s58\ns_lshl_b32 s7, s7, 13\nv_lshlrev_b32 v107, 4, v12\nv_lshl_add_u32 v107, v9, 10, v107")
        a(f"buffer_load_dwordx4 v[108:111], v107, {sWO}, s7 offen offset:384 {PFL}")
    if GPF:
        a("s_mul_i32 s7, s4, 7\ns_lshr_b32 s7, s7, 1\ns_or_b32 s49, s7, 3\ns_bfe_u32 s7, s49, 0x10002\ns_lshl_b32 s49, s49, 7\ns_lshl_b32 s62, s5, 4\ns_add_u32 s7, s7, s62\ns_mul_i32 s7, s7, 3584\ns_add_u32 s7, s7, s49")
        a("v_mul_u32_u24 v107, 7168, v9\nv_lshl_add_u32 v107, v12, 4, v107\ns_cmp_eq_u32 s3, 0\ns_cbranch_scc1 L_a_pg")
        a(f"buffer_load_dwordx4 v[112:115], v107, {sU}, s7 offen {PFL}\ns_branch L_a_px")
        a("L_a_pg:")
        a(f"buffer_load_dwordx4 v[112:115], v107, {sG}, s7 offen {PFL}")
        a("L_a_px:")
    a("s_barrier")
    a("s_cmp_ge_u32 s5, 16\ns_cbranch_scc1 L_aw1\n@warm X 2\ns_branch L_aw2\nL_aw1:\n@warm Y 2\nL_aw2:")
    a("s_barrier")
    if WG_ == 1: flag_set(256)
    a("s_barrier")
    if WG_ == 2 or opt.get("ggate") == 1: flag_set(256)
    a("s_cmp_ge_u32 s5, 16\ns_cbranch_scc1 L_a_gd\n@pb X")
    a(f"s_lshl_b32 s53, s4, 15\n{KH8}\ns_lshl_b32 s7, s7, 11\ns_add_u32 s53, s53, s7\n{CW}\ns_lshl_b32 s7, s7, 8\ns_add_u32 s53, s53, s7\ns_lshl_b32 s7, s3, 7\ns_add_u32 s53, s53, s7\ns_add_u32 s53, s53, {WP}")
    a("v_lshlrev_b32 v6, 4, v12\nv_lshl_add_u32 v6, v9, 11, v6")
    a(f"v_and_b32 v4, 3, v1\nv_mul_u32_u24 v15, {RG}, v4\nv_lshl_add_u32 v15, v9, 4, v15\nv_bfe_u32 v4, v1, 2, 1\nv_mul_i32_i24 v4, {L_OP+32-L_RD}, v4\ns_lshl_b32 s7, s3, 7\ns_add_u32 s7, s7, {L_RD}\nv_add3_u32 v15, v15, v4, s7")
    a("s_barrier")
    stamp(6)
    if RG_ == 1: flag_set(0)
    for w in range(8): a(f"ds_read_b128 v[{24+4*w}:{27+4*w}], v15 offset:{w*RW}")
    for w in range(0, 8, 2):
        a(f"s_waitcnt lgkmcnt({6-w})" if (not debug or LITE) else "s_waitcnt lgkmcnt(0)")
        pk("add", 24+4*w, 24+4*w, 28+4*w); pk("add", 26+4*w, 26+4*w, 30+4*w)
        if w == 2: pk("add", 24, 24, 32); pk("add", 26, 26, 34)
    pk("add", 40, 40, 48); pk("add", 42, 42, 50); pk("add", 24, 24, 40); pk("add", 26, 26, 42)
    for q in range(4): a(f"v_bfi_b32 v{24+q}, v104, s48, v{24+q}")
    a(f"buffer_store_dwordx4 v[24:27], v6, {sWS}, s53 offen sc1")
    if RG_ == 2: flag_set(0)
    stamp(7)
    a("s_cmp_lg_u32 s3, 0\ns_cbranch_scc1 L_a_end")
    a("s_and_b32 s50, s5, 1\ns_lshr_b32 s61, s5, 1\ns_lshl_b32 s7, s4, 3\ns_add_u32 s7, s7, s61")
    a(f"s_lshl_b32 s52, s7, 7\ns_lshl_b32 s62, s7, 4\ns_lshl_b32 s7, s50, 13\ns_add_u32 s52, s52, s7\ns_add_u32 s52, s52, {PO}\ns_lshl_b32 s7, s50, 12\ns_add_u32 s62, s62, s7")
    a("v_lshlrev_b32 v5, 4, v12\nv_lshl_add_u32 v5, v9, 14, v5")
    a("v_and_b32 v2, 3, v1\nv_bfe_u32 v3, v1, 2, 1\nv_lshrrev_b32 v4, 5, v1\nv_lshlrev_b32 v4, 2, v4\nv_lshl_add_u32 v4, v3, 3, v4\nv_lshl_add_u32 v6, v2, 10, v4\nv_lshl_add_u32 v4, v2, 7, v4")
    a(f"s_lshl_b32 s61, s61, 4\ns_lshl_b32 s7, s50, 9\ns_add_u32 s61, s61, s7\ns_add_u32 s61, s61, s6\ns_add_u32 s61, s61, {O_H}\ns_xor_b32 s53, s61, {BX}\ns_cmp_eq_u32 s97, 0\ns_cselect_b32 s51, s61, s53")
    a("s_and_b32 s49, s48, 0xff\ns_cmp_ge_u32 s5, 8\ns_cbranch_scc1 L_h_poll\ns_barrier")
    a("L_h_poll:")
    spin()
    a(f"buffer_load_dword v22, v4, {sWS}, s51 offen sc1")
    a("s_waitcnt vmcnt(0)")
    a("v_cmp_eq_u32 vcc, -1, v22\ns_cbranch_vccnz L_h_poll")
    unpack(20, 21, 22)
    stamp(9); cnt(2)
    if FG_: flag_wait("L_fg", O_FLG+128+64, 14, 122)
    if debug and opt.get("fs"): a(f"s_sleep {opt['fs']}")
    gather("L_f_poll", 7, 24, 56, 0x20000, "s49", FD, opt.get("fpm", 0))
    a("s_cbranch_scc1 L_f_poll" if opt.get("fpm", 0) else "s_cbranch_vccnz L_f_poll")
    stamp(12); cnt(3)
    a("v_mov_b32 v98, v96\nv_mov_b32 v99, v97\nv_permlane16_swap_b32 v96, v98\nv_permlane16_swap_b32 v97, v99")
    pk("add", 96, 96, 98)
    a("v_add_f32_dpp v96, v96, v96 row_ror:8 row_mask:0xf bank_mask:0xf\nv_add_f32_dpp v97, v97, v97 row_ror:8 row_mask:0xf bank_mask:0xf")
    a("v_cvt_pk_bf16_f32 v98, v96, v97")
    unpack(22, 23, 98)
    pk("add", 22, 22, 20); a("v_cvt_pk_bf16_f32 v22, v22, v23")
    a("s_mov_b32 exec_lo, 0xff\ns_mov_b32 exec_hi, 0xff")
    a(f"buffer_store_dword v22, v6, {sOUT}, s62 offen")
    stamp(13)
    a("s_cmp_lg_u32 s62, 0\ns_cbranch_scc1 L_a_end")
    a("v_mov_b32 v22, s48\ns_mov_b64 exec, 1")
    a(f"buffer_store_dword v22, off, {sWS}, 0")
    a("s_branch L_a_end")
    a("@pe X\nL_a_gd:\n@pb Y")
    a("s_cmp_ge_u32 s5, 30\ns_cbranch_scc1 L_a_end")
    a(f"v_lshrrev_b32 v4, 5, v1\nv_bfe_u32 v13, v1, 2, 1\nv_lshl_add_u32 v13, v4, 1, v13\nv_mul_u32_u24 v15, {RG}, v13\nv_and_b32 v13, 3, v9\nv_lshl_add_u32 v15, v13, 4, v15\nv_and_b32 v13, 3, v1\nv_lshl_add_u32 v15, v13, 2, v15")
    a(f"s_lshl_b32 s7, s3, 7\ns_add_u32 s7, s7, {L_RD}\nv_add_u32 v15, s7, v15")
    a(f"v_lshlrev_b32 v14, 1, v12\nv_lshl_add_u32 v14, v4, 4, v14\nv_and_b32 v13, 3, v9\nv_lshl_add_u32 v14, v13, 6, v14\ns_lshl_b32 s7, s3, 5\ns_add_u32 s7, s7, {L_PB}\nv_add_u32 v14, s7, v14\nv_add_u32 v4, 64, v15")
    a(f"s_mov_b32 s57, {hex(LOG2E ^ 0x80000000)}")
    for _ in range(bin(GUB).count("1")): a("s_barrier")
    if XG: flag_wait("L_xg", O_FLG+384, 8, 122); a("s_barrier")
    a("s_barrier")
    stamp(6)
    if FG_ == 1: flag_set(128)
    for w in range(4): a(f"ds_read2st64_b32 v[{24+2*w}:{25+2*w}], v15 offset0:{10*w} offset1:{10*w+5}")
    for w in range(4): a(f"ds_read2st64_b32 v[{32+2*w}:{33+2*w}], v4 offset0:{10*w} offset1:{10*w+5}")
    a("s_waitcnt lgkmcnt(4)" if (not debug or LITE) else "s_waitcnt lgkmcnt(0)")
    pk("add", 24, 24, 26); pk("add", 28, 28, 30); pk("add", 24, 24, 28); a("v_add_f32 v24, v24, v25")
    a("v_cvt_pk_bf16_f32 v24, v24, v24\nv_and_b32 v26, s56, v24")
    a("v_mul_f32 v26, s57, v26\nv_exp_f32 v26, v26")
    a("s_waitcnt lgkmcnt(0)")
    pk("add", 32, 32, 34); pk("add", 36, 36, 38)
    a("v_add_f32 v26, 1.0, v26\nv_rcp_f32 v26, v26")
    pk("add", 32, 32, 36); a("v_add_f32 v25, v32, v33")
    a("v_cvt_pk_bf16_f32 v26, v26, v25")
    unpack(25, 26, 26)
    a("v_mul_f32 v26, v26, v25")
    a("v_cvt_pk_bf16_f32 v26, v26, v26\nds_write_b16 v14, v26\ns_waitcnt lgkmcnt(0)\ns_barrier")
    if FG_ == 2: flag_set(128)
    stamp(7)
    a("@pe Y\nL_a_end:")
    if debug:
        a("s_mov_b64 exec, -1\ns_cmp_lg_u32 s3, 0\ns_cbranch_scc1 L_end")
        a(f"s_lshl_b32 s7, s2, 8\ns_add_u32 s7, s7, {hex(STAMP+128)}\ns_branch L_stamps")
    a("L_end:\ns_endpgm")
    PAD = opt.get("pad", 0); PW = str(opt.get("pw", "WGDXY"))
    out = []; cur = None; npad = {}; NCH = {"W": 8, "G": 8, "D": 8, "X": 2, "Y": 2}
    for l in a.l:
        t = l.strip()
        if t.startswith("@pb"): cur = t.split()[1]; c = 0; ex = True; npad[cur] = 0; continue
        if t.startswith("@pe"): cur = None; continue
        out.append(l)
        if cur and PAD and cur in PW and not t.endswith(":") and not t.startswith("@"):
            if " exec" in t.split(",")[0]: ex = t == "s_mov_b64 exec, -1"
            c += 8 if any(k in t for k in ("_dpp", "v_pk", "mfma", "buffer", "ds_", "3_", "v_perm", "lshl_add", "cvt_pk", "v_bf", "0x", "v_fma")) else 4
            if c >= PAD and ex and not t.startswith("s_cmp") and "m0" not in t:
                out.append(f"Lp{cur}{npad[cur]}:"); out.append(f"    s_cbranch_execz @{cur} {npad[cur] + NCH[cur]}"); npad[cur] += 1; c = 0
    fin = []
    for l in out:
        t = l.strip()
        if t.startswith("@warm"):
            _, r, n = t.split()
            if npad[r]:
                fin.append("    s_mov_b64 exec, 0")
                for c in range(min(int(n), npad[r])): fin += [f"    s_cmp_eq_u32 s3, {c}", f"    s_cbranch_scc1 Lp{r}{c}"]
                fin += [f"Lr{r}:", "    s_mov_b64 exec, -1"]
        elif "@" in t:
            r, k = t.split("@")[1].split(); fin.append(f"    s_cbranch_execz " + (f"Lp{r}{k}" if int(k) < npad[r] else f"Lr{r}"))
        else: fin.append(l)
    if PAD and not debug: print(npad)
    lines = hz.fix(fin)
    hdr = open("header.txt").read()
    return wrap("\n".join(lines) + "\n", 256, 640, L_END, 128, sgpr=102, header=hdr)

if __name__ == "__main__":
    specs = sys.argv[1:] or ["k8"]
    for sp in specs:
        nm, _, o = sp.partition(":")
        opt = {}
        for kv in filter(None, o.split(",")):
            k, v = kv.split("=")
            try: v = int(v)
            except ValueError: pass
            opt[k] = v
        open(nm + ".s", "w").write(gen(False, **opt))
        open(nm + "d.s", "w").write(gen(True, **opt))
```
